```python
import torch

def _softmax(x, axis=-1):
    return torch.softmax(x, dim=axis)

def _gelu(x):
    return torch.nn.functional.gelu(x, approximate='tanh')

def _silu(x):
    return torch.nn.functional.silu(x)

def _sigmoid(x):
    return torch.sigmoid(x)

def _layernorm(x, axis=-1, eps=1e-05):
    m = x.mean(dim=axis, keepdim=True)
    v = x.var(dim=axis, keepdim=True, unbiased=False)
    return (x - m) / torch.sqrt(v + eps)

def _scatter_add(tgt, idx, src, axis=0):
    return tgt.clone().index_add_(axis, idx, src)

def _segment_sum(src, seg, n):
    out = torch.zeros((n,) + src.shape[1:], dtype=src.dtype)
    return out.index_add_(0, seg, src)

def _pad(x, pw):
    flat = tuple((v for pair in reversed(pw) for v in pair))
    return torch.nn.functional.pad(x, flat)
kernel_name = 'adaLN_cond__ssm_conv_s4__swiglu_ffn__prompt'

def setup_inputs():

    _w = lambda a: (lambda t: t.to(torch.bfloat16) if t.is_floating_point() else t)(torch.as_tensor(a))

    def _A_setup():
        B, L, D, N = (1, 2048, 448, 256)
        A_re = -(lambda _x: torch.exp(torch.as_tensor(_x)))((lambda *s: torch.randn(*s, dtype=torch.bfloat16) * 3.2)(D, N))
        A_im = torch.pi * (lambda *s: torch.randn(*s, dtype=torch.bfloat16) * 0.1)(D, N)
        B_re = (lambda *s: torch.randn(*s, dtype=torch.bfloat16) * 0.1)(D, N)
        B_im = (lambda *s: torch.randn(*s, dtype=torch.bfloat16) * 0.1)(D, N)
        C_re = (lambda *s: torch.randn(*s, dtype=torch.bfloat16) * 0.1)(D, N)
        C_im = (lambda *s: torch.randn(*s, dtype=torch.bfloat16) * 0.1)(D, N)
        log_dt = (lambda *s: torch.randn(*s, dtype=torch.bfloat16) * 0.1)(D) * 0.5 - 4.0
        Dskip = (lambda *s: torch.randn(*s, dtype=torch.bfloat16) * 0.1)(D)
        return {'u': _w((lambda *s: torch.randn(*s, dtype=torch.bfloat16) * 0.05)(B, L, D)), 'A_re': _w(A_re), 'A_im': _w(A_im), 'B_re': _w(B_re), 'B_im': _w(B_im), 'C_re': _w(C_re), 'C_im': _w(C_im), 'log_dt': _w(log_dt), 'Dskip': _w(Dskip)}
    _A_in = _A_setup()

    def _B_setup():
        B, S, D, F = (1, 2048, 448, 1792)
        return {'x': _w((lambda *s: torch.randn(*s, dtype=torch.bfloat16) * 0.05)(B, S, D)), 'w_gate': _w((lambda *s: torch.randn(*s, dtype=torch.bfloat16) * 0.05)(D, F)), 'w_up': _w((lambda *s: torch.randn(*s, dtype=torch.bfloat16) * 0.05)(D, F)), 'w_down': _w((lambda *s: torch.randn(*s, dtype=torch.bfloat16) * 0.05)(F, D))}
    _B_in = _B_setup()
    return {'A_u': _A_in['u'], 'A_A_re': _A_in['A_re'], 'A_A_im': _A_in['A_im'], 'A_B_re': _A_in['B_re'], 'A_B_im': _A_in['B_im'], 'A_C_re': _A_in['C_re'], 'A_C_im': _A_in['C_im'], 'A_log_dt': _A_in['log_dt'], 'A_Dskip': _A_in['Dskip'], 'B_x': _B_in['x'], 'B_w_gate': _B_in['w_gate'], 'B_w_up': _B_in['w_up'], 'B_w_down': _B_in['w_down'], 'c': _w((lambda *s: torch.randn(*s, dtype=torch.bfloat16) * 0.1)(1, 448) * 8.0), 'w_mod': _w((lambda *s: torch.randn(*s, dtype=torch.bfloat16) * 0.1)(448, 6 * 448) * 448 ** (-0.5) * 8.0)}

def reference(A_u, A_A_re, A_A_im, A_B_re, A_B_im, A_C_re, A_C_im, A_log_dt, A_Dskip, B_x, B_w_gate, B_w_up, B_w_down, c, w_mod):

    def _A_ref(u, A_re, A_im, B_re, B_im, C_re, C_im, log_dt, Dskip):
        Bsz, L, D = u.shape
        dt = torch.exp(log_dt)[:, None]
        A = A_re + 1j * A_im
        Bc = B_re + 1j * B_im
        Cc = C_re + 1j * C_im
        logdA = dt * A
        dB = dt * Bc
        l = (lambda x, dt: x.to(dt))(torch.arange(L), A_re.dtype)
        P = torch.exp(logdA[:, :, None] * l[None, None, :])
        K = torch.einsum('dn,dnl,dn->dl', Cc, P, dB).real
        L2 = 2 * L
        Kp = _pad(K, ((0, 0), (0, L)))
        up = (lambda x, *d: x.permute(*d))(u, 0, 2, 1)
        up = _pad(up, ((0, 0), (0, 0), (0, L)))
        Kf = (lambda x, axes=(-2, -1): torch.fft.rfft2(x.float(), dim=axes))(Kp[:, None, :], axes=(-2, -1))
        Uf = (lambda x, axes=(-2, -1): torch.fft.rfft2(x.float(), dim=axes))(up[:, :, None, :], axes=(-2, -1))
        Yf = Uf * Kf[None, :, :, :]
        y = (lambda x, s, axes=(-2, -1): torch.fft.irfft2(x, s=s, dim=axes).to(torch.bfloat16))(Yf, (1, L2), axes=(-2, -1))[:, :, 0, :L]
        y = (lambda x, *d: x.permute(*d))(y, 0, 2, 1) + u * Dskip[None, None, :]
        return y

    def _B_ref(x, w_gate, w_up, w_down):
        g = _silu(x @ w_gate)
        u = x @ w_up
        return g * u @ w_down
    x = A_u
    mod = (_silu(c) @ w_mod).reshape(c.shape[0], 6, 1, -1)
    sa, ca, ga, sb, cb, gb = (mod[:, 0].clone(), mod[:, 1].clone(), mod[:, 2].clone(), mod[:, 3].clone(), mod[:, 4].clone(), mod[:, 5].clone())
    h = _layernorm(x, axis=-1) * (1 + ca) + sa
    x = x + ga * _A_ref(h, A_A_re, A_A_im, A_B_re, A_B_im, A_C_re, A_C_im, A_log_dt, A_Dskip)
    h = _layernorm(x, axis=-1) * (1 + cb) + sb
    x = x + gb * _B_ref(h, B_w_gate, B_w_up, B_w_down)
    return x
```

```python
import re, copy

REG_RE = re.compile(r'^(-|\|)?(abs\()?([vas])(?:(\d+)|\[(\d+):(\d+)\])\)?\|?$')

def regs_of(op):
    op = op.strip()
    m = REG_RE.match(op)
    if m:
        k = m.group(3)
        if m.group(4) is not None:
            return {(k, int(m.group(4)))}
        return {(k, i) for i in range(int(m.group(5)), int(m.group(6)) + 1)}
    if op == 'vcc': return {('s', 'vcc_lo'), ('s', 'vcc_hi')}
    if op in ('vcc_lo', 'vcc_hi', 'm0', 'exec_lo', 'exec_hi'): return {('s', op)}
    if op == 'exec': return {('s', 'exec_lo'), ('s', 'exec_hi')}
    return set()

TRANS = ('v_exp_', 'v_log_', 'v_rcp_', 'v_rsq_', 'v_sqrt_', 'v_sin_', 'v_cos_')
NODST_S = ('s_cmp', 's_waitcnt', 's_barrier', 's_nop', 's_branch', 's_cbranch', 's_endpgm', 's_sleep', 's_setprio',
           's_bitcmp', 's_setpc')
VCC = {('s', 'vcc_lo'), ('s', 'vcc_hi')}
EXEC = {('s', 'exec_lo'), ('s', 'exec_hi')}

class Ins:
    def __init__(self, text):
        self.text = text
        t = text.split(';')[0].strip()
        parts = t.split(None, 1)
        self.mn = parts[0]
        rest = parts[1] if len(parts) > 1 else ''
        ops = []
        depth = 0; cur = ''
        for ch in rest:
            if ch == '[': depth += 1
            if ch == ']': depth -= 1
            if ch == ',' and depth == 0:
                ops.append(cur.strip()); cur = ''
            else: cur += ch
        if cur.strip(): ops.append(cur.strip())
        self.mods = ''
        if ops:
            last = ops[-1].split(None, 1)
            ops[-1] = last[0]
            self.mods = last[1] if len(last) > 1 else ''
        self.ops = ops
        mn = self.mn
        R = [regs_of(o) for o in ops]
        allr = set().union(*R) if R else set()
        self.defs = set(); self.uses = set()
        self.kind = 'other'
        self.srcC = set(); self.srcAB = set(); self.passes = 0
        self.dpp = 'dpp' in mn or any(k in self.mods for k in ('row_', 'quad_perm', 'wave_'))
        if mn.startswith('v_mfma'):
            self.kind = 'mfma'
            self.defs = R[0]; self.srcAB = R[1] | R[2]; self.srcC = R[3]; self.uses = R[1] | R[2] | R[3]
            self.passes = 8 if '32x32' in mn else 4
        elif mn.startswith('v_'):
            self.kind = 'valu'
            self.defs = set(R[0]); self.uses = set().union(*R[1:]) if len(R) > 1 else set()
            if '_co_' in mn or mn.startswith('v_div_scale') or mn.startswith('v_mad_u64'):
                self.defs |= R[1]; self.uses = set().union(*R[2:])
            if mn.startswith(('v_fmac', 'v_dot2c', 'v_pk_fmac', 'v_writelane')) or self.dpp or 'sdwa' in mn or 'dst_sel' in self.mods:
                self.uses |= R[0]
            if mn.startswith('v_permlane') and 'swap' in mn or mn.startswith('v_swap'):
                self.defs = R[0] | R[1]; self.uses = R[0] | R[1]
            if mn.startswith('v_cmpx'): self.defs |= EXEC
        elif mn.startswith('ds_'):
            self.kind = 'ds'
            if mn.startswith(('ds_read', 'ds_bpermute', 'ds_permute', 'ds_swizzle')) or '_rtn' in mn:
                self.defs = R[0]; self.uses = set().union(*R[1:])
                if 'd16' in mn: self.uses |= R[0]
            else: self.uses = allr
        elif mn.startswith(('buffer_', 'global_')):
            self.kind = 'vmem'
            islds = re.search(r'\blds\b', self.mods) or '_lds_' in mn
            if '_load' in mn and not islds:
                self.defs = R[0]; self.uses = set().union(*R[1:])
                if 'd16' in mn: self.uses |= R[0]
            elif '_atomic' in mn and 'sc0' in self.mods:
                self.defs = R[0]; self.uses = allr
            else: self.uses = allr
            if islds: self.uses |= {('s', 'm0')}
            self.wide_store = set()
            if '_store_dwordx4' in mn or '_store_dwordx3' in mn:
                self.wide_store = R[0] if mn.startswith('buffer_') else R[1]
        elif mn.startswith(('s_load', 's_buffer_load', 's_memtime', 's_memrealtime')):
            self.kind = 'smem'
            self.defs = R[0]; self.uses = set().union(*R[1:]) if len(R) > 1 else set()
        elif mn.startswith('s_'):
            self.kind = 'salu'
            if mn.startswith(NODST_S): self.uses = allr
            else:
                self.defs = set(R[0]) if R else set(); self.uses = set().union(*R[1:]) if len(R) > 1 else set()
                if 'saveexec' in mn: self.defs |= EXEC
        self.trans = mn.startswith(TRANS)
        self.dot = mn.startswith('v_dot')
        self.states = 1
        if mn == 's_nop': self.states = int(ops[0], 0) + 1

def need_states(p, c):
    n = 0
    vdef = {r for r in p.defs if r[0] in 'va'}
    sdef = {r for r in p.defs if r[0] == 's'}
    if p.kind == 'valu':
        if c.kind == 'mfma' and vdef & c.uses: n = max(n, 3 if p.dot else 2)
        if c.kind == 'mfma' and sdef & EXEC: n = max(n, 4)
        if c.kind == 'valu':
            if c.dpp and vdef & c.uses: n = max(n, 2)
            if c.dpp and sdef & EXEC: n = max(n, 5)
            if c.mn.startswith('v_permlane') and vdef & c.uses: n = max(n, 2)
            if c.mn.startswith(('v_readlane', 'v_readfirstlane')) and vdef & c.uses: n = max(n, 1)
            if c.mn.startswith(('v_readlane', 'v_readfirstlane', 'v_writelane', 'v_permlane')) and sdef & EXEC: n = max(n, 4)
            if sdef & c.uses: n = max(n, 4 if c.mn.startswith(('v_readlane', 'v_writelane')) else 2)
            if p.trans and not c.trans and vdef & c.uses: n = max(n, 1)
            if ('op_sel' in p.mods and not p.mn.startswith('v_pk_') or 'dst_sel' in p.mods) and vdef & (c.uses | c.defs): n = max(n, 1)
        if p.dot and vdef & (c.uses | c.defs):
            if c.mn == p.mn:
                ab = set()
                for o in c.ops[1:3]: ab |= regs_of(o)
                if vdef & ab: n = max(n, 3)
            else: n = max(n, 3)
        if p.trans and c.kind in ('ds', 'vmem') and vdef & c.uses: n = max(n, 1)
        if c.kind == 'vmem' and sdef & c.uses: n = max(n, 5)
        if c.kind in ('salu', 'smem') and sdef & c.uses: n = max(n, 1)
    if p.kind == 'salu' and ('s', 'm0') in p.defs and ('s', 'm0') in c.uses and c.kind in ('vmem', 'ds'): n = max(n, 1)
    if p.kind == 'mfma':
        hi = p.passes == 8
        if c.kind == 'mfma':
            if p.defs & c.srcAB: n = max(n, 12 if hi else 8)
            if p.defs & c.srcC and not (p.defs == c.srcC and p.passes == c.passes): n = max(n, 10 if hi else 6)
            if p.defs & c.defs and not (p.defs == c.defs and p.passes == c.passes): n = max(n, 10 if hi else 6)
        elif c.kind in ('valu', 'ds', 'vmem'):
            if p.defs & (c.uses | c.defs): n = max(n, 12 if hi else 8)
            if p.srcC & c.defs: n = max(n, 7 if hi else 3)
    if p.kind == 'vmem' and p.wide_store and p.wide_store & c.defs and c.kind in ('valu', 'mfma', 'ds', 'vmem'): n = max(n, 2)
    return n

class Asm:
    def __init__(self):
        self.lines = []
        self.vm = []
        self.lg = []
        self.sm = set()
        self.win = []
        self.nins = 0
        self.nops = 0
    def raw(self, s): self.lines.append(s)
    def comment(self, s): self.lines.append('    ; ' + s)
    def label(self, name):
        self.lines.append(name + ':')
    def state(self): return (copy.copy(self.vm), copy.copy(self.lg), set(self.sm), list(self.win))
    def set_state(self, st): self.vm, self.lg, self.sm, self.win = list(st[0]), list(st[1]), set(st[2]), list(st[3])
    def _push(self, ins):
        self.lines.append('    ' + ins.text)
        self.win.append(ins); self.win = self.win[-24:]
        self.nins += 1
    def wait(self, vm=None, lgkm=None):
        parts = []
        if vm is not None:
            vm = min(vm, 63)
            parts.append(f'vmcnt({vm})'); self.vm = self.vm[len(self.vm) - vm:] if vm < len(self.vm) else self.vm
            if vm == 0: self.vm = []
        if lgkm is not None:
            lgkm = min(lgkm, 15)
            parts.append(f'lgkmcnt({lgkm})')
            if lgkm == 0: self.lg = []; self.sm = set()
            elif lgkm < len(self.lg): self.lg = self.lg[len(self.lg) - lgkm:]
        self._push(Ins('s_waitcnt ' + ' '.join(parts)))
    def __call__(self, text):
        for line in text.split('\n'):
            line = line.strip()
            if not line: continue
            if line.startswith(';'): self.comment(line[1:].strip()); continue
            if line.endswith(':'): self.label(line[:-1]); continue
            self.emit(line)
    def emit(self, text):
        ins = Ins(text)
        if ins.mn == 's_waitcnt':
            m = re.search(r'vmcnt\((\d+)\)', text); l = re.search(r'lgkmcnt\((\d+)\)', text)
            self.wait(int(m.group(1)) if m else None, int(l.group(1)) if l else None)
            return
        touch = ins.defs | ins.uses
        wv = wl = None
        for i in range(len(self.vm) - 1, -1, -1):
            if self.vm[i] & touch: wv = len(self.vm) - 1 - i; break
        for i in range(len(self.lg) - 1, -1, -1):
            if self.lg[i] & touch: wl = len(self.lg) - 1 - i; break
        if self.sm & touch or (wl is not None and self.sm): wl = 0
        if wv is not None or wl is not None: self.wait(wv, wl)
        need = 0; dist = 0
        for p in reversed(self.win):
            need = max(need, need_states(p, ins) - dist)
            dist += p.states
            if dist >= 20: break
        if need > 0:
            self._push(Ins(f's_nop {need - 1}')); self.nops += need
        self._push(ins)
        if ins.kind == 'vmem': self.vm.append(set(ins.defs))
        elif ins.kind == 'ds': self.lg.append(set(ins.defs))
        elif ins.kind == 'smem': self.sm |= ins.defs
    def text(self): return '\n'.join(self.lines) + '\n'

def merge(main, fill, start=0, end=None):
    end = len(main) if end is None else end
    n = end - start
    out = list(main[:start]); k = 0
    for i in range(n):
        out.append(main[start + i])
        tgt = (i + 1) * len(fill) // n
        out.extend(fill[k:tgt]); k = tgt
    out.extend(main[end:])
    return out

def vr(b, n=1, k='v'): return f'{k}{b}' if n == 1 else f'{k}[{b}:{b + n - 1}]'
def ar(b, n=1): return vr(b, n, 'a')
def sr(b, n=1): return vr(b, n, 's')
```

```python
import sys, struct, math
from asmlib import *

KNAME = "adaLN_cond__ssm_conv_s4__swiglu_ffn__prompt_kernel"
HEADER = open("adaLN_cond__ssm_conv_s4__swiglu_ffn__prompt.s.ref").read().split("; Override launch")[0]

XG, STAT, MODG, FLG2, CAUG, FLG3, X2, ACT, TS = 0x0, 0x400000, 0x410000, 0x420000, 0x440000, 0x450000, 0x500000, 0x700000, 0xF00000
WS_BYTES = 0x1000000
OOB = 0x7fff0000
S_WAVE, S_XCD, S_SLOT, S_PAIR, S_NONCE, S_W3 = 4, 5, 6, 7, 8, 3
P_U, P_ARE, P_AIM, P_BRE, P_BIM, P_CRE, P_CIM, P_LDT, P_DSK, P_BX, P_WG, P_WU, P_WD, P_C, P_WM, P_OUT, P_DBG, P_WS = range(16, 52, 2)
R_WS, R_A, R_B = 52, 56, 60
S_RB, S_FC = 66, 67
S_TS = 76
SPIN = 200000
WS = f"s[{R_WS}:{R_WS+3}]"
RA = f"s[{R_A}:{R_A+3}]"
RB = f"s[{R_B}:{R_B+3}]"
TP = 73 * 256
L_T = 0
L_H = 2 * TP
HP = 4576
L_E = L_H + 2 * HP
EP = 528
EW = 54 * EP
CP = 4160
L_Y = L_E + 8 * CP
LDS_BYTES = 163840
assert L_E + 4 * EW <= LDS_BYTES and L_Y + 32768 <= LDS_BYTES
L_W = 0
WM = 448 * 128

def f32(x): return "0x%08x" % struct.unpack("<I", struct.pack("<f", x))[0]
LOG2E = 1.4426950408889634

class Gen:
    def __init__(self, stamps=False):
        self.a = Asm(); self.stamps = stamps; self.uid = 0
        self.stamp_names = []
    def lab(self, n):
        self.uid += 1
        return f"L_{n}_{self.uid}"
    def srd(self, r, p, nbytes):
        self.a(f"s_mov_b32 s{r}, s{p}\ns_mov_b32 s{r+1}, s{p+1}\ns_mov_b32 s{r+2}, {nbytes}\ns_mov_b32 s{r+3}, 0x00020000")
    def srd_sel(self, r, p1, p0, nbytes):
        self.a(f"s_cselect_b32 s{r}, s{p1}, s{p0}\ns_cselect_b32 s{r+1}, s{p1+1}, s{p0+1}\ns_mov_b32 s{r+2}, {nbytes}\ns_mov_b32 s{r+3}, 0x00020000")
    def stamp(self, name):
        if not self.stamps: return
        a = self.a
        if name not in self.stamp_names: self.stamp_names.append(name)
        idx = self.stamp_names.index(name)
        assert idx < 20
        a.wait(lgkm=0)
        a("s_memrealtime s[14:15]")
        a(f"s_mov_b32 s{S_TS + idx}, s14")
    def barrier(self):
        self.a.wait(lgkm=0)
        self.a("s_barrier")
    def poll(self, loads, tags, dst, tmp, issued=False):
        a = self.a
        ok = self.lab("ok"); lp = self.lab("spin")
        if issued:
            self.tagcheck(dst, tags, tmp)
            a(f"v_cmp_ne_u32 vcc, 0, v{dst}\ns_cbranch_vccz {ok}")
        st = a.state()
        a(f"s_mov_b32 s9, {SPIN}")
        a.label(lp)
        for x in loads: a(x)
        self.tagcheck(dst, tags, tmp)
        a(f"""v_cmp_ne_u32 vcc, 0, v{dst}
s_cbranch_vccz {ok}
s_sub_u32 s9, s9, 1
s_cmp_lg_u32 s9, 0
s_cbranch_scc1 {lp}""")
        a.label(ok)
        if issued: a.set_state(st)
    def tagcheck(self, dst, tags, tmp):
        a = self.a; parts = []
        n = (len(tags) + 1) // 2
        for i in range(0, len(tags) - 1, 2):
            o = dst if n == 1 else tmp[i//2]
            a(f"v_bitop3_b32 v{o}, v{tags[i]}, v{tags[i+1]}, s{S_NONCE} bitop3:0x7e"); parts.append(o)
        if len(tags) % 2:
            o = dst if n == 1 else tmp[len(tags)//2]
            a(f"v_xor_b32 v{o}, s{S_NONCE}, v{tags[-1]}"); parts.append(o)
        while len(parts) > 1:
            if len(parts) >= 3:
                o = dst if len(parts) == 3 else parts[0]
                a(f"v_or3_b32 v{o}, v{parts[0]}, v{parts[1]}, v{parts[2]}"); parts = parts[3:] + [o]
            else:
                a(f"v_or_b32 v{dst}, v{parts[0]}, v{parts[1]}"); parts = [dst]
    def bf16r(self, d, s):
        self.a(f"v_cvt_pk_bf16_f32 v{d}, v{s}, v{s}\nv_and_b32 v{d}, 0xffff0000, v{d}")

    def prologue(self):
        a = self.a
        a(f"""s_cmp_ge_u32 s2, 256
s_cbranch_scc1 L_exit
s_load_dwordx16 s[16:31], s[0:1], 0
s_load_dwordx16 s[32:47], s[0:1], 64
s_load_dwordx4 s[48:51], s[0:1], 128
s_memrealtime s[10:11]
v_lshrrev_b32 v2, 6, v0
v_and_b32 v1, 63, v0
v_readfirstlane_b32 s{S_WAVE}, v2
s_and_b32 s{S_XCD}, s2, 7
s_lshr_b32 s{S_SLOT}, s2, 3
s_mul_i32 s{S_PAIR}, s{S_XCD}, 28
s_add_u32 s{S_PAIR}, s{S_PAIR}, s{S_SLOT}
s_and_b32 s{S_W3}, s{S_WAVE}, 3
v_mul_u32_u24 v4, 896, v2
v_lshl_add_u32 v4, v1, 4, v4
v_mov_b32 v5, {OOB}
v_cmp_gt_u32 vcc, 56, v1
s_mul_i32 s12, s2, {8*896}
v_cndmask_b32 v4, v5, v4, vcc
v_and_b32 v5, 3, v0
v_mul_u32_u24 v5, 1792, v5
v_and_b32 v6, 0x1fc, v0
v_add_u32 v5, v5, v6
v_mov_b32 v7, 0
""")
        a.wait(lgkm=0)
        if self.stamps:
            self.stamp_names = ["start"]
            a(f"s_mov_b32 s{S_TS}, s10")
        self.srd(R_B, P_DBG, 256)
        nn = self.lab("nononce")
        a(f"""s_or_b32 s13, s2, s{S_WAVE}
s_cmp_lg_u32 s13, 0
s_cbranch_scc1 {nn}
s_or_b32 s13, s10, 1
v_mov_b32 v8, s13
s_mov_b64 exec, 1
buffer_store_dword v8, v7, {RB}, 0 offen sc1
s_mov_b64 exec, -1""")
        a.vm = []
        a.label(nn)
        a(f"buffer_load_dword v9, v7, {RB}, 0 offen sc1")
        self.srd(R_A, P_U, 2048 * 896)
        self.srd(R_WS, P_WS, WS_BYTES)
        a(f"buffer_load_dwordx4 v[12:15], v4, {RA}, s12 offen")
        for k in range(2):
            a(f"buffer_load_dword v{20+4*k}, v5, {RA}, s12 offen offset:{512*k}")
            a(f"buffer_load_dword v{22+4*k}, v5, {RA}, s12 offen offset:{512*k+896}")

    def get_nonce(self):
        a = self.a
        ok = self.lab("nonce_ok"); lp = self.lab("nonce_poll")
        a(f"v_readfirstlane_b32 s{S_NONCE}, v9")
        st = a.state()
        a(f"""s_cmp_lg_u32 s{S_NONCE}, 0
s_cbranch_scc1 {ok}
s_mov_b32 s9, {SPIN}""")
        self.srd(R_B, P_DBG, 256)
        a.label(lp)
        a(f"""buffer_load_dword v9, v7, {RB}, 0 offen sc1
v_readfirstlane_b32 s{S_NONCE}, v9
s_sub_u32 s9, s9, 1
s_cmp_eq_u32 s9, 0
s_cbranch_scc1 {ok}
s_cmp_eq_u32 s{S_NONCE}, 0
s_cbranch_scc1 {lp}""")
        a.label(ok)
        a.set_state(st); a.win = []
        a("s_nop 1")

    def phase_a_publish(self):
        a = self.a
        for k in range(2):
            a(f"v_mov_b32 v{21+4*k}, s{S_NONCE}\nv_mov_b32 v{23+4*k}, s{S_NONCE}")
        a(f"""s_mul_i32 s12, s2, 14336
s_add_u32 s12, s12, {XG}
v_lshlrev_b32 v5, 4, v0
v_mov_b32 v6, {OOB}
v_cmp_gt_u32 vcc, 384, v0
v_add_u32 v10, 0x2000, v5
s_mov_b32 s13, 0x3f803f80
v_cndmask_b32 v6, v6, v10, vcc""")
        a(f"v_dot2_f32_bf16 v2, v12, s13, 0\nv_dot2_f32_bf16 v3, v12, v12, 0")
        for r in range(13, 16):
            a(f"v_dot2_f32_bf16 v2, v{r}, s13, v2\nv_dot2_f32_bf16 v3, v{r}, v{r}, v3")
        for k, ad in enumerate((5, 6)):
            a(f"buffer_store_dwordx4 v[{20+4*k}:{23+4*k}], v{ad}, {WS}, s12 offen sc1")
        for sh in (1, 2, 4, 8):
            a(f"v_add_f32_dpp v2, v2, v2 row_shr:{sh} row_mask:0xf bank_mask:0xf bound_ctrl:0")
            a(f"v_add_f32_dpp v3, v3, v3 row_shr:{sh} row_mask:0xf bank_mask:0xf bound_ctrl:0")
        for bc, m in ((15, "0xa"), (31, "0xc")):
            a(f"v_add_f32_dpp v2, v2, v2 row_bcast:{bc} row_mask:{m} bank_mask:0xf")
            a(f"v_add_f32_dpp v3, v3, v3 row_bcast:{bc} row_mask:{m} bank_mask:0xf")
        self.ln_finish(2, 3, 10)
        a(f"""v_cvt_pk_bf16_f32 v2, v2, v3
v_mov_b32 v3, s{S_NONCE}
s_lshl_b32 s12, s2, 3
s_add_u32 s12, s12, s{S_WAVE}
s_lshl_b32 s12, s12, 3
s_add_u32 s12, s12, {STAT}
s_mov_b32 exec_lo, 0
s_mov_b32 exec_hi, 0x80000000
buffer_store_dwordx2 v[2:3], v7, {WS}, s12 offen sc1
s_mov_b64 exec, -1""")

    def ln_finish(self, vs, vq, t):
        a = self.a
        a(f"""v_mul_f32 v{vs}, {f32(1/448)}, v{vs}
v_mul_f32 v{vq}, {f32(1/448)}, v{vq}
v_fma_f32 v{vq}, -v{vs}, v{vs}, v{vq}
v_max_f32 v{vq}, 0, v{vq}""")
        self.bf16r(vq, vq)
        a(f"v_add_f32 v{vq}, {f32(1e-5)}, v{vq}")
        self.bf16r(vq, vq)
        a(f"v_sqrt_f32 v{vq}, v{vq}")

    V_PAR = 36
    V_GA = 42
    def conv_early(self):
        a = self.a
        a(f"s_lshl_b32 s12, s{S_PAIR}, 10\nv_and_b32 v16, 255, v0\nv_lshlrev_b32 v10, 2, v16")
        for i, p in enumerate((P_ARE, P_AIM, P_BRE, P_BIM, P_CRE, P_CIM)):
            r = R_A if i % 2 == 0 else R_B
            self.srd(r, p, 448 * 512)
            a(f"buffer_load_dword v{self.V_PAR+i}, v10, s[{r}:{r+3}], s12 offen")
        a(f"""s_lshl_b32 s13, s{S_PAIR}, 2
s_load_dword s64, s[{P_LDT}:{P_LDT+1}], s13
s_load_dword s65, s[{P_DSK}:{P_DSK+1}], s13
s_lshr_b32 s{S_RB}, s{S_XCD}, 1
s_lshl_b32 s{S_RB}, s{S_RB}, 1
s_and_b32 s13, s{S_SLOT}, 1
s_add_u32 s{S_RB}, s{S_RB}, s13
s_and_b32 s{S_FC}, s{S_XCD}, 1
s_mul_i32 s{S_FC}, s{S_FC}, 14
s_lshr_b32 s13, s{S_SLOT}, 1
s_add_u32 s{S_FC}, s{S_FC}, s13""")
        a(f"""v_mov_b32 v60, 0
v_mov_b32 v61, 0
v_lshlrev_b32 v10, 3, v1
ds_write_b64 v10, v[60:61] offset:{L_H}
ds_write_b64 v10, v[60:61] offset:{L_H + HP}
ds_write_b64 v7, v[60:61] offset:{L_T + 9*256}
ds_write_b64 v7, v[60:61] offset:{L_T + TP + 9*256}""")
        a(f"""v_lshlrev_b32 v10, 3, v16
v_sub_u32 v10, 2047, v10
v_cvt_f32_u32 v10, v10
s_lshr_b32 s12, s{S_WAVE}, 2
s_mul_i32 s12, s12, {TP}""")
        for m in range(0, 11, 2):
            a(f"v_add_f32 v60, {f32(-m)}, v10\nv_add_f32 v61, {f32(-m-1)}, v10\nv_cvt_pk_bf16_f32 v62, v60, v61")
            for h in range(2):
                if m + h > 10: continue
                g = self.V_GA + m + h
                a(f"v_lshlrev_b32 v63, 16, v62" if h == 0 else "v_and_b32 v63, 0xffff0000, v62")
                a(f"""v_cvt_u32_f32 v63, v63
v_and_b32 v{g}, 0xf8, v63
v_and_b32 v11, 7, v63
v_lshl_or_b32 v{g}, v11, 8, v{g}
v_lshrrev_b32 v11, 8, v63
v_lshl_or_b32 v{g}, v11, 11, v{g}""")
        a(f"v_mov_b32 v11, {9*256}\nv_cmp_eq_u32 vcc, 255, v16")
        for m in range(8, 11):
            a(f"v_cndmask_b32 v{self.V_GA+m}, v{self.V_GA+m}, v11, vcc")
        for m in range(11):
            a(f"v_add_u32 v{self.V_GA+m}, s12, v{self.V_GA+m}")

    def cmul(self, d, x, r, t):
        return [f"v_pk_mul_f32 v[{t}:{t+1}], v[{x}:{x+1}], v[{r}:{r+1}] op_sel_hi:[1,0]",
                f"v_pk_fma_f32 v[{d}:{d+1}], v[{x}:{x+1}], v[{r}:{r+1}], v[{t}:{t+1}] op_sel:[1,1,0] op_sel_hi:[0,1,1] neg_lo:[0,1,0]"]

    def kgen_common(self):
        a = self.a; P = self.V_PAR
        a(f"""s_lshl_b32 s12, s64, 16
s_and_b32 s13, s64, 0xffff0000
s_cmp_lt_u32 s{S_W3}, 2
s_cselect_b32 s64, s12, s13
s_lshl_b32 s12, s65, 16
s_and_b32 s13, s65, 0xffff0000
s_cmp_lt_u32 s{S_W3}, 2
s_cselect_b32 s65, s12, s13
s_bitcmp1_b32 s{S_WAVE}, 0
s_cselect_b32 s65, 0, s65
s_mul_i32 s68, s{S_W3}, {EW}
s_add_u32 s68, s68, {L_E}""")
        lh = struct.unpack("<f", struct.pack("<f", LOG2E))[0]
        a(f"""v_mov_b32 v2, {f32(lh)}
v_mul_f32 v3, s64, v2
v_fma_f32 v4, s64, v2, -v3
v_mov_b32 v2, {f32(LOG2E - lh)}
v_fma_f32 v4, s64, v2, v4
v_exp_f32 v3, v3
v_mul_f32 v4, {f32(math.log(2))}, v4
v_fma_f32 v3, v3, v4, v3""")
        self.bf16r(2, 3)
        a(f"v_lshl_add_u32 v10, v1, 3, s68")
        for k in range(2):
            u = 80 + 6*k
            for i in range(2):
                a(f"v_lshlrev_b32 v{u+i}, 16, v{P+i}" if k == 0 else f"v_and_b32 v{u+i}, 0xffff0000, v{P+i}")
            a(f"""v_mul_f32 v{u}, v2, v{u}
v_mul_f32 v{u+1}, v2, v{u+1}
v_mul_f32 v{u}, {f32(LOG2E)}, v{u}
v_mul_f32 v{u+1}, {f32(1/(2*math.pi))}, v{u+1}""")
    def rho(self, L, R, sg):
        a = self.a
        for k in range(2):
            u = 80 + 6*k; t = 92 + 2*k
            a(f"v_mul_f32 v{t}, {f32(L)}, v{u}\nv_mul_f32 v{t+1}, {f32(L)}, v{u+1}\nv_fract_f32 v{t+1}, v{t+1}")
        for k in range(2):
            t = 92 + 2*k
            a(f"v_exp_f32 v{t}, v{t}\nv_cos_f32 v{R[k]}, v{t+1}\nv_sin_f32 v{R[k]+1}, v{t+1}")
        for k in range(2):
            t = 92 + 2*k
            a(f"v_mul_f32 v{R[k]}, v{t}, v{R[k]}\nv_mul_f32 v{R[k]+1}, {sg}v{t}, v{R[k]+1}")
    def chain_runner(self):
        outs = [96, 98, 100, 102]; st = {"i": 0, "pend": None}; seq = []
        T = [92, 94]
        def put(row, src):
            o = outs[st["i"] % 4]; st["i"] += 1
            return [f"v_cvt_pk_bf16_f32 v{o}, v{src[0]}, v{src[0]+1}", f"v_cvt_pk_bf16_f32 v{o+1}, v{src[1]}, v{src[1]+1}",
                    f"ds_write_b64 v10, v[{o}:{o+1}] offset:{row*EP}"]
        def first(row, src): st["pend"] = put(row, src)
        def chain(dst, src, rho, row):
            m0 = self.cmul(dst[0], src[0], rho[0], T[0]); m1 = self.cmul(dst[1], src[1], rho[1], T[1])
            p = st["pend"]
            seq.extend([m0[0], m1[0], p[0], m0[1], m1[1], p[1], p[2]])
            st["pend"] = put(row, dst)
        def done():
            seq.extend(st["pend"]); return seq
        return first, chain, done
    def kgen_lo(self):
        a = self.a
        R8 = [72, 74]; pp = [[80, 82], [84, 86]]
        self.rho(8, R8, "-")
        a(f"v_mov_b32 v102, 0x3f80\nv_mov_b32 v103, 0x3f80\nds_write_b64 v10, v[102:103] offset:{22*EP}")
        first, chain, done = self.chain_runner()
        first(23, R8); cur = R8
        for c in range(2, 32):
            chain(pp[c % 2], cur, R8, 22 + c); cur = pp[c % 2]
        for s in done(): a(s)
    def kgen_hi(self):
        a = self.a; P = self.V_PAR
        W = [64, 66]; R1 = [68, 70]; R256 = [76, 78]; pp = [[80, 82], [84, 86]]
        for k in range(2):
            u = 80 + 6*k
            for i in range(2, 6):
                a(f"v_lshlrev_b32 v{u+i}, 16, v{P+i}" if k == 0 else f"v_and_b32 v{u+i}, 0xffff0000, v{P+i}")
            a(f"""v_mul_f32 v{u+2}, v2, v{u+2}
v_mul_f32 v{u+3}, v2, v{u+3}
v_mul_f32 v{W[k]}, v{u+4}, v{u+2}
v_mul_f32 v{W[k]+1}, v{u+4}, v{u+3}
v_fma_f32 v{W[k]}, -v{u+5}, v{u+3}, v{W[k]}
v_fma_f32 v{W[k]+1}, v{u+5}, v{u+2}, v{W[k]+1}""")
        self.rho(1, R1, "")
        self.rho(256, R256, "")
        first, chain, done = self.chain_runner()
        keep = {0: W, 2: [104, 106], 4: [108, 110], 6: [112, 114]}
        first(0, W); cur = W
        for j in range(1, 8):
            nxt = keep.get(j, pp[(j // 2) % 2])
            chain(nxt, cur, R1, j); cur = nxt
        A0 = [116, 118]; A4 = [120, 122]; B0 = [124, 126]; B4 = [128, 130]
        for dst, src, row in ((A0, keep[0], 8), (A4, keep[4], 12), (pp[0], keep[2], 9), (pp[1], keep[6], 13),
                              (B0, A0, 10), (B4, A4, 14), (A0, B0, 11), (A4, B4, 15),
                              (B0, A0, 16), (A0, B0, 17), (B0, A0, 18), (A0, B0, 20), (B0, A0, 21)):
            chain(dst, src, R256, row)
        for s in done(): a(s)

    def kgen_contract(self):
        a = self.a
        ACC = 64; F = 96
        def rd(s):
            b = F + 8 * (s % 7)
            return [f"ds_read_b128 v[{b}:{b+3}], v10 offset:{32*s}", f"ds_read_b128 v[{b+4}:{b+7}], v10 offset:{22*EP + 32*s}"]
        for s in range(7):
            for x in rd(s): a(x)
        for s in range(16):
            b = F + 8 * (s % 7)
            a(f"v_mfma_f32_32x32x16_bf16 v[{ACC}:{ACC+15}], v[{b}:{b+3}], v[{b+4}:{b+7}], v[{ACC}:{ACC+15}]")
            if s + 7 < 16:
                for x in rd(s + 7): a(x)
        for i, row in enumerate((0, 1, 2, 3, 8, 10, 16, 24)):
            a(f"ds_write_b32 v11, v{ACC+i} offset:{L_T + row*256}")
        for i, row in enumerate((32, 40, 48)):
            a(f"ds_write_b32 v12, v{ACC+8+i} offset:{L_T + row*256}")
    def kgen_contract_pre(self):
        a = self.a; ACC = 64
        a(f"""v_and_b32 v2, 31, v1
v_mul_u32_u24 v10, {EP}, v2
v_lshrrev_b32 v3, 5, v1
v_lshl_add_u32 v10, v3, 4, v10
v_add_u32 v10, s68, v10
s_lshr_b32 s12, s{S_W3}, 1
s_mul_i32 s12, s12, {TP}
s_and_b32 s13, s{S_W3}, 1
s_lshl_b32 s13, s13, 2
s_add_u32 s12, s12, s13
v_lshl_add_u32 v2, v2, 3, s12
v_mul_u32_u24 v12, {24*256}, v3
v_add_u32 v12, v12, v2
v_lshl_add_u32 v11, v3, 10, v2
v_mov_b32 v3, s65
v_cmp_eq_u32 vcc, 0, v1""")
        for i in range(1, 16): a(f"v_mov_b32 v{ACC+i}, 0")
        a(f"v_cndmask_b32 v{ACC}, v{ACC+1}, v3, vcc")

    def expand(self):
        a = self.a; G = 64; O = 96
        for m in range(11):
            a(f"ds_read_b64 v[{G+2*m}:{G+2*m+1}], v{self.V_GA+m} offset:{L_T}")
        a(f"""s_lshr_b32 s12, s{S_WAVE}, 2
s_mul_i32 s12, s12, {4*CP}
s_add_u32 s12, s12, {L_E}
v_and_b32 v10, 255, v0
v_lshl_add_u32 v10, v10, 4, s12
v_lshrrev_b32 v11, 1, v0
v_mul_u32_u24 v11, {CP}, v11
v_and_b32 v12, 1, v0
v_lshl_add_u32 v11, v12, 4, v11
v_mov_b32 v60, 0
v_mov_b32 v61, 0
v_mov_b32 v62, 0
v_mov_b32 v63, 0
v_cmp_gt_u32 vcc, 16, v0
s_and_saveexec_b64 s[12:13], vcc
ds_write_b128 v11, v[60:63] offset:{L_E + 4096}
s_mov_b64 exec, s[12:13]""")
        for m in range(11):
            a(f"v_add_f32 v{G+2*m}, v{G+2*m}, v{G+2*m+1}")
        for c in range(4):
            o = O + 4*c
            for k in range(4):
                m = c + 2*k
                a(f"v_cvt_pk_bf16_f32 v{o+k}, v{G+2*m}, v{G+2*(m+1)}")
            a(f"ds_write_b128 v10, v[{o}:{o+3}] offset:{c*CP}")

    V_XG = 136
    V_SG = 152
    V_MG = 168
    def handoff1_loads(self):
        L = []
        for r in range(2):
            for h in range(2):
                L.append(f"buffer_load_dwordx4 v[{self.V_XG+8*r+4*h}:{self.V_XG+8*r+4*h+3}], v{180+r}, {WS}, s69 offen offset:{16*h} sc1")
        for r in range(2):
            for h in range(2):
                L.append(f"buffer_load_dwordx4 v[{self.V_SG+8*r+4*h}:{self.V_SG+8*r+4*h+3}], v{182+r}, {WS}, 0 offen offset:{16*h} sc1")
        for i in range(2):
            L.append(f"buffer_load_dwordx4 v[{self.V_MG+4*i}:{self.V_MG+4*i+3}], v184, {WS}, 0 offen offset:{448*8*i} sc1")
        return L
    def handoff1_issue(self):
        a = self.a
        a(f"""v_and_b32 v186, 255, v0
v_lshrrev_b32 v180, 1, v186
v_mul_u32_u24 v180, 14336, v180
v_and_b32 v181, 1, v0
v_lshl_add_u32 v180, v181, 5, v180
v_add_u32 v181, {128*14336}, v180
s_lshl_b32 s69, s{S_PAIR}, 6
s_add_u32 s69, s69, {XG}
v_lshlrev_b32 v182, 5, v186
v_add_u32 v182, {STAT}, v182
v_add_u32 v183, 8192, v182
s_lshl_b32 s12, s{S_PAIR}, 4
s_add_u32 s12, s12, {MODG}
v_mov_b32 v184, s12
v_add_u32 v185, {2*448*8}, v184""")
        for x in self.handoff1_loads(): a(x)

    V_XV = 120
    def make_h(self):
        a = self.a
        tags = [self.V_XG + 2*i + 1 for i in range(8)] + [self.V_SG + 2*i + 1 for i in range(8)] + [self.V_MG + 2*i + 1 for i in range(4)]
        self.poll(self.handoff1_loads(), tags, 60, list(range(64, 74)), issued=True)
        self.stamp("h1")
        a(f"buffer_load_dwordx4 v[{self.V_MG+8}:{self.V_MG+11}], v185, {WS}, 0 offen sc1")
        MS = 64; H = 80; XV = self.V_XV; MG = self.V_MG
        for i in range(8):
            g = self.V_SG + 2*i
            a(f"v_and_b32 v{MS+2*i+1}, 0xffff0000, v{g}\nv_lshlrev_b32 v{MS+2*i}, 16, v{g}\nv_rcp_f32 v{MS+2*i+1}, v{MS+2*i+1}")
        for i in range(8):
            g = self.V_XG + 2*i
            a(f"v_lshlrev_b32 v{XV+2*i}, 16, v{g}\nv_and_b32 v{XV+2*i+1}, 0xffff0000, v{g}")
        a(f"v_mov_b32 v60, v{MG}\nv_mov_b32 v61, v{MG+2}\nv_mov_b32 v62, v{MG+4}\nv_mov_b32 v63, v{MG+6}")
        for i in range(8):
            a(f"v_pk_add_f32 v[{H+2*i}:{H+2*i+1}], v[{XV+2*i}:{XV+2*i+1}], v[{MS+2*i}:{MS+2*i+1}] op_sel_hi:[1,0] neg_lo:[0,1] neg_hi:[0,1]")
        for i in range(8):
            x = f"v[{H+2*i}:{H+2*i+1}]"
            a(f"v_pk_mul_f32 {x}, {x}, v[{MS+2*i}:{MS+2*i+1}] op_sel:[0,1] op_sel_hi:[1,1]")
        for i in range(8):
            x = f"v[{H+2*i}:{H+2*i+1}]"
            a(f"v_pk_fma_f32 {x}, {x}, v[62:63], v[60:61]")
        a(f"v_lshlrev_b32 v10, 3, v186")
        for r in range(2):
            for ch in range(2):
                o = 64 + 4*r + 2*ch; b = H + 8*r + ch
                a(f"v_cvt_pk_bf16_f32 v{o}, v{b}, v{b+2}\nv_cvt_pk_bf16_f32 v{o+1}, v{b+4}, v{b+6}")
                a(f"ds_write_b64 v10, v[{o}:{o+1}] offset:{L_H + ch*HP + 480 + 2048*r}")

    def conv_pre(self):
        a = self.a
        a(f"""s_lshr_b32 s12, s{S_W3}, 1
s_and_b32 s14, s{S_W3}, 1
s_lshl_b32 s15, s14, 8
s_mul_i32 s13, s12, {4*CP}
s_add_u32 s13, s13, s15
s_add_u32 s13, s13, {L_E + 2*(1804 - 1792)}
v_and_b32 v2, 3, v1
v_sub_u32 v2, 3, v2
v_mul_u32_u24 v2, {CP}, v2
v_lshrrev_b32 v3, 4, v1
v_bfe_u32 v4, v1, 2, 2
v_lshlrev_b32 v5, 1, v3
v_sub_u32 v4, v5, v4
v_lshlrev_b32 v4, 3, v4
v_add3_u32 v10, v2, v4, s13
s_mul_i32 s13, s12, {HP}
s_add_u32 s13, s13, s15
s_add_u32 s13, s13, {L_H}
v_and_b32 v2, 15, v1
v_lshlrev_b32 v4, 5, v2
v_lshl_add_u32 v4, v3, 4, v4
v_add_u32 v11, s13, v4
v_bfe_u32 v4, v1, 1, 2
v_xor_b32 v4, v4, v3
v_lshl_add_u32 v4, v2, 2, v4
v_lshlrev_b32 v4, 4, v4
s_lshl_b32 s13, s{S_W3}, 13
s_add_u32 s13, s13, {L_Y}
v_add_u32 v12, s13, v4""")
    def conv_main(self):
        a = self.a
        ACC = 16; F = 64
        def fa(s, j): return F + 64 * (s % 2) + 4 * j
        def fb(s, p): return F + 64 * (s % 2) + 32 + 4 * p
        def reads(s):
            out = []
            for k in range(8):
                out.append(f"ds_read_b64 v[{fa(s,k)}:{fa(s,k)+1}], v10 offset:{512*(7-k) + 64*s}")
                out.append(f"ds_read_b64 v[{fa(s,k)+2}:{fa(s,k)+3}], v10 offset:{512*(7-k) + 64*s + 8}")
                out.append(f"ds_read_b128 v[{fb(s,k)}:{fb(s,k)+3}], v11 offset:{512*k + 64*s}")
            return out
        for x in reads(0): a(x)
        for s in range(4):
            if s < 3: trip = sorted([(max(j, Q - j), Q, j) for Q in range(8) for j in range(Q + 1)])
            else: trip = [(0, Q, j) for Q in range(8) for j in range(Q + 1)]
            seen = set(); mf = []
            for _, Q, j in trip:
                d = f"v[{ACC+4*Q}:{ACC+4*Q+3}]"
                c = "0" if (s == 0 and Q not in seen) else d
                seen.add(Q)
                mf.append(f"v_mfma_f32_16x16x32_bf16 {d}, v[{fa(s,j)}:{fa(s,j)+3}], v[{fb(s,Q-j)}:{fb(s,Q-j)+3}], {c}")
            if s < 3: seq = merge(mf, reads(s + 1))
            else:
                seq = []; k = 0
                wr = lambda Q: f"ds_write_b128 v12, v[{ACC+4*Q}:{ACC+4*Q+3}] offset:{1024*Q}"
                at = {12: 0, 15: 1, 18: 2, 21: 3, 24: 4, 29: 5}
                for i, x in enumerate(mf):
                    seq.append(x)
                    if i in at: seq.append(wr(at[i]))
                seq += [wr(6), wr(7)]
            for x in seq: a(x)

    def conv_epilogue_pre(self):
        a = self.a; GAg = self.V_MG + 8
        self.poll([f"buffer_load_dwordx4 v[{GAg}:{GAg+3}], v185, {WS}, 0 offen sc1"], [GAg+1, GAg+3], 60, [61], issued=True)
        a(f"""v_bfe_u32 v2, v1, 3, 2
v_xor_b32 v2, v2, v186
v_lshlrev_b32 v2, 4, v2
v_add_u32 v2, {L_Y}, v2
s_mul_i32 s12, s{S_W3}, {224*1024}
s_lshl_b32 s13, s{S_PAIR}, 10
s_add_u32 s12, s12, s13
s_add_u32 s70, s12, {X2}
s_add_u32 s71, s70, {4*224*1024}
v_lshlrev_b32 v3, 4, v1
s_lshl_b32 s12, s{S_W3}, 8
s_add_u32 s12, s12, s{S_PAIR}
s_lshl_b32 s12, s12, 6
s_add_u32 s72, s12, {FLG2}""")
    def conv_epilogue(self):
        a = self.a; GAg = self.V_MG + 8; XV = self.V_XV; Y = 64
        for r in range(2):
            for ch in range(2):
                for kh in range(2):
                    b = Y + 16*r + 8*ch + 4*kh
                    a(f"ds_read_b128 v[{b}:{b+3}], v2 offset:{16384*ch + 8192*kh + 4096*r}")
        for r in range(2):
            for ch in range(2):
                for e in range(4):
                    b = Y + 16*r + 8*ch + e
                    a(f"v_add_f32 v{b}, v{b}, v{b+4}\nv_fmac_f32 v{XV+2*(4*r+e)+ch}, v{GAg+2*ch}, v{b}")
            for e in range(4):
                i = 4*r + e
                a(f"v_cvt_pk_bf16_f32 v{96+i}, v{XV+2*i}, v{XV+2*i+1}")
            a(f"buffer_store_dwordx4 v[{96+4*r}:{99+4*r}], v3, {WS}, s{70+r} offen sc1")
    def flag_store(self, sreg):
        a = self.a
        a(f"v_mov_b32 v8, s{S_NONCE}\nv_mov_b32 v7, 0")
        a(f"s_mov_b64 exec, 1\nbuffer_store_dword v8, v7, {WS}, s{sreg} offen sc1\ns_mov_b64 exec, -1")

    V_WR = 192
    def w13_loads(self):
        a = self.a
        a(f"s_cmp_ge_u32 s{S_WAVE}, 4")
        self.srd_sel(R_A, P_WU, P_WG, 448 * 3584)
        a(f"""v_lshrrev_b32 v248, 3, v1
v_mul_u32_u24 v249, {14*3584}, v248
v_and_b32 v250, 7, v1
v_lshl_add_u32 v249, v250, 4, v249
s_mul_i32 s12, s{S_W3}, {112*3584}
s_lshl_b32 s13, s{S_FC}, 7
s_add_u32 s12, s12, s13""")
        for i in range(14):
            if i and i % 2 == 0: a(f"s_add_u32 s12, s12, {2*3584}")
            a(f"buffer_load_dwordx4 v[{self.V_WR+4*i}:{self.V_WR+4*i+3}], v249, {RA}, s12 offen offset:{3584*(i%2)}")
    V_SV = 16
    def s_loads(self):
        return [f"buffer_load_dwordx4 v[{self.V_SV+4*j}:{self.V_SV+4*j+3}], v251, {WS}, s73 offen offset:{16*j} sc1" for j in range(7)]
    def s_issue(self):
        a = self.a
        a(f"""v_mul_u32_u24 v251, 112, v248
s_mul_i32 s73, s{S_W3}, 896
s_add_u32 s73, s73, {MODG + 4*448*8}""")
        for x in self.s_loads(): a(x)
    def w13_stage(self):
        a = self.a; SV = self.V_SV
        self.poll(self.s_loads(), [SV + 2*i + 1 for i in range(14)], 60, list(range(64, 71)), issued=True)
        a(f"""s_lshr_b32 s12, s{S_WAVE}, 2
s_mul_i32 s13, s12, {WM}
s_mul_i32 s14, s{S_W3}, {112*128}
s_add_u32 s13, s13, s14
s_add_u32 s13, s13, {L_W}
s_lshl_b32 s12, s12, 2
v_and_b32 v60, 1, v248
v_lshlrev_b32 v60, 1, v60
v_xor_b32 v60, v60, v250
v_xor_b32 v60, s12, v60
v_mul_u32_u24 v61, {14*128}, v248
v_lshl_add_u32 v60, v60, 4, v61
v_add_u32 v60, s13, v60
v_xor_b32 v61, 32, v60""")
        for i in range(14):
            w = self.V_WR + 4*i; s = SV + 2*i; t = 64 + 8*(i % 2); o = 80 + 4*(i % 2)
            a(f"v_lshrrev_b32 v{s+1}, 16, v{s}")
            for e in range(4):
                a(f"v_dot2_f32_bf16 v{t+2*e}, v{w+e}, v{s+1}, 0")
                a(f"v_dot2_f32_bf16 v{t+2*e+1}, v{w+e}, v{s}, 0")
            for e in range(4):
                a(f"v_cvt_pk_bf16_f32 v{o+e}, v{t+2*e}, v{t+2*e+1}")
            a(f"ds_write_b128 v{60 + (i//2) % 2}, v[{o}:{o+3}] offset:{128*i}")

    def barrier2(self):
        a = self.a
        sk = self.lab("nopoll")
        a(f"s_cmp_ge_u32 s{S_WAVE}, 4\ns_cbranch_scc1 {sk}")
        st = a.state()
        a(f"""s_and_b32 s12, s{S_RB}, 3
s_lshl_b32 s12, s12, 14
s_add_u32 s12, s12, {FLG2}
v_lshlrev_b32 v62, 6, v0""")
        self.poll([f"buffer_load_dword v63, v62, {WS}, s12 offen sc1"], [63], 60, [])
        a.label(sk); a.set_state(st); a.win = []
        self.barrier()

    V_B = 80
    def gemm1(self):
        a = self.a; B = self.V_B
        ACC = 16; AF = 48; NA = 3
        AUG = 72
        a(f"""v_and_b32 v2, 31, v1
v_lshrrev_b32 v3, 5, v1
v_lshlrev_b32 v4, 2, v2
v_lshl_add_u32 v4, v3, 12, v4
s_mul_i32 s12, s{S_RB}, {224*1024}
s_lshl_b32 s13, s{S_WAVE}, 7
s_add_u32 s12, s12, s13
s_add_u32 s70, s12, {X2}
v_bfe_u32 v5, v1, 4, 1
v_bfe_u32 v6, v1, 2, 2
v_lshl_add_u32 v8, v3, 3, v6
v_lshlrev_b32 v8, 7, v8
v_mul_u32_u24 v9, {WM}, v5
v_add_u32 v8, v8, v9
v_lshrrev_b32 v6, 1, v6
v_lshl_add_u32 v6, v5, 1, v6
v_lshl_add_u32 v8, v6, 5, v8
v_and_b32 v6, 3, v1
v_lshl_add_u32 v10, v6, 3, v8
v_add_u32 v10, {L_W}, v10
v_xor_b32 v11, 32, v10
v_lshlrev_b32 v12, 3, v2
s_lshl_b32 s71, s{S_FC}, 10
s_add_u32 s71, s71, {CAUG}
s_lshl_b32 s12, s{S_RB}, 3
s_add_u32 s12, s12, s{S_WAVE}
s_mul_i32 s13, s12, 28
s_add_u32 s13, s13, s{S_FC}
s_lshl_b32 s72, s13, 12
s_add_u32 s72, s72, {ACT}
s_lshl_b32 s73, s13, 6
s_add_u32 s73, s73, {FLG3}
v_lshlrev_b32 v13, 4, v1""")
        for t in range(2):
            a(f"v_mov_b32 v{AUG+4*t+2}, 0\nv_mov_b32 v{AUG+4*t+3}, 0")
        def xl(s):
            L = [f"buffer_load_dword v{B+4*s+e}, v4, {WS}, s70 offen offset:{1024*e} sc1" for e in range(4)]
            return L + [f"s_add_u32 s70, s70, 8192"]
        def ard(s):
            b = AF + 8 * (s % NA)
            return [f"ds_read_b64_tr_b16 v[{b+4*t+2*h}:{b+4*t+2*h+1}], v{10+t} offset:{2048*s + 512*h}" for t in range(2) for h in range(2)]
        def cond_barrier(first_group):
            sk = self.lab("cb")
            a(f"s_cmp_ge_u32 s{S_WAVE}, 4\n" + ("s_cbranch_scc1" if first_group else "s_cbranch_scc0") + f" {sk}\ns_barrier")
            a.label(sk)
        NPRE = 14
        for p in range(2):
            if p == 0:
                cond_barrier(False)
                for s in range(NPRE):
                    for x in xl(s): a(x)
            for t in range(2):
                a(f"buffer_load_dwordx2 v[{AUG+4*t}:{AUG+4*t+1}], v12, {WS}, s71 offen offset:{512*p + 256*t} sc1")
            for s in range(NA - 1):
                for x in ard(s): a(x)
            for s in range(28):
                b = AF + 8 * (s % NA)
                nxt = ard(s + NA - 1) if s + NA - 1 < 28 else []
                ld = xl(s + NPRE) if (p == 0 and s + NPRE < 28) else []
                for t in range(2):
                    d = f"v[{ACC+16*t}:{ACC+16*t+15}]"
                    for x in nxt[2*t:2*t+2]: a(x)
                    a(f"v_mfma_f32_32x32x16_bf16 {d}, v[{b+4*t}:{b+4*t+3}], v[{B+4*s}:{B+4*s+3}], {'0' if s == 0 else d}")
                    for x in (ld[:2] if t == 0 else ld[2:]): a(x)
                if p == 0 and s + NPRE == 27: cond_barrier(True)
            if p == 0:
                self.stamp("g1p0")
                a("v_xor_b32 v10, 64, v10\nv_xor_b32 v11, 64, v11\ns_mov_b32 s12, 0x3f803f80")
                for k in range(112):
                    j = k % 2
                    if k < 2: a(f"v_dot2_f32_bf16 v{48+j}, v{B+k}, s12, 0\nv_dot2_f32_bf16 v{50+j}, v{B+k}, v{B+k}, 0")
                    else: a(f"v_dot2c_f32_bf16 v{48+j}, s12, v{B+k}\nv_dot2c_f32_bf16 v{50+j}, v{B+k}, v{B+k}")
                a("""v_add_f32 v48, v48, v49
v_add_f32 v50, v50, v51
v_mov_b32 v49, v48
v_mov_b32 v51, v50
v_permlane32_swap_b32 v48, v49
v_permlane32_swap_b32 v50, v51
v_add_f32 v48, v48, v49
v_add_f32 v50, v50, v51""")
                self.ln_finish(48, 50, 52)
                a(f"""v_cvt_pk_bf16_f32 v4, -v48, -v48
v_cvt_pk_bf16_f32 v5, v50, v50
v_mov_b32 v6, 0
v_mov_b32 v7, 0
v_and_b32 v50, 0xffff0000, v5
v_rcp_f32 v50, v50
v_cmp_gt_u32 vcc, 32, v1
v_mul_f32 v14, {f32(-LOG2E)}, v50
v_mul_f32 v15, v50, v50
v_cndmask_b32 v4, 0, v4, vcc
v_cndmask_b32 v5, 0, v5, vcc""")
            for t in range(2):
                d = f"v[{ACC+16*t}:{ACC+16*t+15}]"
                a(f"v_mfma_f32_32x32x16_bf16 {d}, v[{AUG+4*t}:{AUG+4*t+3}], v[4:7], {d}")
            for t in range(2):
                g = ACC + 16*t; T = 48; O = 56 + 4*t
                for i in range(8): a(f"v_mul_f32 v{T+i}, v14, v{g+i}")
                for i in range(8): a(f"v_exp_f32 v{T+i}, v{T+i}\nv_mul_f32 v{g+i}, v{g+i}, v{g+8+i}")
                for i in range(8): a(f"v_add_f32 v{T+i}, 1.0, v{T+i}")
                for i in range(8): a(f"v_rcp_f32 v{T+i}, v{T+i}\nv_mul_f32 v{g+i}, v15, v{g+i}")
                for i in range(8): a(f"v_mul_f32 v{g+i}, v{g+i}, v{T+i}")
                for i in range(4): a(f"v_cvt_pk_bf16_f32 v{O+i}, v{g+2*i}, v{g+2*i+1}")
                a(f"buffer_store_dwordx4 v[{O}:{O+3}], v13, {WS}, s72 offen offset:{2048*p + 1024*t} sc1")
            self.stamp("g1e0" if p == 0 else "g1e1")
        a.wait(vm=0)
        self.flag_store(73)

    def gemm2(self):
        a = self.a
        WD = 144; ACC = 16; AB = 80; NB = 6; PF = 128
        self.srd(R_A, P_WD, 1792 * 896)
        a(f"""s_lshl_b32 s64, s{S_XCD}, 2
s_and_b32 s12, s{S_SLOT}, 3
s_add_u32 s64, s64, s12
s_lshr_b32 s65, s{S_SLOT}, 2
v_and_b32 v2, 31, v1
v_lshrrev_b32 v3, 5, v1
v_mul_u32_u24 v4, {4*896}, v3
v_lshl_add_u32 v4, v2, 2, v4
v_add_u32 v5, {8*896}, v4
s_mul_i32 s12, s{S_WAVE}, {14*16*896}
s_lshl_b32 s13, s65, 7
s_add_u32 s12, s12, s13""")
        for m in range(14):
            for i in range(8):
                a(f"buffer_load_dword v{WD+8*m+i}, v{4 + i//4}, {RA}, s12 offen offset:{896*(i%4)}")
            if m < 13: a(f"s_add_u32 s12, s12, {16*896}")
        a(f"""v_min_u32 v6, 55, v1
v_lshlrev_b32 v6, 6, v6
s_mul_i32 s12, s64, {56*64}
s_add_u32 s12, s12, {FLG3}""")
        self.poll([f"buffer_load_dword v8, v6, {WS}, s12 offen sc1"], [8], 9, [])
        self.stamp("h3")
        a(f"""s_mul_i32 s70, s64, {2*112*1024}
s_mul_i32 s12, s{S_WAVE}, {14*1024}
s_add_u32 s70, s70, s12
s_add_u32 s70, s70, {ACT}
v_lshlrev_b32 v10, 4, v1
v_add_u32 v11, {112*1024}, v10
s_mov_b32 s68, 0x05040100
s_mov_b32 s69, 0x07060302""")
        def bl(m):
            b = AB + 8 * (m % NB)
            L = [f"buffer_load_dwordx4 v[{b+4*g}:{b+4*g+3}], v{10+g}, {WS}, s70 offen offset:{1024*(m%4)} sc1" for g in range(2)]
            if m % 4 == 3: L.append("s_add_u32 s70, s70, 4096")
            return L
        def perms(m):
            o = PF + 8 * (m % 2); w = WD + 8*m
            return [f"v_perm_b32 v{o+4*par+k}, v{w+2*k+1}, v{w+2*k}, s{68+par}" for par in range(2) for k in range(4)]
        for m in range(NB):
            for x in bl(m): a(x)
        for x in perms(0): a(x)
        for m in range(14):
            o = PF + 8 * (m % 2); b = AB + 8 * (m % NB)
            mf = []
            for g in range(2):
                for par in range(2):
                    d = f"v[{ACC+32*g+16*par}:{ACC+32*g+16*par+15}]"
                    mf.append(f"v_mfma_f32_32x32x16_bf16 {d}, v[{o+4*par}:{o+4*par+3}], v[{b+4*g}:{b+4*g+3}], {'0' if m == 0 else d}")
            for x in merge(mf, perms(m + 1) if m < 13 else []): a(x)
            if m + NB < 14:
                for x in bl(m + NB): a(x)
        self.stamp("g2")
        XR = 144; GB = 148
        a(f"""s_lshr_b32 s12, s64, 2
s_mul_i32 s12, s12, {224*1024}
s_lshl_b32 s13, s65, 15
s_add_u32 s12, s12, s13
s_lshl_b32 s13, s{S_W3}, 13
s_add_u32 s12, s12, s13
s_and_b32 s13, s64, 3
s_lshl_b32 s13, s13, 8
s_add_u32 s12, s12, s13
s_lshr_b32 s13, s{S_WAVE}, 2
s_lshl_b32 s13, s13, 7
s_add_u32 s12, s12, s13
s_add_u32 s12, s12, {X2}
v_lshlrev_b32 v4, 2, v2
v_lshl_add_u32 v4, v3, 12, v4""")
        for e in range(4):
            a(f"buffer_load_dword v{XR+e}, v4, {WS}, s12 offen offset:{1024*e} sc1")
        a(f"""s_lshl_b32 s12, s65, 9
s_lshl_b32 s13, s{S_W3}, 7
s_add_u32 s12, s12, s13
s_add_u32 s12, s12, {MODG + 5*448*8}
v_lshlrev_b32 v5, 6, v3""")
        for e in range(4):
            a(f"buffer_load_dwordx4 v[{GB+4*e}:{GB+4*e+3}], v5, {WS}, s12 offen offset:{16*e} sc1")
        a(f"""s_lshl_b32 s12, s{S_WAVE}, 14
v_add_u32 v6, s12, v10
s_lshl_b32 s12, s{S_WAVE}, 11
v_add_u32 v8, s12, v10
v_add_u32 v9, 65536, v8
s_barrier""")
        for g in range(2):
            for G in range(4):
                for par in range(2):
                    b = ACC + 32*g + 16*par + 4*G
                    a(f"ds_write_b128 v6, v[{b}:{b+3}] offset:{(g*4 + G)*2048 + par*1024}")
        self.barrier()
        R = 16
        for src in range(8):
            for par in range(2):
                b = R + 8*src + 4*par
                a(f"ds_read_b128 v[{b}:{b+3}], v{8 + src//4} offset:{(src % 4)*16384 + par*1024}")
        self.srd(R_B, P_OUT, 2048 * 896)
        a(f"""s_lshl_b32 s12, s64, 1
s_lshr_b32 s13, s{S_WAVE}, 2
s_add_u32 s12, s12, s13
s_mul_i32 s12, s12, {32*896}
s_lshl_b32 s13, s65, 7
s_add_u32 s12, s12, s13
s_lshl_b32 s13, s{S_W3}, 5
s_add_u32 s12, s12, s13
v_mul_u32_u24 v4, 896, v2
v_lshl_add_u32 v4, v3, 4, v4""")
        for n in (4, 2, 1):
            for src in range(n):
                for k in range(8):
                    a(f"v_add_f32 v{R+8*src+k}, v{R+8*src+k}, v{R+8*(src+n)+k}")
        for e in range(4):
            a(f"""v_lshlrev_b32 v{32+2*e}, 16, v{XR+e}
v_and_b32 v{33+2*e}, 0xffff0000, v{XR+e}
v_fmac_f32 v{32+2*e}, v{GB+4*e}, v{R+e}
v_fmac_f32 v{33+2*e}, v{GB+4*e+2}, v{R+4+e}""")
        for e in range(4):
            a(f"v_cvt_pk_bf16_f32 v{40+e}, v{32+2*e}, v{33+2*e}")
        a(f"buffer_store_dwordx4 v[40:43], v4, {RB}, s12 offen")

    def gemv_loads(self, W, srd, pitch, sbase):
        a = self.a
        for i in range(14):
            if i: a(f"s_add_u32 s{sbase}, s{sbase}, {pitch}")
            a(f"buffer_load_dwordx4 v[{W+4*i}:{W+4*i+3}], v10, s[{srd}:{srd+3}], s{sbase} offen")
    def gemv_block(self, W, vecs, accs, res):
        a = self.a
        a("s_mov_b32 s12, 0x05040100\ns_mov_b32 s13, 0x07060302")
        for j in range(7):
            for e in range(4):
                w0 = W + 8*j + e; w1 = w0 + 4; t = 28 + 2*(e % 2)
                a(f"v_perm_b32 v{t}, v{w1}, v{w0}, s12\nv_perm_b32 v{t+1}, v{w1}, v{w0}, s13")
                for vb, ac in zip(vecs, accs):
                    for h in range(2):
                        c = "0" if j == 0 else f"v{ac+2*e+h}"
                        a(f"v_dot2_f32_bf16 v{ac+2*e+h}, v{t+h}, v{vb+j}, {c}")
        for ac in accs:
            for e in range(8):
                a(f"v_add_f32_dpp v{ac+e}, v{ac+e}, v{ac+e} row_ror:8 row_mask:0xf bank_mask:0xf")
        a(f"""s_lshr_b32 s12, s{S_WAVE}, 2
s_lshl_b32 s12, s12, 13
v_bfe_u32 v28, v0, 4, 4
v_lshlrev_b32 v28, 8, v28
v_and_b32 v29, 7, v0
v_lshl_add_u32 v28, v29, 5, v28
v_add_u32 v28, s12, v28
s_barrier""")
        for vi, ac in enumerate(accs):
            a(f"ds_write_b128 v28, v[{ac}:{ac+3}] offset:{4096*vi}\nds_write_b128 v28, v[{ac+4}:{ac+7}] offset:{4096*vi+16}")
        self.barrier()
        a("v_lshl_add_u32 v28, v1, 2, s12")
        for vi, r in enumerate(res):
            T = W
            for k in range(8):
                a(f"ds_read2_b32 v[{T+2*k}:{T+2*k+1}], v28 offset0:{(2*k)*64 % 256} offset1:{(2*k+1)*64 % 256}")
                if k % 2 == 1: a(f"v_add_u32 v28, 1024, v28")
            n = 16
            while n > 1:
                n //= 2
                for k in range(n):
                    d = r if n == 1 else T + k
                    a(f"v_add_f32 v{d}, v{T+k}, v{T+k+n}")

    def spare_early(self):
        a = self.a
        a(f"""s_lshl_b32 s67, s{S_XCD}, 2
s_add_u32 s67, s67, s{S_SLOT}
s_sub_u32 s67, s67, 28
s_lshr_b32 s12, s{S_WAVE}, 2
s_lshl_b32 s12, s12, 5
s_add_u32 s68, s67, s12
v_bfe_u32 v36, v0, 3, 5
v_mul_u32_u24 v37, 28, v36""")
        self.srd(R_A, P_C, 896)
        for j in range(7):
            a(f"buffer_load_dword v{40+j}, v37, {RA}, 0 offen offset:{4*j}")
        a(f"""s_add_u32 s14, s68, 32
s_sub_u32 s15, s68, 10
s_cmp_lt_u32 s68, 10
s_cselect_b32 s14, s14, s15
s_mul_i32 s12, s14, 37
s_lshr_b32 s12, s12, 8
s_mul_i32 s13, s12, 7
s_sub_u32 s13, s14, s13
s_lshl_b32 s12, s12, 2
s_lshr_b32 s12, 0x523410, s12
s_and_b32 s65, s12, 15
s_mul_i32 s64, s65, 7
s_add_u32 s64, s64, s13
s_lshl_b32 s69, s64, 7
s_cmp_lt_u32 s68, 42
s_cselect_b32 s12, 0, {OOB}
v_mul_u32_u24 v10, {14*5376}, v36
v_and_b32 v11, 7, v0
v_lshl_add_u32 v10, v11, 4, v10
v_or_b32 v10, s12, v10""")
        self.srd(R_B, P_WM, 448 * 5376)
        self.gemv_loads(64, R_B, 5376, 69)
    def spare_main(self):
        a = self.a
        a(f"""s_sub_u32 s12, s68, 28
s_cmp_ge_u32 s68, 28
s_cselect_b32 s70, s12, s68
s_cselect_b32 s71, 1, 0""")
        self.srd_sel(R_A, P_WU, P_WG, 448 * 3584)
        a(f"""s_lshl_b32 s69, s70, 7
s_cmp_lt_u32 s68, 56
s_cselect_b32 s12, 0, {OOB}
v_mul_u32_u24 v10, {14*3584}, v36
v_and_b32 v11, 7, v0
v_lshl_add_u32 v10, v11, 4, v10
v_or_b32 v10, s12, v10""")
        self.gemv_loads(128, R_A, 3584, 69)
        for j in range(7):
            a(f"""v_lshlrev_b32 v28, 16, v{40+j}
v_and_b32 v29, 0xffff0000, v{40+j}
v_mul_f32 v30, {f32(-LOG2E)}, v28
v_mul_f32 v31, {f32(-LOG2E)}, v29
v_exp_f32 v30, v30
v_exp_f32 v31, v31
v_add_f32 v30, 1.0, v30
v_add_f32 v31, 1.0, v31
v_rcp_f32 v30, v30
v_rcp_f32 v31, v31
v_mul_f32 v28, v28, v30
v_mul_f32 v29, v29, v31
v_cvt_pk_bf16_f32 v{40+j}, v28, v29""")
        self.gemv_block(64, [40], [48], [32])
        a(f"""s_cmp_eq_u32 s65, 1
s_cselect_b32 s12, 1.0, 0
s_cmp_eq_u32 s65, 4
s_cselect_b32 s12, 1.0, s12""")
        self.bf16r(32, 32)
        a("v_add_f32 v32, s12, v32")
        self.bf16r(32, 32)
        a(f"""v_mov_b32 v33, s{S_NONCE}
v_lshlrev_b32 v34, 3, v1
s_lshl_b32 s12, s64, 9
s_add_u32 s12, s12, {MODG}
s_cmp_lt_u32 s68, 42
s_cselect_b32 s13, 0, {OOB}
s_cmp_eq_u32 s{S_W3}, 0
s_cselect_b32 s13, s13, {OOB}
v_or_b32 v34, s13, v34
buffer_store_dwordx2 v[32:33], v34, {WS}, s12 offen sc1""")
        self.stamp("kgen")
        a(f"v_mul_u32_u24 v37, 112, v36\ns_mov_b32 s14, {MODG + 3*448*8}")
        loads = [f"buffer_load_dwordx4 v[{64+28*v+4*j}:{64+28*v+4*j+3}], v37, {WS}, s14 offen offset:{3584*v + 16*j} sc1" for v in range(2) for j in range(7)]
        self.poll(loads, [65 + 2*i for i in range(28)], 28, list(range(12, 26)))
        a("s_mov_b32 s13, 0x07060302")
        for v in range(2):
            for j in range(7):
                a(f"v_perm_b32 v{40+8*v+j}, v{64+28*v+4*j+2}, v{64+28*v+4*j}, s13")
        self.gemv_block(128, [48, 40], [64, 72], [32, 33])
        for k in range(2):
            self.bf16r(34, 32 + k)
            a(f"v_sub_f32 v35, v{32+k}, v34\nv_cvt_pk_bf16_f32 v{32+k}, v34, v35")
        a(f"""v_lshrrev_b32 v34, 4, v1
v_lshlrev_b32 v34, 8, v34
v_and_b32 v35, 15, v1
v_lshl_add_u32 v34, v35, 3, v34
s_lshl_b32 s12, s70, 10
s_lshl_b32 s13, s71, 7
s_add_u32 s12, s12, s13
s_add_u32 s12, s12, {CAUG}
s_cmp_lt_u32 s68, 56
s_cselect_b32 s13, 0, {OOB}
s_cmp_eq_u32 s{S_W3}, 0
s_cselect_b32 s13, s13, {OOB}
v_or_b32 v34, s13, v34
buffer_store_dwordx2 v[32:33], v34, {WS}, s12 offen sc1""")
        a.wait(vm=0)
        a(f"""s_barrier
s_lshl_b32 s12, s{S_W3}, 8
s_add_u32 s12, s12, s67
s_add_u32 s12, s12, 224
s_lshl_b32 s12, s12, 6
s_add_u32 s12, s12, {FLG2}""")
        self.flag_store(12)
        self.stamp("pubX2")

    def finish(self):
        a = self.a
        a.label("L_fin"); a.win = []
        if self.stamps:
            a.wait(vm=0)
            self.stamp("end")
            a(f"""s_lshl_b32 s12, s2, 3
s_add_u32 s12, s12, s{S_WAVE}
s_lshl_b32 s12, s12, 7
s_add_u32 s12, s12, {TS}
v_mov_b32 v2, 0
s_mov_b64 exec, 1""")
            for q in range(5):
                for i in range(4): a(f"v_mov_b32 v{4+4*q+i}, s{S_TS+4*q+i}")
                a(f"buffer_store_dwordx4 v[{4+4*q}:{7+4*q}], v2, {WS}, s12 offen offset:{16*q}")
        a.label("L_exit")
        a("s_endpgm")

    def build(self):
        a = self.a
        self.prologue()
        if self.stamps:
            for i in range(1, 20): a(f"s_mov_b32 s{S_TS+i}, 0")
        a(f"s_cmp_ge_u32 s{S_SLOT}, 28\ns_cbranch_scc1 L_spare")
        st_spare = a.state()
        self.conv_early()
        self.get_nonce()
        self.phase_a_publish()
        self.stamp("pubA")
        self.kgen_common()
        a(f"s_cmp_ge_u32 s{S_WAVE}, 4\ns_cbranch_scc1 L_grpB")
        stB = a.state()
        self.kgen_lo()
        self.kgen_contract_pre()
        self.stamp("chain")
        self.barrier()
        self.kgen_contract()
        self.w13_loads()
        self.stamp("kgen")
        self.barrier()
        self.expand()
        self.conv_pre()
        self.barrier()
        self.stamp("conv0")
        self.conv_main()
        self.barrier()
        self.stamp("conv1")
        self.s_issue()
        a("s_barrier")
        a("s_branch L_join")
        stA_end = a.state()
        a.label("L_grpB"); a.set_state(stB)
        self.kgen_hi()
        self.handoff1_issue()
        self.stamp("chain")
        self.barrier()
        self.make_h()
        self.stamp("kgen")
        self.barrier()
        self.expand()
        self.barrier()
        self.stamp("conv0")
        self.conv_epilogue_pre()
        self.w13_loads()
        self.s_issue()
        self.barrier()
        self.stamp("conv1")
        self.conv_epilogue()
        self.barrier()
        a.wait(vm=0)
        self.flag_store(72)
        self.stamp("pubX2")
        a.label("L_join"); a.set_state(stA_end); a.win = []
        self.w13_stage()
        self.stamp("staged")
        self.barrier2()
        self.stamp("h2")
        self.gemm1()
        self.stamp("pubAct")
        self.gemm2()
        a("s_branch L_fin")
        a.label("L_spare"); a.set_state(st_spare)
        self.spare_early()
        self.get_nonce()
        self.phase_a_publish()
        self.stamp("pubA")
        self.spare_main()
        self.finish()
        body = a.text()
        return f"""{HEADER}; @launch grid=(256,1,1) block=(512,1,1) lds={LDS_BYTES}
.amdgcn_target "amdgcn-amd-amdhsa--gfx950"
.text
.globl {KNAME}
.p2align 8
.type {KNAME},@function
{KNAME}:
{body}.section .rodata,"a"
.p2align 6
.amdhsa_kernel {KNAME}
  .amdhsa_next_free_vgpr 256
  .amdhsa_next_free_sgpr 102
  .amdhsa_accum_offset 256
  .amdhsa_group_segment_fixed_size 0
  .amdhsa_kernarg_size 144
  .amdhsa_user_sgpr_count 2
  .amdhsa_user_sgpr_kernarg_segment_ptr 1
  .amdhsa_system_sgpr_workgroup_id_x 1
.end_amdhsa_kernel
"""

if __name__ == "__main__":
    out = sys.argv[1]
    g = Gen(stamps="--stamps" in sys.argv)
    open(out, "w").write(g.build())
    if g.stamps: open(out + ".names", "w").write(repr(g.stamp_names))
    print("instructions", g.a.nins, "nop states", g.a.nops, "stamps", g.stamp_names)
```

```python
import sys, struct, math
from asmlib import *

KNAME = "adaLN_cond__ssm_conv_s4__swiglu_ffn__prompt_kernel"
HEADER = open("adaLN_cond__ssm_conv_s4__swiglu_ffn__prompt.s.ref").read().split("; Override launch")[0]

XG, STAT, MODG, FLG2, CAUG, FLG3, X2, ACT, TS = 0x0, 0x400000, 0x410000, 0x420000, 0x440000, 0x450000, 0x500000, 0x700000, 0xF00000
WS_BYTES = 0x1000000
OOB = 0x7fff0000
S_WAVE, S_XCD, S_SLOT, S_PAIR, S_NONCE, S_W3 = 4, 5, 6, 7, 8, 3
P_U, P_ARE, P_AIM, P_BRE, P_BIM, P_CRE, P_CIM, P_LDT, P_DSK, P_BX, P_WG, P_WU, P_WD, P_C, P_WM, P_OUT, P_DBG, P_WS = range(16, 52, 2)
R_WS, R_A, R_B = 52, 56, 60
S_RB, S_FC = 66, 67
S_TS = 76
SPIN = 20000
WS = f"s[{R_WS}:{R_WS+3}]"
RA = f"s[{R_A}:{R_A+3}]"
RB = f"s[{R_B}:{R_B+3}]"
TP = 73 * 256
L_T = 0
L_H = 2 * TP
HP = 4576
L_E = L_H + 2 * HP
EP = 528
EW = 54 * EP
CP = 4160
L_Y = L_E + 8 * CP
LDS_BYTES = 163840
assert L_E + 4 * EW <= LDS_BYTES and L_Y + 32768 <= LDS_BYTES
L_W = 0
WM = 448 * 128

def f32(x): return "0x%08x" % struct.unpack("<I", struct.pack("<f", x))[0]
LOG2E = 1.4426950408889634

class Gen:
    def __init__(self, stamps=False, probe=None):
        self.a = Asm(); self.stamps = stamps; self.uid = 0; self.probe = probe
        self.stamp_names = []
    def lab(self, n):
        self.uid += 1
        return f"L_{n}_{self.uid}"
    def srd(self, r, p, nbytes):
        self.a(f"s_mov_b32 s{r}, s{p}\ns_mov_b32 s{r+1}, s{p+1}\ns_mov_b32 s{r+2}, {nbytes}\ns_mov_b32 s{r+3}, 0x00020000")
    def srd_sel(self, r, p1, p0, nbytes):
        self.a(f"s_cselect_b32 s{r}, s{p1}, s{p0}\ns_cselect_b32 s{r+1}, s{p1+1}, s{p0+1}\ns_mov_b32 s{r+2}, {nbytes}\ns_mov_b32 s{r+3}, 0x00020000")
    def stamp(self, name):
        if not self.stamps: return
        a = self.a
        if name not in self.stamp_names: self.stamp_names.append(name)
        idx = self.stamp_names.index(name)
        assert idx < 20
        a.wait(lgkm=0)
        a("s_memrealtime s[14:15]")
        a(f"s_mov_b32 s{S_TS + idx}, s14")
    def barrier(self):
        self.a.wait(lgkm=0)
        self.a("s_barrier")
    def poll(self, loads, tags, dst, tmp, issued=False):
        a = self.a
        ok = self.lab("ok"); lp = self.lab("spin")
        if issued:
            self.tagcheck(dst, tags, tmp)
            a(f"v_cmp_ne_u32 vcc, 0, v{dst}\ns_cbranch_vccz {ok}")
        st = a.state()
        a(f"s_mov_b32 s9, {SPIN}")
        a.label(lp)
        for x in loads: a(x)
        self.tagcheck(dst, tags, tmp)
        a(f"""v_cmp_ne_u32 vcc, 0, v{dst}
s_cbranch_vccz {ok}
s_sub_u32 s9, s9, 1
s_cmp_lg_u32 s9, 0
s_cbranch_scc1 {lp}""")
        a.label(ok)
        if issued: a.set_state(st)
    def tagcheck(self, dst, tags, tmp):
        a = self.a; parts = []
        n = (len(tags) + 1) // 2
        for i in range(0, len(tags) - 1, 2):
            o = dst if n == 1 else tmp[i//2]
            a(f"v_bitop3_b32 v{o}, v{tags[i]}, v{tags[i+1]}, s{S_NONCE} bitop3:0x7e"); parts.append(o)
        if len(tags) % 2:
            o = dst if n == 1 else tmp[len(tags)//2]
            a(f"v_xor_b32 v{o}, s{S_NONCE}, v{tags[-1]}"); parts.append(o)
        while len(parts) > 1:
            if len(parts) >= 3:
                o = dst if len(parts) == 3 else parts[0]
                a(f"v_or3_b32 v{o}, v{parts[0]}, v{parts[1]}, v{parts[2]}"); parts = parts[3:] + [o]
            else:
                a(f"v_or_b32 v{dst}, v{parts[0]}, v{parts[1]}"); parts = [dst]
    def bf16r(self, d, s):
        self.a(f"v_cvt_pk_bf16_f32 v{d}, v{s}, v{s}\nv_and_b32 v{d}, 0xffff0000, v{d}")

    def prologue(self):
        a = self.a
        a(f"""s_cmp_ge_u32 s2, 256
s_cbranch_scc1 L_exit
s_load_dwordx16 s[16:31], s[0:1], 0
s_load_dwordx16 s[32:47], s[0:1], 64
s_load_dwordx4 s[48:51], s[0:1], 128
s_memrealtime s[10:11]
v_lshrrev_b32 v2, 6, v0
v_and_b32 v1, 63, v0
v_readfirstlane_b32 s{S_WAVE}, v2
s_and_b32 s{S_XCD}, s2, 7
s_lshr_b32 s{S_SLOT}, s2, 3
s_mul_i32 s{S_PAIR}, s{S_XCD}, 28
s_add_u32 s{S_PAIR}, s{S_PAIR}, s{S_SLOT}
s_and_b32 s{S_W3}, s{S_WAVE}, 3
v_mul_u32_u24 v4, 896, v2
v_lshl_add_u32 v4, v1, 4, v4
v_mov_b32 v5, {OOB}
v_cmp_gt_u32 vcc, 56, v1
s_mul_i32 s12, s2, {8*896}
v_cndmask_b32 v4, v5, v4, vcc
v_and_b32 v5, 3, v0
v_mul_u32_u24 v5, 1792, v5
v_and_b32 v6, 0x1fc, v0
v_add_u32 v5, v5, v6
v_mov_b32 v7, 0
""")
        a.wait(lgkm=0)
        if self.stamps:
            self.stamp_names = ["start"]
            a(f"s_mov_b32 s{S_TS}, s10")
        self.srd(R_B, P_DBG, 256)
        nn = self.lab("nononce")
        a(f"""s_or_b32 s13, s2, s{S_WAVE}
s_cmp_lg_u32 s13, 0
s_cbranch_scc1 {nn}
s_or_b32 s13, s10, 1
v_mov_b32 v8, s13
s_mov_b64 exec, 1
buffer_store_dword v8, v7, {RB}, 0 offen sc1
s_mov_b64 exec, -1""")
        a.vm = []
        a.label(nn)
        a(f"buffer_load_dword v9, v7, {RB}, 0 offen sc1")
        self.srd(R_A, P_U, 2048 * 896)
        self.srd(R_WS, P_WS, WS_BYTES)
        a(f"buffer_load_dwordx4 v[12:15], v4, {RA}, s12 offen")
        for k in range(2):
            a(f"buffer_load_dword v{20+4*k}, v5, {RA}, s12 offen offset:{512*k}")
            a(f"buffer_load_dword v{22+4*k}, v5, {RA}, s12 offen offset:{512*k+896}")

    def get_nonce(self):
        a = self.a
        ok = self.lab("nonce_ok"); lp = self.lab("nonce_poll")
        a(f"v_readfirstlane_b32 s{S_NONCE}, v9")
        st = a.state()
        a(f"""s_cmp_lg_u32 s{S_NONCE}, 0
s_cbranch_scc1 {ok}
s_mov_b32 s9, {SPIN}""")
        self.srd(R_B, P_DBG, 256)
        a.label(lp)
        a(f"""buffer_load_dword v9, v7, {RB}, 0 offen sc1
v_readfirstlane_b32 s{S_NONCE}, v9
s_sub_u32 s9, s9, 1
s_cmp_eq_u32 s9, 0
s_cbranch_scc1 {ok}
s_cmp_eq_u32 s{S_NONCE}, 0
s_cbranch_scc1 {lp}""")
        a.label(ok)
        a.set_state(st); a.win = []
        a("s_nop 1")

    def phase_a_publish(self):
        a = self.a
        for k in range(2):
            a(f"v_mov_b32 v{21+4*k}, s{S_NONCE}\nv_mov_b32 v{23+4*k}, s{S_NONCE}")
        a(f"""s_mul_i32 s12, s2, 14336
s_add_u32 s12, s12, {XG}
v_lshlrev_b32 v5, 4, v0
v_mov_b32 v6, {OOB}
v_cmp_gt_u32 vcc, 384, v0
v_add_u32 v10, 0x2000, v5
s_mov_b32 s13, 0x3f803f80
v_cndmask_b32 v6, v6, v10, vcc""")
        a(f"v_dot2_f32_bf16 v2, v12, s13, 0\nv_dot2_f32_bf16 v3, v12, v12, 0")
        for r in range(13, 16):
            a(f"v_dot2_f32_bf16 v2, v{r}, s13, v2\nv_dot2_f32_bf16 v3, v{r}, v{r}, v3")
        for k, ad in enumerate((5, 6)):
            a(f"buffer_store_dwordx4 v[{20+4*k}:{23+4*k}], v{ad}, {WS}, s12 offen sc1")
        for sh in (1, 2, 4, 8):
            a(f"v_add_f32_dpp v2, v2, v2 row_shr:{sh} row_mask:0xf bank_mask:0xf bound_ctrl:0")
            a(f"v_add_f32_dpp v3, v3, v3 row_shr:{sh} row_mask:0xf bank_mask:0xf bound_ctrl:0")
        for bc, m in ((15, "0xa"), (31, "0xc")):
            a(f"v_add_f32_dpp v2, v2, v2 row_bcast:{bc} row_mask:{m} bank_mask:0xf")
            a(f"v_add_f32_dpp v3, v3, v3 row_bcast:{bc} row_mask:{m} bank_mask:0xf")
        self.ln_finish(2, 3, 10)
        a(f"""v_cvt_pk_bf16_f32 v2, v2, v3
v_mov_b32 v3, s{S_NONCE}
s_lshl_b32 s12, s2, 3
s_add_u32 s12, s12, s{S_WAVE}
s_lshl_b32 s12, s12, 3
s_add_u32 s12, s12, {STAT}
s_mov_b32 exec_lo, 0
s_mov_b32 exec_hi, 0x80000000
buffer_store_dwordx2 v[2:3], v7, {WS}, s12 offen sc1
s_mov_b64 exec, -1""")

    def ln_finish(self, vs, vq, t):
        a = self.a
        a(f"""v_mul_f32 v{vs}, {f32(1/448)}, v{vs}
v_mul_f32 v{vq}, {f32(1/448)}, v{vq}
v_fma_f32 v{vq}, -v{vs}, v{vs}, v{vq}
v_max_f32 v{vq}, 0, v{vq}""")
        self.bf16r(vq, vq)
        a(f"v_add_f32 v{vq}, {f32(1e-5)}, v{vq}")
        self.bf16r(vq, vq)
        a(f"v_sqrt_f32 v{vq}, v{vq}")

    V_PAR = 36
    V_GA = 42
    def conv_early(self):
        a = self.a
        a(f"s_lshl_b32 s12, s{S_PAIR}, 10\nv_and_b32 v16, 255, v0\nv_lshlrev_b32 v10, 2, v16")
        for i, p in enumerate((P_ARE, P_AIM, P_BRE, P_BIM, P_CRE, P_CIM)):
            r = R_A if i % 2 == 0 else R_B
            self.srd(r, p, 448 * 512)
            a(f"buffer_load_dword v{self.V_PAR+i}, v10, s[{r}:{r+3}], s12 offen")
        a(f"""s_lshl_b32 s13, s{S_PAIR}, 2
s_load_dword s64, s[{P_LDT}:{P_LDT+1}], s13
s_load_dword s65, s[{P_DSK}:{P_DSK+1}], s13
s_lshr_b32 s{S_RB}, s{S_XCD}, 1
s_lshl_b32 s{S_RB}, s{S_RB}, 1
s_and_b32 s13, s{S_SLOT}, 1
s_add_u32 s{S_RB}, s{S_RB}, s13
s_and_b32 s{S_FC}, s{S_XCD}, 1
s_mul_i32 s{S_FC}, s{S_FC}, 14
s_lshr_b32 s13, s{S_SLOT}, 1
s_add_u32 s{S_FC}, s{S_FC}, s13""")
        a(f"""v_mov_b32 v60, 0
v_mov_b32 v61, 0
v_lshlrev_b32 v10, 3, v1
ds_write_b64 v10, v[60:61] offset:{L_H}
ds_write_b64 v10, v[60:61] offset:{L_H + HP}
ds_write_b64 v7, v[60:61] offset:{L_T + 9*256}
ds_write_b64 v7, v[60:61] offset:{L_T + TP + 9*256}""")
        a(f"""v_lshlrev_b32 v10, 3, v16
v_sub_u32 v10, 2047, v10
v_cvt_f32_u32 v10, v10
s_lshr_b32 s12, s{S_WAVE}, 2
s_mul_i32 s12, s12, {TP}""")
        for m in range(0, 11, 2):
            a(f"v_add_f32 v60, {f32(-m)}, v10\nv_add_f32 v61, {f32(-m-1)}, v10\nv_cvt_pk_bf16_f32 v62, v60, v61")
            for h in range(2):
                if m + h > 10: continue
                g = self.V_GA + m + h
                a(f"v_lshlrev_b32 v63, 16, v62" if h == 0 else "v_and_b32 v63, 0xffff0000, v62")
                a(f"""v_cvt_u32_f32 v63, v63
v_and_b32 v{g}, 0xf8, v63
v_and_b32 v11, 7, v63
v_lshl_or_b32 v{g}, v11, 8, v{g}
v_lshrrev_b32 v11, 8, v63
v_lshl_or_b32 v{g}, v11, 11, v{g}""")
        a(f"v_mov_b32 v11, {9*256}\nv_cmp_eq_u32 vcc, 255, v16")
        for m in range(8, 11):
            a(f"v_cndmask_b32 v{self.V_GA+m}, v{self.V_GA+m}, v11, vcc")
        for m in range(11):
            a(f"v_add_u32 v{self.V_GA+m}, s12, v{self.V_GA+m}")

    def cmul(self, d, x, r, t):
        return [f"v_pk_mul_f32 v[{t}:{t+1}], v[{x}:{x+1}], v[{r}:{r+1}] op_sel_hi:[1,0]",
                f"v_pk_fma_f32 v[{d}:{d+1}], v[{x}:{x+1}], v[{r}:{r+1}], v[{t}:{t+1}] op_sel:[1,1,0] op_sel_hi:[0,1,1] neg_lo:[0,1,0]"]

    def kgen_common(self):
        a = self.a; P = self.V_PAR
        a(f"""s_lshl_b32 s12, s64, 16
s_and_b32 s13, s64, 0xffff0000
s_cmp_lt_u32 s{S_W3}, 2
s_cselect_b32 s64, s12, s13
s_lshl_b32 s12, s65, 16
s_and_b32 s13, s65, 0xffff0000
s_cmp_lt_u32 s{S_W3}, 2
s_cselect_b32 s65, s12, s13
s_bitcmp1_b32 s{S_WAVE}, 0
s_cselect_b32 s65, 0, s65
s_mul_i32 s68, s{S_W3}, {EW}
s_add_u32 s68, s68, {L_E}""")
        lh = struct.unpack("<f", struct.pack("<f", LOG2E))[0]
        a(f"""v_mov_b32 v2, {f32(lh)}
v_mul_f32 v3, s64, v2
v_fma_f32 v4, s64, v2, -v3
v_mov_b32 v2, {f32(LOG2E - lh)}
v_fma_f32 v4, s64, v2, v4
v_exp_f32 v3, v3
v_mul_f32 v4, {f32(math.log(2))}, v4
v_fma_f32 v3, v3, v4, v3""")
        self.bf16r(2, 3)
        a(f"v_lshl_add_u32 v10, v1, 3, s68")
        for k in range(2):
            u = 80 + 6*k
            for i in range(2):
                a(f"v_lshlrev_b32 v{u+i}, 16, v{P+i}" if k == 0 else f"v_and_b32 v{u+i}, 0xffff0000, v{P+i}")
            a(f"""v_mul_f32 v{u}, v2, v{u}
v_mul_f32 v{u+1}, v2, v{u+1}
v_mul_f32 v{u}, {f32(LOG2E)}, v{u}
v_mul_f32 v{u+1}, {f32(1/(2*math.pi))}, v{u+1}""")
    def rho(self, L, R, sg):
        a = self.a
        for k in range(2):
            u = 80 + 6*k; t = 92 + 2*k
            a(f"v_mul_f32 v{t}, {f32(L)}, v{u}\nv_mul_f32 v{t+1}, {f32(L)}, v{u+1}\nv_fract_f32 v{t+1}, v{t+1}")
        for k in range(2):
            t = 92 + 2*k
            a(f"v_exp_f32 v{t}, v{t}\nv_cos_f32 v{R[k]}, v{t+1}\nv_sin_f32 v{R[k]+1}, v{t+1}")
        for k in range(2):
            t = 92 + 2*k
            a(f"v_mul_f32 v{R[k]}, v{t}, v{R[k]}\nv_mul_f32 v{R[k]+1}, {sg}v{t}, v{R[k]+1}")
    def chain_runner(self):
        outs = [96, 98, 100, 102]; st = {"i": 0, "pend": None}; seq = []
        T = [92, 94]
        def put(row, src):
            o = outs[st["i"] % 4]; st["i"] += 1
            return [f"v_cvt_pk_bf16_f32 v{o}, v{src[0]}, v{src[0]+1}", f"v_cvt_pk_bf16_f32 v{o+1}, v{src[1]}, v{src[1]+1}",
                    f"ds_write_b64 v10, v[{o}:{o+1}] offset:{row*EP}"]
        def first(row, src): st["pend"] = put(row, src)
        def chain(dst, src, rho, row):
            m0 = self.cmul(dst[0], src[0], rho[0], T[0]); m1 = self.cmul(dst[1], src[1], rho[1], T[1])
            p = st["pend"]
            seq.extend([m0[0], m1[0], p[0], m0[1], m1[1], p[1], p[2]])
            st["pend"] = put(row, dst)
        def done():
            seq.extend(st["pend"]); return seq
        return first, chain, done
    def kgen_lo(self):
        a = self.a
        R8 = [72, 74]; pp = [[80, 82], [84, 86]]
        self.rho(8, R8, "-")
        a(f"v_mov_b32 v102, 0x3f80\nv_mov_b32 v103, 0x3f80\nds_write_b64 v10, v[102:103] offset:{22*EP}")
        first, chain, done = self.chain_runner()
        first(23, R8); cur = R8
        for c in range(2, 32):
            chain(pp[c % 2], cur, R8, 22 + c); cur = pp[c % 2]
        for s in done(): a(s)
    def kgen_hi(self):
        a = self.a; P = self.V_PAR
        W = [64, 66]; R1 = [68, 70]; R256 = [76, 78]; pp = [[80, 82], [84, 86]]
        for k in range(2):
            u = 80 + 6*k
            for i in range(2, 6):
                a(f"v_lshlrev_b32 v{u+i}, 16, v{P+i}" if k == 0 else f"v_and_b32 v{u+i}, 0xffff0000, v{P+i}")
            a(f"""v_mul_f32 v{u+2}, v2, v{u+2}
v_mul_f32 v{u+3}, v2, v{u+3}
v_mul_f32 v{W[k]}, v{u+4}, v{u+2}
v_mul_f32 v{W[k]+1}, v{u+4}, v{u+3}
v_fma_f32 v{W[k]}, -v{u+5}, v{u+3}, v{W[k]}
v_fma_f32 v{W[k]+1}, v{u+5}, v{u+2}, v{W[k]+1}""")
        self.rho(1, R1, "")
        self.rho(256, R256, "")
        first, chain, done = self.chain_runner()
        keep = {0: W, 2: [104, 106], 4: [108, 110], 6: [112, 114]}
        first(0, W); cur = W
        for j in range(1, 8):
            nxt = keep.get(j, pp[(j // 2) % 2])
            chain(nxt, cur, R1, j); cur = nxt
        A0 = [116, 118]; A4 = [120, 122]; B0 = [124, 126]; B4 = [128, 130]
        for dst, src, row in ((A0, keep[0], 8), (A4, keep[4], 12), (pp[0], keep[2], 9), (pp[1], keep[6], 13),
                              (B0, A0, 10), (B4, A4, 14), (A0, B0, 11), (A4, B4, 15),
                              (B0, A0, 16), (A0, B0, 17), (B0, A0, 18), (A0, B0, 20), (B0, A0, 21)):
            chain(dst, src, R256, row)
        for s in done(): a(s)

    def kgen_contract(self):
        a = self.a
        ACC = 64; F = 96
        def rd(s):
            b = F + 8 * (s % 7)
            return [f"ds_read_b128 v[{b}:{b+3}], v10 offset:{32*s}", f"ds_read_b128 v[{b+4}:{b+7}], v10 offset:{22*EP + 32*s}"]
        for s in range(7):
            for x in rd(s): a(x)
        for s in range(16):
            b = F + 8 * (s % 7)
            a(f"v_mfma_f32_32x32x16_bf16 v[{ACC}:{ACC+15}], v[{b}:{b+3}], v[{b+4}:{b+7}], v[{ACC}:{ACC+15}]")
            if s + 7 < 16:
                for x in rd(s + 7): a(x)
        for i, row in enumerate((0, 1, 2, 3, 8, 10, 16, 24)):
            a(f"ds_write_b32 v11, v{ACC+i} offset:{L_T + row*256}")
        for i, row in enumerate((32, 40, 48)):
            a(f"ds_write_b32 v12, v{ACC+8+i} offset:{L_T + row*256}")
    def kgen_contract_pre(self):
        a = self.a; ACC = 64
        a(f"""v_and_b32 v2, 31, v1
v_mul_u32_u24 v10, {EP}, v2
v_lshrrev_b32 v3, 5, v1
v_lshl_add_u32 v10, v3, 4, v10
v_add_u32 v10, s68, v10
s_lshr_b32 s12, s{S_W3}, 1
s_mul_i32 s12, s12, {TP}
s_and_b32 s13, s{S_W3}, 1
s_lshl_b32 s13, s13, 2
s_add_u32 s12, s12, s13
v_lshl_add_u32 v2, v2, 3, s12
v_mul_u32_u24 v12, {24*256}, v3
v_add_u32 v12, v12, v2
v_lshl_add_u32 v11, v3, 10, v2
v_mov_b32 v3, s65
v_cmp_eq_u32 vcc, 0, v1""")
        for i in range(1, 16): a(f"v_mov_b32 v{ACC+i}, 0")
        a(f"v_cndmask_b32 v{ACC}, v{ACC+1}, v3, vcc")

    def expand(self):
        a = self.a; G = 64; O = 96
        for m in range(11):
            a(f"ds_read_b64 v[{G+2*m}:{G+2*m+1}], v{self.V_GA+m} offset:{L_T}")
        a(f"""s_lshr_b32 s12, s{S_WAVE}, 2
s_mul_i32 s12, s12, {4*CP}
s_add_u32 s12, s12, {L_E}
v_and_b32 v10, 255, v0
v_lshl_add_u32 v10, v10, 4, s12
v_lshrrev_b32 v11, 1, v0
v_mul_u32_u24 v11, {CP}, v11
v_and_b32 v12, 1, v0
v_lshl_add_u32 v11, v12, 4, v11
v_mov_b32 v60, 0
v_mov_b32 v61, 0
v_mov_b32 v62, 0
v_mov_b32 v63, 0
v_cmp_gt_u32 vcc, 16, v0
s_and_saveexec_b64 s[12:13], vcc
ds_write_b128 v11, v[60:63] offset:{L_E + 4096}
s_mov_b64 exec, s[12:13]""")
        for m in range(11):
            a(f"v_add_f32 v{G+2*m}, v{G+2*m}, v{G+2*m+1}")
        for c in range(4):
            o = O + 4*c
            for k in range(4):
                m = c + 2*k
                a(f"v_cvt_pk_bf16_f32 v{o+k}, v{G+2*m}, v{G+2*(m+1)}")
            a(f"ds_write_b128 v10, v[{o}:{o+3}] offset:{c*CP}")

    V_XG = 136
    V_SG = 152
    V_MG = 168
    def handoff1_loads(self):
        L = []
        for r in range(2):
            for h in range(2):
                L.append(f"buffer_load_dwordx4 v[{self.V_XG+8*r+4*h}:{self.V_XG+8*r+4*h+3}], v{180+r}, {WS}, s69 offen offset:{16*h} sc1")
        for r in range(2):
            for h in range(2):
                L.append(f"buffer_load_dwordx4 v[{self.V_SG+8*r+4*h}:{self.V_SG+8*r+4*h+3}], v{182+r}, {WS}, 0 offen offset:{16*h} sc1")
        for i in range(2):
            L.append(f"buffer_load_dwordx4 v[{self.V_MG+4*i}:{self.V_MG+4*i+3}], v184, {WS}, 0 offen offset:{448*8*i} sc1")
        return L
    def handoff1_issue(self):
        a = self.a
        a(f"""v_and_b32 v186, 255, v0
v_lshrrev_b32 v180, 1, v186
v_mul_u32_u24 v180, 14336, v180
v_and_b32 v181, 1, v0
v_lshl_add_u32 v180, v181, 5, v180
v_add_u32 v181, {128*14336}, v180
s_lshl_b32 s69, s{S_PAIR}, 6
s_add_u32 s69, s69, {XG}
v_lshlrev_b32 v182, 5, v186
v_add_u32 v182, {STAT}, v182
v_add_u32 v183, 8192, v182
s_lshl_b32 s12, s{S_PAIR}, 4
s_add_u32 s12, s12, {MODG}
v_mov_b32 v184, s12
v_add_u32 v185, {2*448*8}, v184""")
        for x in self.handoff1_loads(): a(x)

    V_XV = 120
    def make_h(self):
        a = self.a
        tags = [self.V_XG + 2*i + 1 for i in range(8)] + [self.V_SG + 2*i + 1 for i in range(8)] + [self.V_MG + 2*i + 1 for i in range(4)]
        self.poll(self.handoff1_loads(), tags, 60, list(range(64, 74)), issued=True)
        self.stamp("h1")
        a(f"buffer_load_dwordx4 v[{self.V_MG+8}:{self.V_MG+11}], v185, {WS}, 0 offen sc1")
        MS = 64; H = 80; XV = self.V_XV; MG = self.V_MG
        for i in range(8):
            g = self.V_SG + 2*i
            a(f"v_and_b32 v{MS+2*i+1}, 0xffff0000, v{g}\nv_lshlrev_b32 v{MS+2*i}, 16, v{g}\nv_rcp_f32 v{MS+2*i+1}, v{MS+2*i+1}")
        for i in range(8):
            g = self.V_XG + 2*i
            a(f"v_lshlrev_b32 v{XV+2*i}, 16, v{g}\nv_and_b32 v{XV+2*i+1}, 0xffff0000, v{g}")
        a(f"v_mov_b32 v60, v{MG}\nv_mov_b32 v61, v{MG+2}\nv_mov_b32 v62, v{MG+4}\nv_mov_b32 v63, v{MG+6}")
        for i in range(8):
            a(f"v_pk_add_f32 v[{H+2*i}:{H+2*i+1}], v[{XV+2*i}:{XV+2*i+1}], v[{MS+2*i}:{MS+2*i+1}] op_sel_hi:[1,0] neg_lo:[0,1] neg_hi:[0,1]")
        for i in range(8):
            x = f"v[{H+2*i}:{H+2*i+1}]"
            a(f"v_pk_mul_f32 {x}, {x}, v[{MS+2*i}:{MS+2*i+1}] op_sel:[0,1] op_sel_hi:[1,1]")
        for i in range(8):
            x = f"v[{H+2*i}:{H+2*i+1}]"
            a(f"v_pk_fma_f32 {x}, {x}, v[62:63], v[60:61]")
        a(f"v_lshlrev_b32 v10, 3, v186")
        for r in range(2):
            for ch in range(2):
                o = 64 + 4*r + 2*ch; b = H + 8*r + ch
                a(f"v_cvt_pk_bf16_f32 v{o}, v{b}, v{b+2}\nv_cvt_pk_bf16_f32 v{o+1}, v{b+4}, v{b+6}")
                a(f"ds_write_b64 v10, v[{o}:{o+1}] offset:{L_H + ch*HP + 480 + 2048*r}")

    def conv_pre(self):
        a = self.a
        a(f"""s_lshr_b32 s12, s{S_W3}, 1
s_and_b32 s14, s{S_W3}, 1
s_lshl_b32 s15, s14, 8
s_mul_i32 s13, s12, {4*CP}
s_add_u32 s13, s13, s15
s_add_u32 s13, s13, {L_E + 2*(1804 - 1792)}
v_and_b32 v2, 3, v1
v_sub_u32 v2, 3, v2
v_mul_u32_u24 v2, {CP}, v2
v_lshrrev_b32 v3, 4, v1
v_bfe_u32 v4, v1, 2, 2
v_lshlrev_b32 v5, 1, v3
v_sub_u32 v4, v5, v4
v_lshlrev_b32 v4, 3, v4
v_add3_u32 v10, v2, v4, s13
s_mul_i32 s13, s12, {HP}
s_add_u32 s13, s13, s15
s_add_u32 s13, s13, {L_H}
v_and_b32 v2, 15, v1
v_lshlrev_b32 v4, 5, v2
v_lshl_add_u32 v4, v3, 4, v4
v_add_u32 v11, s13, v4
v_bfe_u32 v4, v1, 1, 2
v_xor_b32 v4, v4, v3
v_lshl_add_u32 v4, v2, 2, v4
v_lshlrev_b32 v4, 4, v4
s_lshl_b32 s13, s{S_W3}, 13
s_add_u32 s13, s13, {L_Y}
v_add_u32 v12, s13, v4""")
    def conv_main(self):
        a = self.a
        ACC = 16; F = 64
        def fa(s, j): return F + 64 * (s % 2) + 4 * j
        def fb(s, p): return F + 64 * (s % 2) + 32 + 4 * p
        def reads(s):
            out = []
            for k in range(8):
                out.append(f"ds_read_b64 v[{fa(s,k)}:{fa(s,k)+1}], v10 offset:{512*(7-k) + 64*s}")
                out.append(f"ds_read_b64 v[{fa(s,k)+2}:{fa(s,k)+3}], v10 offset:{512*(7-k) + 64*s + 8}")
                out.append(f"ds_read_b128 v[{fb(s,k)}:{fb(s,k)+3}], v11 offset:{512*k + 64*s}")
            return out
        for x in reads(0): a(x)
        for s in range(4):
            if s < 3: trip = sorted([(max(j, Q - j), Q, j) for Q in range(8) for j in range(Q + 1)])
            else: trip = [(0, Q, j) for Q in range(8) for j in range(Q + 1)]
            seen = set(); mf = []
            for _, Q, j in trip:
                d = f"v[{ACC+4*Q}:{ACC+4*Q+3}]"
                c = "0" if (s == 0 and Q not in seen) else d
                seen.add(Q)
                mf.append(f"v_mfma_f32_16x16x32_bf16 {d}, v[{fa(s,j)}:{fa(s,j)+3}], v[{fb(s,Q-j)}:{fb(s,Q-j)+3}], {c}")
            if s < 3: seq = merge(mf, reads(s + 1))
            else:
                seq = []; k = 0
                wr = lambda Q: f"ds_write_b128 v12, v[{ACC+4*Q}:{ACC+4*Q+3}] offset:{1024*Q}"
                at = {12: 0, 15: 1, 18: 2, 21: 3, 24: 4, 29: 5}
                for i, x in enumerate(mf):
                    seq.append(x)
                    if i in at: seq.append(wr(at[i]))
                seq += [wr(6), wr(7)]
            for x in seq: a(x)

    def conv_epilogue_pre(self):
        a = self.a; GAg = self.V_MG + 8
        self.poll([f"buffer_load_dwordx4 v[{GAg}:{GAg+3}], v185, {WS}, 0 offen sc1"], [GAg+1, GAg+3], 60, [61], issued=True)
        a(f"""v_bfe_u32 v2, v1, 3, 2
v_xor_b32 v2, v2, v186
v_lshlrev_b32 v2, 4, v2
v_add_u32 v2, {L_Y}, v2
s_mul_i32 s12, s{S_W3}, {224*1024}
s_lshl_b32 s13, s{S_PAIR}, 10
s_add_u32 s12, s12, s13
s_add_u32 s70, s12, {X2}
s_add_u32 s71, s70, {4*224*1024}
v_lshlrev_b32 v3, 4, v1
s_lshl_b32 s12, s{S_W3}, 8
s_add_u32 s12, s12, s{S_PAIR}
s_lshl_b32 s12, s12, 6
s_add_u32 s72, s12, {FLG2}""")
    def conv_epilogue(self):
        a = self.a; GAg = self.V_MG + 8; XV = self.V_XV; Y = 64
        for r in range(2):
            for ch in range(2):
                for kh in range(2):
                    b = Y + 16*r + 8*ch + 4*kh
                    a(f"ds_read_b128 v[{b}:{b+3}], v2 offset:{16384*ch + 8192*kh + 4096*r}")
        for r in range(2):
            for ch in range(2):
                for e in range(4):
                    b = Y + 16*r + 8*ch + e
                    a(f"v_add_f32 v{b}, v{b}, v{b+4}\nv_fmac_f32 v{XV+2*(4*r+e)+ch}, v{GAg+2*ch}, v{b}")
            for e in range(4):
                i = 4*r + e
                a(f"v_cvt_pk_bf16_f32 v{96+i}, v{XV+2*i}, v{XV+2*i+1}")
            a(f"buffer_store_dwordx4 v[{96+4*r}:{99+4*r}], v3, {WS}, s{70+r} offen sc1")
    def flag_store(self, sreg):
        a = self.a
        a(f"v_mov_b32 v8, s{S_NONCE}\nv_mov_b32 v7, 0")
        a(f"s_mov_b64 exec, 1\nbuffer_store_dword v8, v7, {WS}, s{sreg} offen sc1\ns_mov_b64 exec, -1")

    V_WR = 192
    def w13_loads(self):
        a = self.a
        a(f"s_cmp_ge_u32 s{S_WAVE}, 4")
        self.srd_sel(R_A, P_WU, P_WG, 448 * 3584)
        a(f"""v_lshrrev_b32 v248, 3, v1
v_mul_u32_u24 v249, {14*3584}, v248
v_and_b32 v250, 7, v1
v_lshl_add_u32 v249, v250, 4, v249
s_mul_i32 s12, s{S_W3}, {112*3584}
s_lshl_b32 s13, s{S_FC}, 7
s_add_u32 s12, s12, s13""")
        for i in range(14):
            if i and i % 2 == 0: a(f"s_add_u32 s12, s12, {2*3584}")
            a(f"buffer_load_dwordx4 v[{self.V_WR+4*i}:{self.V_WR+4*i+3}], v249, {RA}, s12 offen offset:{3584*(i%2)}")
    V_SV = 16
    def s_loads(self):
        return [f"buffer_load_dwordx4 v[{self.V_SV+4*j}:{self.V_SV+4*j+3}], v251, {WS}, s73 offen offset:{16*j} sc1" for j in range(7)]
    def s_issue(self):
        a = self.a
        a(f"""v_mul_u32_u24 v251, 112, v248
s_mul_i32 s73, s{S_W3}, 896
s_add_u32 s73, s73, {MODG + 4*448*8}""")
        for x in self.s_loads(): a(x)
    def w13_stage(self):
        a = self.a; SV = self.V_SV
        self.poll(self.s_loads(), [SV + 2*i + 1 for i in range(14)], 60, list(range(64, 71)), issued=True)
        a(f"""s_lshr_b32 s12, s{S_WAVE}, 2
s_mul_i32 s13, s12, {WM}
s_mul_i32 s14, s{S_W3}, {112*128}
s_add_u32 s13, s13, s14
s_add_u32 s13, s13, {L_W}
s_lshl_b32 s12, s12, 2
v_and_b32 v60, 1, v248
v_lshlrev_b32 v60, 1, v60
v_xor_b32 v60, v60, v250
v_xor_b32 v60, s12, v60
v_mul_u32_u24 v61, {14*128}, v248
v_lshl_add_u32 v60, v60, 4, v61
v_add_u32 v60, s13, v60
v_xor_b32 v61, 32, v60""")
        for i in range(14):
            w = self.V_WR + 4*i; s = SV + 2*i; t = 64 + 8*(i % 2); o = 80 + 4*(i % 2)
            a(f"v_lshrrev_b32 v{s+1}, 16, v{s}")
            for e in range(4):
                a(f"v_dot2_f32_bf16 v{t+2*e}, v{w+e}, v{s+1}, 0")
                a(f"v_dot2_f32_bf16 v{t+2*e+1}, v{w+e}, v{s}, 0")
            for e in range(4):
                a(f"v_cvt_pk_bf16_f32 v{o+e}, v{t+2*e}, v{t+2*e+1}")
            a(f"ds_write_b128 v{60 + (i//2) % 2}, v[{o}:{o+3}] offset:{128*i}")

    def barrier2(self):
        a = self.a
        sk = self.lab("nopoll")
        a(f"s_cmp_ge_u32 s{S_WAVE}, 4\ns_cbranch_scc1 {sk}")
        st = a.state()
        a(f"""s_and_b32 s12, s{S_RB}, 3
s_lshl_b32 s12, s12, 14
s_add_u32 s12, s12, {FLG2}
v_lshlrev_b32 v62, 6, v0""")
        self.poll([f"buffer_load_dword v63, v62, {WS}, s12 offen sc1"], [63], 60, [])
        a.label(sk); a.set_state(st); a.win = []
        self.barrier()

    V_B = 80
    def gemm1(self):
        a = self.a; B = self.V_B
        ACC = 16; AF = 48; NA = 3
        AUG = 72
        a(f"""v_and_b32 v2, 31, v1
v_lshrrev_b32 v3, 5, v1
v_lshlrev_b32 v4, 2, v2
v_lshl_add_u32 v4, v3, 12, v4
s_mul_i32 s12, s{S_RB}, {224*1024}
s_lshl_b32 s13, s{S_WAVE}, 7
s_add_u32 s12, s12, s13
s_add_u32 s70, s12, {X2}
v_bfe_u32 v5, v1, 4, 1
v_bfe_u32 v6, v1, 2, 2
v_lshl_add_u32 v8, v3, 3, v6
v_lshlrev_b32 v8, 7, v8
v_mul_u32_u24 v9, {WM}, v5
v_add_u32 v8, v8, v9
v_lshrrev_b32 v6, 1, v6
v_lshl_add_u32 v6, v5, 1, v6
v_lshl_add_u32 v8, v6, 5, v8
v_and_b32 v6, 3, v1
v_lshl_add_u32 v10, v6, 3, v8
v_add_u32 v10, {L_W}, v10
v_xor_b32 v11, 32, v10
v_lshlrev_b32 v12, 3, v2
s_lshl_b32 s71, s{S_FC}, 10
s_add_u32 s71, s71, {CAUG}
s_lshl_b32 s12, s{S_RB}, 3
s_add_u32 s12, s12, s{S_WAVE}
s_mul_i32 s13, s12, 28
s_add_u32 s13, s13, s{S_FC}
s_lshl_b32 s72, s13, 12
s_add_u32 s72, s72, {ACT}
s_lshl_b32 s73, s13, 6
s_add_u32 s73, s73, {FLG3}
v_lshlrev_b32 v13, 4, v1""")
        for t in range(2):
            a(f"v_mov_b32 v{AUG+4*t+2}, 0\nv_mov_b32 v{AUG+4*t+3}, 0")
        def xl(s):
            L = [f"buffer_load_dword v{B+4*s+e}, v4, {WS}, s70 offen offset:{1024*e} sc1" for e in range(4)]
            return L + [f"s_add_u32 s70, s70, 8192"]
        def ard(s):
            b = AF + 8 * (s % NA)
            return [f"ds_read_b64_tr_b16 v[{b+4*t+2*h}:{b+4*t+2*h+1}], v{10+t} offset:{2048*s + 512*h}" for t in range(2) for h in range(2)]
        def cond_barrier(first_group):
            sk = self.lab("cb")
            a(f"s_cmp_ge_u32 s{S_WAVE}, 4\n" + ("s_cbranch_scc1" if first_group else "s_cbranch_scc0") + f" {sk}\ns_barrier")
            a.label(sk)
        NPRE = 14
        for p in range(2):
            if p == 0:
                cond_barrier(False)
                for s in range(NPRE):
                    for x in xl(s): a(x)
            for t in range(2):
                a(f"buffer_load_dwordx2 v[{AUG+4*t}:{AUG+4*t+1}], v12, {WS}, s71 offen offset:{512*p + 256*t} sc1")
            for s in range(NA - 1):
                for x in ard(s): a(x)
            for s in range(28):
                b = AF + 8 * (s % NA)
                nxt = ard(s + NA - 1) if s + NA - 1 < 28 else []
                ld = xl(s + NPRE) if (p == 0 and s + NPRE < 28) else []
                for t in range(2):
                    d = f"v[{ACC+16*t}:{ACC+16*t+15}]"
                    for x in nxt[2*t:2*t+2]: a(x)
                    a(f"v_mfma_f32_32x32x16_bf16 {d}, v[{b+4*t}:{b+4*t+3}], v[{B+4*s}:{B+4*s+3}], {'0' if s == 0 else d}")
                    for x in (ld[:2] if t == 0 else ld[2:]): a(x)
                if p == 0 and s + NPRE == 27: cond_barrier(True)
            if p == 0:
                self.stamp("g1p0")
                a("v_xor_b32 v10, 64, v10\nv_xor_b32 v11, 64, v11\ns_mov_b32 s12, 0x3f803f80")
                for k in range(112):
                    j = k % 2
                    if k < 2: a(f"v_dot2_f32_bf16 v{48+j}, v{B+k}, s12, 0\nv_dot2_f32_bf16 v{50+j}, v{B+k}, v{B+k}, 0")
                    else: a(f"v_dot2c_f32_bf16 v{48+j}, s12, v{B+k}\nv_dot2c_f32_bf16 v{50+j}, v{B+k}, v{B+k}")
                a("""v_add_f32 v48, v48, v49
v_add_f32 v50, v50, v51
v_mov_b32 v49, v48
v_mov_b32 v51, v50
v_permlane32_swap_b32 v48, v49
v_permlane32_swap_b32 v50, v51
v_add_f32 v48, v48, v49
v_add_f32 v50, v50, v51""")
                self.ln_finish(48, 50, 52)
                a(f"""v_cvt_pk_bf16_f32 v4, -v48, -v48
v_cvt_pk_bf16_f32 v5, v50, v50
v_mov_b32 v6, 0
v_mov_b32 v7, 0
v_and_b32 v50, 0xffff0000, v5
v_rcp_f32 v50, v50
v_cmp_gt_u32 vcc, 32, v1
v_mul_f32 v14, {f32(-LOG2E)}, v50
v_mul_f32 v15, v50, v50
v_cndmask_b32 v4, 0, v4, vcc
v_cndmask_b32 v5, 0, v5, vcc""")
            for t in range(2):
                d = f"v[{ACC+16*t}:{ACC+16*t+15}]"
                a(f"v_mfma_f32_32x32x16_bf16 {d}, v[{AUG+4*t}:{AUG+4*t+3}], v[4:7], {d}")
            for t in range(2):
                g = ACC + 16*t; T = 48; O = 56 + 4*t
                for i in range(8): a(f"v_mul_f32 v{T+i}, v14, v{g+i}")
                for i in range(8): a(f"v_exp_f32 v{T+i}, v{T+i}\nv_mul_f32 v{g+i}, v{g+i}, v{g+8+i}")
                for i in range(8): a(f"v_add_f32 v{T+i}, 1.0, v{T+i}")
                for i in range(8): a(f"v_rcp_f32 v{T+i}, v{T+i}\nv_mul_f32 v{g+i}, v15, v{g+i}")
                for i in range(8): a(f"v_mul_f32 v{g+i}, v{g+i}, v{T+i}")
                for i in range(4): a(f"v_cvt_pk_bf16_f32 v{O+i}, v{g+2*i}, v{g+2*i+1}")
                a(f"buffer_store_dwordx4 v[{O}:{O+3}], v13, {WS}, s72 offen offset:{2048*p + 1024*t} sc1")
            self.stamp("g1e0" if p == 0 else "g1e1")
        a.wait(vm=0)
        self.flag_store(73)

    def gemm2(self):
        a = self.a
        WD = 144; ACC = 16; AB = 80; NB = 6; PF = 128
        self.srd(R_A, P_WD, 1792 * 896)
        a(f"""s_lshl_b32 s64, s{S_XCD}, 2
s_and_b32 s12, s{S_SLOT}, 3
s_add_u32 s64, s64, s12
s_lshr_b32 s65, s{S_SLOT}, 2
v_and_b32 v2, 31, v1
v_lshrrev_b32 v3, 5, v1
v_mul_u32_u24 v4, {4*896}, v3
v_lshl_add_u32 v4, v2, 2, v4
v_add_u32 v5, {8*896}, v4
s_mul_i32 s12, s{S_WAVE}, {14*16*896}
s_lshl_b32 s13, s65, 7
s_add_u32 s12, s12, s13""")
        for m in range(14):
            for i in range(8):
                a(f"buffer_load_dword v{WD+8*m+i}, v{4 + i//4}, {RA}, s12 offen offset:{896*(i%4)}")
            if m < 13: a(f"s_add_u32 s12, s12, {16*896}")
        a(f"""v_min_u32 v6, 55, v1
v_lshlrev_b32 v6, 6, v6
s_mul_i32 s12, s64, {56*64}
s_add_u32 s12, s12, {FLG3}""")
        self.poll([f"buffer_load_dword v8, v6, {WS}, s12 offen sc1"], [8], 9, [])
        self.stamp("h3")
        a(f"""s_mul_i32 s70, s64, {2*112*1024}
s_mul_i32 s12, s{S_WAVE}, {14*1024}
s_add_u32 s70, s70, s12
s_add_u32 s70, s70, {ACT}
v_lshlrev_b32 v10, 4, v1
v_add_u32 v11, {112*1024}, v10
s_mov_b32 s68, 0x05040100
s_mov_b32 s69, 0x07060302""")
        def bl(m):
            b = AB + 8 * (m % NB)
            L = [f"buffer_load_dwordx4 v[{b+4*g}:{b+4*g+3}], v{10+g}, {WS}, s70 offen offset:{1024*(m%4)} sc1" for g in range(2)]
            if m % 4 == 3: L.append("s_add_u32 s70, s70, 4096")
            return L
        def perms(m):
            o = PF + 8 * (m % 2); w = WD + 8*m
            return [f"v_perm_b32 v{o+4*par+k}, v{w+2*k+1}, v{w+2*k}, s{68+par}" for par in range(2) for k in range(4)]
        for m in range(NB):
            for x in bl(m): a(x)
        for x in perms(0): a(x)
        for m in range(14):
            o = PF + 8 * (m % 2); b = AB + 8 * (m % NB)
            mf = []
            for g in range(2):
                for par in range(2):
                    d = f"v[{ACC+32*g+16*par}:{ACC+32*g+16*par+15}]"
                    mf.append(f"v_mfma_f32_32x32x16_bf16 {d}, v[{o+4*par}:{o+4*par+3}], v[{b+4*g}:{b+4*g+3}], {'0' if m == 0 else d}")
            for x in merge(mf, perms(m + 1) if m < 13 else []): a(x)
            if m + NB < 14:
                for x in bl(m + NB): a(x)
        self.stamp("g2")
        XR = 144; GB = 148
        a(f"""s_lshr_b32 s12, s64, 2
s_mul_i32 s12, s12, {224*1024}
s_lshl_b32 s13, s65, 15
s_add_u32 s12, s12, s13
s_lshl_b32 s13, s{S_W3}, 13
s_add_u32 s12, s12, s13
s_and_b32 s13, s64, 3
s_lshl_b32 s13, s13, 8
s_add_u32 s12, s12, s13
s_lshr_b32 s13, s{S_WAVE}, 2
s_lshl_b32 s13, s13, 7
s_add_u32 s12, s12, s13
s_add_u32 s12, s12, {X2}
v_lshlrev_b32 v4, 2, v2
v_lshl_add_u32 v4, v3, 12, v4""")
        for e in range(4):
            a(f"buffer_load_dword v{XR+e}, v4, {WS}, s12 offen offset:{1024*e} sc1")
        a(f"""s_lshl_b32 s12, s65, 9
s_lshl_b32 s13, s{S_W3}, 7
s_add_u32 s12, s12, s13
s_add_u32 s12, s12, {MODG + 5*448*8}
v_lshlrev_b32 v5, 6, v3""")
        for e in range(4):
            a(f"buffer_load_dwordx4 v[{GB+4*e}:{GB+4*e+3}], v5, {WS}, s12 offen offset:{16*e} sc1")
        a(f"""s_lshl_b32 s12, s{S_WAVE}, 14
v_add_u32 v6, s12, v10
s_lshl_b32 s12, s{S_WAVE}, 11
v_add_u32 v8, s12, v10
v_add_u32 v9, 65536, v8
s_barrier""")
        for g in range(2):
            for G in range(4):
                for par in range(2):
                    b = ACC + 32*g + 16*par + 4*G
                    a(f"ds_write_b128 v6, v[{b}:{b+3}] offset:{(g*4 + G)*2048 + par*1024}")
        self.barrier()
        R = 16
        for src in range(8):
            for par in range(2):
                b = R + 8*src + 4*par
                a(f"ds_read_b128 v[{b}:{b+3}], v{8 + src//4} offset:{(src % 4)*16384 + par*1024}")
        self.srd(R_B, P_OUT, 2048 * 896)
        a(f"""s_lshl_b32 s12, s64, 1
s_lshr_b32 s13, s{S_WAVE}, 2
s_add_u32 s12, s12, s13
s_mul_i32 s12, s12, {32*896}
s_lshl_b32 s13, s65, 7
s_add_u32 s12, s12, s13
s_lshl_b32 s13, s{S_W3}, 5
s_add_u32 s12, s12, s13
v_mul_u32_u24 v4, 896, v2
v_lshl_add_u32 v4, v3, 4, v4""")
        for n in (4, 2, 1):
            for src in range(n):
                for k in range(8):
                    a(f"v_add_f32 v{R+8*src+k}, v{R+8*src+k}, v{R+8*(src+n)+k}")
        for e in range(4):
            a(f"""v_lshlrev_b32 v{32+2*e}, 16, v{XR+e}
v_and_b32 v{33+2*e}, 0xffff0000, v{XR+e}
v_fmac_f32 v{32+2*e}, v{GB+4*e}, v{R+e}
v_fmac_f32 v{33+2*e}, v{GB+4*e+2}, v{R+4+e}""")
        for e in range(4):
            a(f"v_cvt_pk_bf16_f32 v{40+e}, v{32+2*e}, v{33+2*e}")
        a(f"buffer_store_dwordx4 v[40:43], v4, {RB}, s12 offen")

    def gemv_loads(self, W, srd, pitch, sbase):
        a = self.a
        for i in range(14):
            if i: a(f"s_add_u32 s{sbase}, s{sbase}, {pitch}")
            a(f"buffer_load_dwordx4 v[{W+4*i}:{W+4*i+3}], v10, s[{srd}:{srd+3}], s{sbase} offen")
    def gemv_block(self, W, vecs, accs, res):
        a = self.a
        a("s_mov_b32 s12, 0x05040100\ns_mov_b32 s13, 0x07060302")
        for j in range(7):
            for e in range(4):
                w0 = W + 8*j + e; w1 = w0 + 4; t = 28 + 2*(e % 2)
                a(f"v_perm_b32 v{t}, v{w1}, v{w0}, s12\nv_perm_b32 v{t+1}, v{w1}, v{w0}, s13")
                for vb, ac in zip(vecs, accs):
                    for h in range(2):
                        c = "0" if j == 0 else f"v{ac+2*e+h}"
                        a(f"v_dot2_f32_bf16 v{ac+2*e+h}, v{t+h}, v{vb+j}, {c}")
        for ac in accs:
            for e in range(8):
                a(f"v_add_f32_dpp v{ac+e}, v{ac+e}, v{ac+e} row_ror:8 row_mask:0xf bank_mask:0xf")
        a(f"""s_lshr_b32 s12, s{S_WAVE}, 2
s_lshl_b32 s12, s12, 13
v_bfe_u32 v28, v0, 4, 4
v_lshlrev_b32 v28, 8, v28
v_and_b32 v29, 7, v0
v_lshl_add_u32 v28, v29, 5, v28
v_add_u32 v28, s12, v28
s_barrier""")
        for vi, ac in enumerate(accs):
            a(f"ds_write_b128 v28, v[{ac}:{ac+3}] offset:{4096*vi}\nds_write_b128 v28, v[{ac+4}:{ac+7}] offset:{4096*vi+16}")
        self.barrier()
        a("v_lshl_add_u32 v28, v1, 2, s12")
        for vi, r in enumerate(res):
            T = W
            for k in range(8):
                a(f"ds_read2_b32 v[{T+2*k}:{T+2*k+1}], v28 offset0:{(2*k)*64 % 256} offset1:{(2*k+1)*64 % 256}")
                if k % 2 == 1: a(f"v_add_u32 v28, 1024, v28")
            n = 16
            while n > 1:
                n //= 2
                for k in range(n):
                    d = r if n == 1 else T + k
                    a(f"v_add_f32 v{d}, v{T+k}, v{T+k+n}")

    def spare_early(self):
        a = self.a
        a(f"""s_lshl_b32 s67, s{S_XCD}, 2
s_add_u32 s67, s67, s{S_SLOT}
s_sub_u32 s67, s67, 28
s_lshr_b32 s12, s{S_WAVE}, 2
s_lshl_b32 s12, s12, 5
s_add_u32 s68, s67, s12
v_bfe_u32 v36, v0, 3, 5
v_mul_u32_u24 v37, 28, v36""")
        self.srd(R_A, P_C, 896)
        for j in range(7):
            a(f"buffer_load_dword v{40+j}, v37, {RA}, 0 offen offset:{4*j}")
        a(f"""s_add_u32 s14, s68, 32
s_sub_u32 s15, s68, 10
s_cmp_lt_u32 s68, 10
s_cselect_b32 s14, s14, s15
s_mul_i32 s12, s14, 37
s_lshr_b32 s12, s12, 8
s_mul_i32 s13, s12, 7
s_sub_u32 s13, s14, s13
s_lshl_b32 s12, s12, 2
s_lshr_b32 s12, 0x523410, s12
s_and_b32 s65, s12, 15
s_mul_i32 s64, s65, 7
s_add_u32 s64, s64, s13
s_lshl_b32 s69, s64, 7
s_cmp_lt_u32 s68, 42
s_cselect_b32 s12, 0, {OOB}
v_mul_u32_u24 v10, {14*5376}, v36
v_and_b32 v11, 7, v0
v_lshl_add_u32 v10, v11, 4, v10
v_or_b32 v10, s12, v10""")
        self.srd(R_B, P_WM, 448 * 5376)
        self.gemv_loads(64, R_B, 5376, 69)
    def spare_main(self):
        a = self.a
        a(f"""s_sub_u32 s12, s68, 28
s_cmp_ge_u32 s68, 28
s_cselect_b32 s70, s12, s68
s_cselect_b32 s71, 1, 0""")
        self.srd_sel(R_A, P_WU, P_WG, 448 * 3584)
        a(f"""s_lshl_b32 s69, s70, 7
s_cmp_lt_u32 s68, 56
s_cselect_b32 s12, 0, {OOB}
v_mul_u32_u24 v10, {14*3584}, v36
v_and_b32 v11, 7, v0
v_lshl_add_u32 v10, v11, 4, v10
v_or_b32 v10, s12, v10""")
        self.gemv_loads(128, R_A, 3584, 69)
        for j in range(7):
            a(f"""v_lshlrev_b32 v28, 16, v{40+j}
v_and_b32 v29, 0xffff0000, v{40+j}
v_mul_f32 v30, {f32(-LOG2E)}, v28
v_mul_f32 v31, {f32(-LOG2E)}, v29
v_exp_f32 v30, v30
v_exp_f32 v31, v31
v_add_f32 v30, 1.0, v30
v_add_f32 v31, 1.0, v31
v_rcp_f32 v30, v30
v_rcp_f32 v31, v31
v_mul_f32 v28, v28, v30
v_mul_f32 v29, v29, v31
v_cvt_pk_bf16_f32 v{40+j}, v28, v29""")
        self.gemv_block(64, [40], [48], [32])
        a(f"""s_cmp_eq_u32 s65, 1
s_cselect_b32 s12, 1.0, 0
s_cmp_eq_u32 s65, 4
s_cselect_b32 s12, 1.0, s12""")
        self.bf16r(32, 32)
        a("v_add_f32 v32, s12, v32")
        self.bf16r(32, 32)
        a(f"""v_mov_b32 v33, s{S_NONCE}
v_lshlrev_b32 v34, 3, v1
s_lshl_b32 s12, s64, 9
s_add_u32 s12, s12, {MODG}
s_cmp_lt_u32 s68, 42
s_cselect_b32 s13, 0, {OOB}
s_cmp_eq_u32 s{S_W3}, 0
s_cselect_b32 s13, s13, {OOB}
v_or_b32 v34, s13, v34
buffer_store_dwordx2 v[32:33], v34, {WS}, s12 offen sc1""")
        self.stamp("kgen")
        a(f"v_mul_u32_u24 v37, 112, v36\ns_mov_b32 s14, {MODG + 3*448*8}")
        loads = [f"buffer_load_dwordx4 v[{64+28*v+4*j}:{64+28*v+4*j+3}], v37, {WS}, s14 offen offset:{3584*v + 16*j} sc1" for v in range(2) for j in range(7)]
        self.poll(loads, [65 + 2*i for i in range(28)], 28, list(range(12, 26)))
        a("s_mov_b32 s13, 0x07060302")
        for v in range(2):
            for j in range(7):
                a(f"v_perm_b32 v{40+8*v+j}, v{64+28*v+4*j+2}, v{64+28*v+4*j}, s13")
        self.gemv_block(128, [48, 40], [64, 72], [32, 33])
        for k in range(2):
            self.bf16r(34, 32 + k)
            a(f"v_sub_f32 v35, v{32+k}, v34\nv_cvt_pk_bf16_f32 v{32+k}, v34, v35")
        a(f"""v_lshrrev_b32 v34, 4, v1
v_lshlrev_b32 v34, 8, v34
v_and_b32 v35, 15, v1
v_lshl_add_u32 v34, v35, 3, v34
s_lshl_b32 s12, s70, 10
s_lshl_b32 s13, s71, 7
s_add_u32 s12, s12, s13
s_add_u32 s12, s12, {CAUG}
s_cmp_lt_u32 s68, 56
s_cselect_b32 s13, 0, {OOB}
s_cmp_eq_u32 s{S_W3}, 0
s_cselect_b32 s13, s13, {OOB}
v_or_b32 v34, s13, v34
buffer_store_dwordx2 v[32:33], v34, {WS}, s12 offen sc1""")
        a.wait(vm=0)
        a(f"""s_barrier
s_lshl_b32 s12, s{S_W3}, 8
s_add_u32 s12, s12, s67
s_add_u32 s12, s12, 224
s_lshl_b32 s12, s12, 6
s_add_u32 s12, s12, {FLG2}""")
        self.flag_store(12)
        self.stamp("pubX2")

    def finish(self):
        a = self.a
        a.label("L_fin"); a.win = []
        if self.stamps:
            a.wait(vm=0)
            self.stamp("end")
            a(f"""s_lshl_b32 s12, s2, 3
s_add_u32 s12, s12, s{S_WAVE}
s_lshl_b32 s12, s12, 7
s_add_u32 s12, s12, {TS}
v_mov_b32 v2, 0
s_mov_b64 exec, 1""")
            for q in range(5):
                for i in range(4): a(f"v_mov_b32 v{4+4*q+i}, s{S_TS+4*q+i}")
                a(f"buffer_store_dwordx4 v[{4+4*q}:{7+4*q}], v2, {WS}, s12 offen offset:{16*q}")
        if self.probe:
            idx = self.stamp_names.index(self.probe) if self.probe != "none" else None
            if idx is None: a("s_mov_b32 s12, 0")
            else:
                a(f"""s_sub_u32 s12, s{S_TS+idx}, s{S_NONCE}
s_cmp_eq_u32 s{S_TS+idx}, 0
s_cselect_b32 s12, 0, s12
s_max_i32 s12, s12, 0
s_min_u32 s12, s12, 10000
s_mul_i32 s12, s12, 10""")
            a(f"s_add_u32 s12, s12, 8000\ns_mov_b32 s9, 1000000")
            a.label("L_pw")
            a(f"""s_memrealtime s[14:15]
s_sub_u32 s13, s14, s{S_NONCE}
s_sub_u32 s9, s9, 1
s_cmp_eq_u32 s9, 0
s_cbranch_scc1 L_exit
s_cmp_lt_i32 s13, s12
s_cbranch_scc1 L_pw""")
        a.label("L_exit")
        a("s_endpgm")

    def build(self):
        a = self.a
        self.prologue()
        if self.stamps:
            for i in range(1, 20): a(f"s_mov_b32 s{S_TS+i}, 0")
        a(f"s_cmp_ge_u32 s{S_SLOT}, 28\ns_cbranch_scc1 L_spare")
        st_spare = a.state()
        self.conv_early()
        self.stamp("early")
        self.get_nonce()
        self.stamp("nonce")
        if self.stamps: a("v_mov_b32 v8, v26")
        self.stamp("xarr")
        self.phase_a_publish()
        self.stamp("pubA")
        self.kgen_common()
        a(f"s_cmp_ge_u32 s{S_WAVE}, 4\ns_cbranch_scc1 L_grpB")
        stB = a.state()
        self.kgen_lo()
        self.kgen_contract_pre()
        self.stamp("chain")
        self.barrier()
        self.kgen_contract()
        self.w13_loads()
        self.stamp("kgen")
        self.barrier()
        self.expand()
        self.conv_pre()
        self.barrier()
        self.stamp("conv0")
        self.conv_main()
        self.barrier()
        self.stamp("conv1")
        self.s_issue()
        a("s_barrier")
        a("s_branch L_join")
        stA_end = a.state()
        a.label("L_grpB"); a.set_state(stB)
        self.kgen_hi()
        self.handoff1_issue()
        self.stamp("chain")
        self.barrier()
        self.make_h()
        self.stamp("kgen")
        self.barrier()
        self.expand()
        self.barrier()
        self.stamp("conv0")
        self.conv_epilogue_pre()
        self.w13_loads()
        self.s_issue()
        self.barrier()
        self.stamp("conv1")
        self.conv_epilogue()
        self.barrier()
        a.wait(vm=0)
        self.flag_store(72)
        self.stamp("pubX2")
        a.label("L_join"); a.set_state(stA_end); a.win = []
        self.w13_stage()
        self.stamp("staged")
        self.barrier2()
        self.stamp("h2")
        self.gemm1()
        self.stamp("pubAct")
        self.gemm2()
        a("s_branch L_fin")
        a.label("L_spare"); a.set_state(st_spare)
        self.spare_early()
        self.get_nonce()
        self.phase_a_publish()
        self.stamp("pubA")
        self.spare_main()
        self.finish()
        body = a.text()
        return f"""{HEADER}; @launch grid=(256,1,1) block=(512,1,1) lds={LDS_BYTES}
.amdgcn_target "amdgcn-amd-amdhsa--gfx950"
.text
.globl {KNAME}
.p2align 8
.type {KNAME},@function
{KNAME}:
{body}.section .rodata,"a"
.p2align 6
.amdhsa_kernel {KNAME}
  .amdhsa_next_free_vgpr 256
  .amdhsa_next_free_sgpr 102
  .amdhsa_accum_offset 256
  .amdhsa_group_segment_fixed_size 0
  .amdhsa_kernarg_size 144
  .amdhsa_user_sgpr_count 2
  .amdhsa_user_sgpr_kernarg_segment_ptr 1
  .amdhsa_system_sgpr_workgroup_id_x 1
.end_amdhsa_kernel
"""

if __name__ == "__main__":
    out = sys.argv[1]
    probe = sys.argv[sys.argv.index("--probe") + 1] if "--probe" in sys.argv else None
    g = Gen(stamps="--stamps" in sys.argv or probe is not None, probe=probe)
    open(out, "w").write(g.build())
    if g.stamps: open(out + ".names", "w").write(repr(g.stamp_names))
    print("instructions", g.a.nins, "nop states", g.a.nops, "stamps", g.stamp_names)
```

```python
import sys, struct, math
from asmlib import *

KNAME = "adaLN_cond__ssm_conv_s4__swiglu_ffn__prompt_kernel"
HEADER = open("adaLN_cond__ssm_conv_s4__swiglu_ffn__prompt.s.ref").read().split("; Override launch")[0]

XG, STAT, MODG, FLG2, CAUG, FLG3, X2, ACT, TS = 0x0, 0x400000, 0x410000, 0x420000, 0x440000, 0x450000, 0x500000, 0x700000, 0xF00000
WS_BYTES = 0x1000000
OOB = 0x7fff0000
S_WAVE, S_XCD, S_SLOT, S_PAIR, S_NONCE, S_W3 = 4, 5, 6, 7, 8, 3
P_U, P_ARE, P_AIM, P_BRE, P_BIM, P_CRE, P_CIM, P_LDT, P_DSK, P_BX, P_WG, P_WU, P_WD, P_C, P_WM, P_OUT, P_DBG, P_WS = range(16, 52, 2)
R_WS, R_A, R_B, R_D = 52, 56, 60, 96
S_RB, S_FC = 66, 67
S_TS = 76
SPIN = 20000
CODE_SHARE = 11
WS = f"s[{R_WS}:{R_WS+3}]"
RA = f"s[{R_A}:{R_A+3}]"
RB = f"s[{R_B}:{R_B+3}]"
RD = f"s[{R_D}:{R_D+3}]"
TP = 73 * 256
L_T = 0
L_H = 2 * TP
HP = 4576
L_E = L_H + 2 * HP
EP = 528
EW = 54 * EP
CP = 4160
L_Y = L_E + 8 * CP
L_XS = L_Y + 32768
LDS_BYTES = 163840
assert L_E + 4 * EW <= LDS_BYTES and L_Y + 32768 <= LDS_BYTES
L_W = 0
WM = 448 * 128

def f32(x): return "0x%08x" % struct.unpack("<I", struct.pack("<f", x))[0]
LOG2E = 1.4426950408889634

class Gen:
    def __init__(self, stamps=False, probe=None):
        self.a = Asm(); self.stamps = stamps; self.uid = 0; self.probe = probe
        self.stamp_names = []
    def lab(self, n):
        self.uid += 1
        return f"L_{n}_{self.uid}"
    def srd(self, r, p, nbytes):
        self.a(f"s_mov_b32 s{r}, s{p}\ns_mov_b32 s{r+1}, s{p+1}\ns_mov_b32 s{r+2}, {nbytes}\ns_mov_b32 s{r+3}, 0x00020000")
    def srd_sel(self, r, p1, p0, nbytes):
        self.a(f"s_cselect_b32 s{r}, s{p1}, s{p0}\ns_cselect_b32 s{r+1}, s{p1+1}, s{p0+1}\ns_mov_b32 s{r+2}, {nbytes}\ns_mov_b32 s{r+3}, 0x00020000")
    def stamp(self, name):
        if not self.stamps: return
        a = self.a
        if name not in self.stamp_names: self.stamp_names.append(name)
        idx = self.stamp_names.index(name)
        assert idx < 20, self.stamp_names
        a.wait(lgkm=0)
        a("s_memrealtime s[14:15]")
        a(f"s_mov_b32 s{S_TS + idx}, s14")
    def barrier(self):
        self.a.wait(lgkm=0)
        self.a("s_barrier")
    def poll(self, loads, tags, dst, tmp, issued=False, masked=False, sleep=0):
        a = self.a
        ok = self.lab("ok"); lp = self.lab("spin"); out = self.lab("out")
        if issued:
            self.tagcheck(dst, tags, tmp)
            a(f"v_cmp_ne_u32 vcc, 0, v{dst}\ns_cbranch_vccz {ok}")
        st = a.state()
        a(f"s_mov_b32 s9, {SPIN}")
        a.label(lp)
        if masked: a("s_mov_b64 exec, vcc")
        for x in loads: a(x)
        self.tagcheck(dst, tags, tmp)
        a(f"v_cmp_ne_u32 vcc, 0, v{dst}\ns_cbranch_vccz {out}")
        if sleep: a(f"s_sleep {sleep}")
        a(f"s_sub_u32 s9, s9, 1\ns_cmp_lg_u32 s9, 0\ns_cbranch_scc1 {lp}")
        a.label(out)
        if masked: a("s_mov_b64 exec, -1")
        a.label(ok)
        if issued: a.set_state(st)
    def tagcheck(self, dst, tags, tmp):
        a = self.a; parts = []
        n = (len(tags) + 1) // 2
        for i in range(0, len(tags) - 1, 2):
            o = dst if n == 1 else tmp[i//2]
            a(f"v_bitop3_b32 v{o}, v{tags[i]}, v{tags[i+1]}, s{S_NONCE} bitop3:0x7e"); parts.append(o)
        if len(tags) % 2:
            o = dst if n == 1 else tmp[len(tags)//2]
            a(f"v_xor_b32 v{o}, s{S_NONCE}, v{tags[-1]}"); parts.append(o)
        while len(parts) > 1:
            if len(parts) >= 3:
                o = dst if len(parts) == 3 else parts[0]
                a(f"v_or3_b32 v{o}, v{parts[0]}, v{parts[1]}, v{parts[2]}"); parts = parts[3:] + [o]
            else:
                a(f"v_or_b32 v{dst}, v{parts[0]}, v{parts[1]}"); parts = [dst]
    def bf16r(self, d, s):
        self.a(f"v_cvt_pk_bf16_f32 v{d}, v{s}, v{s}\nv_and_b32 v{d}, 0xffff0000, v{d}")

    def prologue(self):
        a = self.a
        a(f"""s_cmp_ge_u32 s2, 256
s_cbranch_scc1 L_exit
s_load_dwordx4 s[48:51], s[0:1], 128
s_load_dwordx16 s[16:31], s[0:1], 0
s_load_dwordx16 s[32:47], s[0:1], 64
s_memrealtime s[10:11]
v_lshrrev_b32 v2, 6, v0
v_and_b32 v1, 63, v0
v_readfirstlane_b32 s{S_WAVE}, v2
s_and_b32 s{S_XCD}, s2, 7
s_lshr_b32 s{S_SLOT}, s2, 3
s_mul_i32 s{S_PAIR}, s{S_XCD}, 28
s_add_u32 s{S_PAIR}, s{S_PAIR}, s{S_SLOT}
s_and_b32 s{S_W3}, s{S_WAVE}, 3
v_and_b32 v186, 255, v0
v_and_b32 v3, 31, v0
v_lshrrev_b32 v4, 5, v186
v_mul_u32_u24 v4, 896, v4
v_lshl_add_u32 v4, v3, 4, v4
v_mov_b32 v5, {OOB}
v_cmp_gt_u32 vcc, 28, v3
s_mul_i32 s12, s2, {8*896}
v_cndmask_b32 v4, v5, v4, vcc
v_and_b32 v5, 3, v0
v_mul_u32_u24 v5, 1792, v5
v_and_b32 v6, 0xfc, v0
v_add3_u32 v5, v5, v6, s12
v_mov_b32 v7, 0
s_lshl_b32 s13, s{S_PAIR}, 10
v_lshl_add_u32 v10, v186, 2, s13
""")
        a.wait(lgkm=0)
        if self.stamps:
            self.stamp_names = ["start"]
            a(f"s_mov_b32 s{S_TS}, s10")
        self.srd(R_D, P_DBG, 256)
        nn = self.lab("nononce")
        a(f"""s_or_b32 s13, s2, s{S_WAVE}
s_cmp_lg_u32 s13, 0
s_cbranch_scc1 {nn}
s_or_b32 s13, s10, 1
v_mov_b32 v8, s13
v_lshlrev_b32 v9, 7, v1
s_mov_b64 exec, 3
buffer_store_dword v8, v9, {RD}, 0 offen sc1
s_mov_b64 exec, -1""")
        a.vm = []
        a.label(nn)
        self.srd(R_WS, P_WS, WS_BYTES)

    def phase_a_loads(self):
        a = self.a
        self.srd(R_A, P_U, 2048 * 896)
        a(f"buffer_load_dwordx4 v[12:15], v4, {RA}, s12 offen")
        a(f"buffer_load_dwordx4 v[16:19], v4, {RA}, s12 offen offset:448")
        for k in range(4):
            a(f"buffer_load_dword v{20+4*k}, v5, {RA}, 0 offen offset:{256*k}")
            a(f"buffer_load_dword v{22+4*k}, v5, {RA}, 0 offen offset:{256*k+896}")
    def nonce_sample(self):
        self.a(f"s_load_dword s{S_NONCE}, s[{P_DBG}:{P_DBG+1}], 0")
    def get_nonce(self):
        a = self.a
        ok = self.lab("nonce_ok"); lp = self.lab("nonce_poll")
        a(f"s_cmp_lg_u32 s{S_NONCE}, 0")
        st = a.state()
        a(f"s_cbranch_scc1 {ok}\ns_mov_b32 s9, {SPIN}")
        self.stamp("nfail")
        a.label(lp)
        a(f"""buffer_load_dword v8, v7, {RD}, 0 offen offset:128 sc1
v_readfirstlane_b32 s{S_NONCE}, v8
s_sub_u32 s9, s9, 1
s_cmp_eq_u32 s9, 0
s_cbranch_scc1 {ok}
s_cmp_eq_u32 s{S_NONCE}, 0
s_cbranch_scc1 {lp}""")
        a.label(ok)
        a.set_state(st); a.win = []
        a("s_nop 1")

    def phase_a_addr(self):
        self.a(f"""v_and_b32 v5, 3, v0
v_lshlrev_b32 v5, 4, v5
v_lshrrev_b32 v6, 2, v186
v_lshl_add_u32 v5, v6, 7, v5
v_mov_b32 v6, {OOB}
v_cmp_gt_u32 vcc, 128, v186
v_add_u32 v56, 0x4000, v5
v_add_u32 v57, 0x6000, v5
v_cndmask_b32 v57, v6, v57, vcc
v_add_u32 v6, 0x2000, v5
v_lshrrev_b32 v4, 5, v186
v_lshlrev_b32 v4, 3, v4
s_lshr_b32 s70, s2, 1
s_mul_i32 s70, s70, 28672
s_and_b32 s13, s2, 1
s_lshl_b32 s13, s13, 6
s_add_u32 s70, s70, s13
s_add_u32 s70, s70, {XG}
s_lshl_b32 s71, s2, 6
s_add_u32 s71, s71, {STAT}""")
    def phase_a(self):
        a = self.a
        a("s_mov_b32 s13, 0x3f803f80")
        a(f"v_dot2_f32_bf16 v2, v12, s13, 0\nv_dot2_f32_bf16 v3, v12, v12, 0")
        self.nonce_sample()
        for r in range(13, 20):
            a(f"v_dot2_f32_bf16 v2, v{r}, s13, v2\nv_dot2_f32_bf16 v3, v{r}, v{r}, v3")
        for sh in (1, 2, 4, 8):
            a(f"v_add_f32_dpp v2, v2, v2 row_shr:{sh} row_mask:0xf bank_mask:0xf bound_ctrl:0")
            a(f"v_add_f32_dpp v3, v3, v3 row_shr:{sh} row_mask:0xf bank_mask:0xf bound_ctrl:0")
        a("v_add_f32_dpp v2, v2, v2 row_bcast:15 row_mask:0xa bank_mask:0xf")
        a("v_add_f32_dpp v3, v3, v3 row_bcast:15 row_mask:0xa bank_mask:0xf")
        self.ln_finish(2, 3, 14)
        a("v_cvt_pk_bf16_f32 v2, v2, v3")
        self.stamp("xarr")
        self.get_nonce()
        a(f"""v_mov_b32 v3, s{S_NONCE}
s_mov_b32 exec_lo, 0x80000000
s_mov_b32 exec_hi, 0x80000000
buffer_store_dwordx2 v[2:3], v4, {WS}, s71 offen sc1
s_mov_b64 exec, -1""")
        for k, ad in enumerate((5, 6, 56, 57)):
            a(f"v_mov_b32 v{21+4*k}, s{S_NONCE}\nv_mov_b32 v{23+4*k}, s{S_NONCE}")
            a(f"buffer_store_dwordx4 v[{20+4*k}:{23+4*k}], v{ad}, {WS}, s70 offen sc1")

    def ln_finish(self, vs, vq, t):
        a = self.a
        a(f"""v_mul_f32 v{vs}, {f32(1/448)}, v{vs}
v_mul_f32 v{vq}, {f32(1/448)}, v{vq}
v_fma_f32 v{vq}, -v{vs}, v{vs}, v{vq}
v_max_f32 v{vq}, 0, v{vq}""")
        self.bf16r(vq, vq)
        a(f"v_add_f32 v{vq}, {f32(1e-5)}, v{vq}")
        self.bf16r(vq, vq)
        a(f"v_sqrt_f32 v{vq}, v{vq}")

    V_PAR = 36
    V_GA = 44
    def zero_stamps(self):
        if self.stamps:
            for i in range(1, 20): self.a(f"s_mov_b32 s{S_TS+i}, 0")
    def param_loads(self, n0, n1):
        a = self.a
        for i, p in list(enumerate((P_ARE, P_AIM, P_BRE, P_BIM, P_CRE, P_CIM)))[n0:n1]:
            self.srd(R_B, p, 448 * 512)
            a(f"buffer_load_dword v{self.V_PAR+i}, v10, {RB}, 0 offen")
    def conv_scalars(self):
        self.a(f"""s_lshl_b32 s13, s{S_PAIR}, 2
s_load_dword s64, s[{P_LDT}:{P_LDT+1}], s13
s_load_dword s65, s[{P_DSK}:{P_DSK+1}], s13
s_and_b32 s{S_RB}, s{S_XCD}, 1
s_lshl_b32 s{S_RB}, s{S_RB}, 2
s_and_b32 s13, s{S_SLOT}, 3
s_add_u32 s{S_RB}, s{S_RB}, s13
s_lshr_b32 s{S_FC}, s{S_XCD}, 1
s_mul_i32 s{S_FC}, s{S_FC}, 7
s_lshr_b32 s13, s{S_SLOT}, 2
s_add_u32 s{S_FC}, s{S_FC}, s13""")
    def code_touch(self):
        a = self.a
        sk = self.lab("ct"); pc = self.lab("pc")
        a(f"s_cmp_lg_u32 s{S_WAVE}, 0\ns_cbranch_scc1 {sk}")
        st = a.state()
        a("s_getpc_b64 s[12:13]")
        a.label(pc)
        a(f"""s_mul_i32 s14, s{S_SLOT}, {CODE_SHARE}
v_min_u32 v57, {CODE_SHARE-1}, v1
v_add_u32 v57, s14, v57
v_lshlrev_b32 v57, 7, v57
v_min_u32 v57, L_exit-{pc}, v57
v_mov_b32 v59, s13
v_add_co_u32 v58, vcc, s12, v57
v_addc_co_u32 v59, vcc, 0, v59, vcc
global_load_dword v57, v[58:59], off""")
        a.label(sk); a.set_state(st); a.win = []
    def lds_zero(self):
        self.a(f"""v_mov_b32 v60, 0
v_mov_b32 v61, 0
v_lshlrev_b32 v11, 3, v1
ds_write_b64 v11, v[60:61] offset:{L_H}
ds_write_b64 v11, v[60:61] offset:{L_H + HP}
ds_write_b64 v7, v[60:61] offset:{L_T + 9*256}
ds_write_b64 v7, v[60:61] offset:{L_T + TP + 9*256}""")
    def gather_addrs(self):
        L = ["v_lshlrev_b32 v59, 3, v186", "v_sub_u32 v59, 2047, v59", "v_cvt_f32_u32 v59, v59"]
        for m in range(0, 11, 2):
            L += [f"v_add_f32 v60, {f32(-m)}, v59", f"v_add_f32 v61, {f32(-m-1)}, v59", "v_cvt_pk_bf16_f32 v62, v60, v61"]
            for h in range(2):
                if m + h > 10: continue
                g = self.V_GA + m + h
                L += ["v_lshlrev_b32 v63, 16, v62" if h == 0 else "v_and_b32 v63, 0xffff0000, v62",
                      "v_cvt_u32_f32 v63, v63", f"v_and_b32 v{g}, 0xf8, v63", "v_and_b32 v11, 7, v63",
                      f"v_lshl_or_b32 v{g}, v11, 8, v{g}", "v_lshrrev_b32 v11, 8, v63", f"v_lshl_or_b32 v{g}, v11, 11, v{g}"]
        L += [f"v_mov_b32 v11, {9*256}", "v_cmp_eq_u32 vcc, 255, v186"]
        L += [f"v_cndmask_b32 v{self.V_GA+m}, v{self.V_GA+m}, v11, vcc" for m in range(8, 11)]
        return L
    def touch(self, srd, share_lines, index_sreg, vt=57):
        self.a(f"""s_mul_i32 s13, s{index_sreg}, {share_lines*128}
v_min_u32 v{vt}, {share_lines-1}, v1
v_lshl_add_u32 v{vt}, v{vt}, 7, s13
buffer_load_dword v{vt+1}, v{vt}, s[{srd}:{srd+3}], 0 offen""")
    def warm_wmod(self):
        a = self.a
        sk = self.lab("wm")
        a(f"s_sub_u32 s14, s{S_WAVE}, 1\ns_cmp_ge_u32 s14, 2\ns_cbranch_scc1 {sk}")
        st = a.state()
        self.srd(R_B, P_WM, 448 * 5376)
        a(f"s_lshl_b32 s13, s{S_PAIR}, 1\ns_add_u32 s14, s14, s13")
        self.touch(R_B, 42, 14)
        a.label(sk); a.set_state(st); a.win = []
    def warm_w13(self):
        a = self.a
        a(f"s_bitcmp1_b32 s{S_W3}, 1")
        self.srd_sel(R_B, P_WU, P_WG, 448 * 3584)
        a(f"s_lshl_b32 s13, s{S_PAIR}, 1\ns_and_b32 s14, s{S_W3}, 1\ns_add_u32 s14, s14, s13")
        self.touch(R_B, 28, 14)

    def cmul(self, d, x, r, t):
        return [f"v_pk_mul_f32 v[{t}:{t+1}], v[{x}:{x+1}], v[{r}:{r+1}] op_sel_hi:[1,0]",
                f"v_pk_fma_f32 v[{d}:{d+1}], v[{x}:{x+1}], v[{r}:{r+1}], v[{t}:{t+1}] op_sel:[1,1,0] op_sel_hi:[0,1,1] neg_lo:[0,1,0]"]

    def kgen_common(self):
        a = self.a; P = self.V_PAR
        a(f"""s_lshl_b32 s12, s64, 16
s_and_b32 s13, s64, 0xffff0000
s_cmp_lt_u32 s{S_W3}, 2
s_cselect_b32 s64, s12, s13
s_lshl_b32 s12, s65, 16
s_and_b32 s13, s65, 0xffff0000
s_cmp_lt_u32 s{S_W3}, 2
s_cselect_b32 s65, s12, s13
s_bitcmp1_b32 s{S_WAVE}, 0
s_cselect_b32 s65, 0, s65
s_mul_i32 s68, s{S_W3}, {EW}
s_add_u32 s68, s68, {L_E}""")
        lh = struct.unpack("<f", struct.pack("<f", LOG2E))[0]
        a(f"""v_mov_b32 v2, {f32(lh)}
v_mul_f32 v3, s64, v2
v_fma_f32 v4, s64, v2, -v3
v_mov_b32 v2, {f32(LOG2E - lh)}
v_fma_f32 v4, s64, v2, v4
v_exp_f32 v3, v3
v_mul_f32 v4, {f32(math.log(2))}, v4
v_fma_f32 v3, v3, v4, v3""")
        self.bf16r(2, 3)
        a(f"v_lshl_add_u32 v10, v1, 3, s68")
        for k in range(2):
            u = 80 + 6*k
            for i in range(2):
                a(f"v_lshlrev_b32 v{u+i}, 16, v{P+i}" if k == 0 else f"v_and_b32 v{u+i}, 0xffff0000, v{P+i}")
            a(f"""v_mul_f32 v{u}, v2, v{u}
v_mul_f32 v{u+1}, v2, v{u+1}
v_mul_f32 v{u}, {f32(LOG2E)}, v{u}
v_mul_f32 v{u+1}, {f32(1/(2*math.pi))}, v{u+1}""")
    def rho(self, L, R, sg):
        a = self.a
        for k in range(2):
            u = 80 + 6*k; t = 92 + 2*k
            a(f"v_mul_f32 v{t}, {f32(L)}, v{u}\nv_mul_f32 v{t+1}, {f32(L)}, v{u+1}\nv_fract_f32 v{t+1}, v{t+1}")
        for k in range(2):
            t = 92 + 2*k
            a(f"v_exp_f32 v{t}, v{t}\nv_cos_f32 v{R[k]}, v{t+1}\nv_sin_f32 v{R[k]+1}, v{t+1}")
        for k in range(2):
            t = 92 + 2*k
            a(f"v_mul_f32 v{R[k]}, v{t}, v{R[k]}\nv_mul_f32 v{R[k]+1}, {sg}v{t}, v{R[k]+1}")
    def chain_runner(self):
        outs = [96, 98, 100, 102]; st = {"i": 0, "pend": None}; seq = []
        T = [92, 94]
        def put(row, src):
            o = outs[st["i"] % 4]; st["i"] += 1
            return [f"v_cvt_pk_bf16_f32 v{o}, v{src[0]}, v{src[0]+1}", f"v_cvt_pk_bf16_f32 v{o+1}, v{src[1]}, v{src[1]+1}",
                    f"ds_write_b64 v10, v[{o}:{o+1}] offset:{row*EP}"]
        def first(row, src): st["pend"] = put(row, src)
        def chain(dst, src, rho, row):
            m0 = self.cmul(dst[0], src[0], rho[0], T[0]); m1 = self.cmul(dst[1], src[1], rho[1], T[1])
            p = st["pend"]
            seq.extend([m0[0], m1[0], p[0], m0[1], m1[1], p[1], p[2]])
            st["pend"] = put(row, dst)
        def done():
            seq.extend(st["pend"]); return seq
        return first, chain, done
    def kgen_lo(self):
        a = self.a
        R8 = [72, 74]; pp = [[80, 82], [84, 86]]
        self.rho(8, R8, "-")
        a(f"v_mov_b32 v102, 0x3f80\nv_mov_b32 v103, 0x3f80\nds_write_b64 v10, v[102:103] offset:{22*EP}")
        first, chain, done = self.chain_runner()
        first(23, R8); cur = R8
        for c in range(2, 32):
            chain(pp[c % 2], cur, R8, 22 + c); cur = pp[c % 2]
        for s in done(): a(s)
    def kgen_hi(self):
        a = self.a; P = self.V_PAR
        W = [64, 66]; R1 = [68, 70]; R256 = [76, 78]; pp = [[80, 82], [84, 86]]
        for k in range(2):
            u = 80 + 6*k
            for i in range(2, 6):
                a(f"v_lshlrev_b32 v{u+i}, 16, v{P+i}" if k == 0 else f"v_and_b32 v{u+i}, 0xffff0000, v{P+i}")
            a(f"""v_mul_f32 v{u+2}, v2, v{u+2}
v_mul_f32 v{u+3}, v2, v{u+3}
v_mul_f32 v{W[k]}, v{u+4}, v{u+2}
v_mul_f32 v{W[k]+1}, v{u+4}, v{u+3}
v_fma_f32 v{W[k]}, -v{u+5}, v{u+3}, v{W[k]}
v_fma_f32 v{W[k]+1}, v{u+5}, v{u+2}, v{W[k]+1}""")
        self.rho(1, R1, "")
        self.rho(256, R256, "")
        first, chain, done = self.chain_runner()
        keep = {0: W, 2: [104, 106], 4: [108, 110], 6: [112, 114]}
        first(0, W); cur = W
        for j in range(1, 8):
            nxt = keep.get(j, pp[(j // 2) % 2])
            chain(nxt, cur, R1, j); cur = nxt
        A0 = [116, 118]; A4 = [120, 122]; B0 = [124, 126]; B4 = [128, 130]
        for dst, src, row in ((A0, keep[0], 8), (A4, keep[4], 12), (pp[0], keep[2], 9), (pp[1], keep[6], 13),
                              (B0, A0, 10), (B4, A4, 14), (A0, B0, 11), (A4, B4, 15),
                              (B0, A0, 16), (A0, B0, 17), (B0, A0, 18), (A0, B0, 20), (B0, A0, 21)):
            chain(dst, src, R256, row)
        for s in done(): a(s)

    def kgen_contract(self):
        a = self.a
        ACC = 64; F = 96
        def rd(s):
            b = F + 8 * (s % 7)
            return [f"ds_read_b128 v[{b}:{b+3}], v10 offset:{32*s}", f"ds_read_b128 v[{b+4}:{b+7}], v10 offset:{22*EP + 32*s}"]
        for s in range(7):
            for x in rd(s): a(x)
        for s in range(16):
            b = F + 8 * (s % 7)
            a(f"v_mfma_f32_32x32x16_bf16 v[{ACC}:{ACC+15}], v[{b}:{b+3}], v[{b+4}:{b+7}], v[{ACC}:{ACC+15}]")
            if s + 7 < 16:
                for x in rd(s + 7): a(x)
        for i, row in enumerate((0, 1, 2, 3, 8, 10, 16, 24)):
            a(f"ds_write_b32 v11, v{ACC+i} offset:{L_T + row*256}")
        for i, row in enumerate((32, 40, 48)):
            a(f"ds_write_b32 v12, v{ACC+8+i} offset:{L_T + row*256}")
    def kgen_contract_pre(self):
        a = self.a; ACC = 64
        a(f"""v_and_b32 v2, 31, v1
v_mul_u32_u24 v10, {EP}, v2
v_lshrrev_b32 v3, 5, v1
v_lshl_add_u32 v10, v3, 4, v10
v_add_u32 v10, s68, v10
s_lshr_b32 s12, s{S_W3}, 1
s_mul_i32 s12, s12, {TP}
s_and_b32 s13, s{S_W3}, 1
s_lshl_b32 s13, s13, 2
s_add_u32 s12, s12, s13
v_lshl_add_u32 v2, v2, 3, s12
v_mul_u32_u24 v12, {24*256}, v3
v_add_u32 v12, v12, v2
v_lshl_add_u32 v11, v3, 10, v2
v_mov_b32 v3, s65
v_cmp_eq_u32 vcc, 0, v1""")
        for i in range(1, 16): a(f"v_mov_b32 v{ACC+i}, 0")
        a(f"v_cndmask_b32 v{ACC}, v{ACC+1}, v3, vcc")

    def expand(self, ch):
        a = self.a; G = 64; O = 96
        for m in range(11):
            a(f"ds_read_b64 v[{G+2*m}:{G+2*m+1}], v{self.V_GA+m} offset:{L_T + ch*TP}")
        a(f"""v_lshlrev_b32 v10, 4, v186
v_add_u32 v10, {L_E + ch*4*CP}, v10
v_lshrrev_b32 v11, 1, v0
v_mul_u32_u24 v11, {CP}, v11
v_and_b32 v12, 1, v0
v_lshl_add_u32 v11, v12, 4, v11
v_mov_b32 v60, 0
v_mov_b32 v61, 0
v_mov_b32 v62, 0
v_mov_b32 v63, 0
v_cmp_gt_u32 vcc, 16, v0
s_and_saveexec_b64 s[12:13], vcc
ds_write_b128 v11, v[60:63] offset:{L_E + 4096}
s_mov_b64 exec, s[12:13]""")
        for m in range(11):
            a(f"v_add_f32 v{G+2*m}, v{G+2*m}, v{G+2*m+1}")
        for c in range(4):
            o = O + 4*c
            for k in range(4):
                m = c + 2*k
                a(f"v_cvt_pk_bf16_f32 v{o+k}, v{G+2*m}, v{G+2*(m+1)}")
            a(f"ds_write_b128 v10, v[{o}:{o+3}] offset:{c*CP}")

    V_XG = 136
    V_SG = 152
    V_MG = 168
    def handoff1_loads(self):
        L = [f"buffer_load_dwordx4 v[{self.V_XG+4*k}:{self.V_XG+4*k+3}], v{180+k}, {WS}, 0 offen sc1" for k in range(4)]
        L += [f"buffer_load_dwordx4 v[{self.V_SG+4*k}:{self.V_SG+4*k+3}], v{187 + k//2}, {WS}, {'s75' if k % 2 else '0'} offen sc1" for k in range(4)]
        return L
    def handoff1_addr(self):
        self.a(f"""v_lshrrev_b32 v180, 3, v186
v_mul_u32_u24 v180, 28672, v180
v_and_b32 v181, 7, v0
v_lshl_add_u32 v180, v181, 4, v180
s_lshl_b32 s13, s{S_PAIR}, 7
s_add_u32 s13, s13, {XG}
v_add_u32 v180, s13, v180
v_add_u32 v181, {32*28672}, v180
v_add_u32 v182, {64*28672}, v180
v_add_u32 v183, {96*28672}, v180
s_mov_b32 s75, 4096
v_lshlrev_b32 v187, 4, v186
v_add_u32 v187, {STAT}, v187
v_add_u32 v188, 8192, v187
s_lshl_b32 s13, s{S_PAIR}, 4
s_add_u32 s13, s13, {MODG}
v_mov_b32 v184, s13
v_add_u32 v185, {2*448*8}, v184""")
    def mod_loads(self):
        MG = self.V_MG
        return [f"buffer_load_dwordx4 v[{MG}:{MG+3}], v184, {WS}, 0 offen sc1",
                f"buffer_load_dwordx4 v[{MG+4}:{MG+7}], v184, {WS}, 0 offen offset:{448*8} sc1",
                f"buffer_load_dwordx4 v[{MG+8}:{MG+11}], v185, {WS}, 0 offen sc1"]

    V_XV = 120
    def make_z(self):
        a = self.a
        tags = [self.V_XG + 2*i + 1 for i in range(8)] + [self.V_SG + 2*i + 1 for i in range(8)]
        self.poll(self.handoff1_loads(), tags, 60, list(range(64, 74)), issued=True, masked=True)
        self.stamp("h1")
        MS = 64; H = 80
        for i in range(8):
            g = self.V_SG + 2*i
            a(f"v_and_b32 v{MS+2*i+1}, 0xffff0000, v{g}\nv_lshlrev_b32 v{MS+2*i}, 16, v{g}\nv_rcp_f32 v{MS+2*i+1}, v{MS+2*i+1}")
        for i in range(8):
            g = self.V_XG + 2*i
            a(f"v_lshlrev_b32 v{H+2*i}, 16, v{g}\nv_and_b32 v{H+2*i+1}, 0xffff0000, v{g}")
        for i in range(8):
            x = f"v[{H+2*i}:{H+2*i+1}]"
            a(f"v_pk_add_f32 {x}, {x}, v[{MS+2*i}:{MS+2*i+1}] op_sel_hi:[1,0] neg_lo:[0,1] neg_hi:[0,1]")
        for i in range(8):
            x = f"v[{H+2*i}:{H+2*i+1}]"
            a(f"v_pk_mul_f32 {x}, {x}, v[{MS+2*i}:{MS+2*i+1}] op_sel:[0,1] op_sel_hi:[1,1]")
        a(f"v_lshlrev_b32 v10, 2, v186\nv_lshlrev_b32 v11, 3, v186\nv_add_u32 v11, {L_XS}, v11")
        for k in range(4):
            for ch in range(2):
                o = 64 + 2*k + ch; b = H + 4*k + ch
                a(f"v_cvt_pk_bf16_f32 v{o}, v{b}, v{b+2}")
                a(f"ds_write_b32 v10, v{o} offset:{L_H + ch*HP + 480 + 1024*k}")
        for k in range(4):
            g = self.V_XG + 4*k
            a(f"v_mov_b32 v{g+1}, v{g+2}\nds_write_b64 v11, v[{g}:{g+1}] offset:{2048*k}")
    def x_fetch(self):
        a = self.a; XV = self.V_XV; g = self.V_XG
        a(f"v_lshlrev_b32 v11, 4, v186\nv_add_u32 v11, {L_XS}, v11")
        for r in range(2): a(f"ds_read_b128 v[{g+4*r}:{g+4*r+3}], v11 offset:{4096*r}")
        for i in range(8):
            a(f"v_lshlrev_b32 v{XV+2*i}, 16, v{g+i}\nv_and_b32 v{XV+2*i+1}, 0xffff0000, v{g+i}")

    def cum_k(self):
        a = self.a
        BL = 80; OW = 108; P = 44; S = 48; CU = 64
        a(f"""v_lshlrev_b32 v10, 3, v1
v_sub_u32 v10, {L_E + 2*(2044 - 1792)}, v10
s_lshl_b32 s12, s{S_W3}, 9
v_subrev_u32 v11, s12, v10""")
        for ch in range(2):
            for q in range(7):
                a(f"ds_read_b64 v[{BL+14*ch+2*q}:{BL+14*ch+2*q+1}], v10 offset:{ch*4*CP + 512*(7-q)}")
        for r in range(2):
            for ch in range(2):
                a(f"ds_read_b64 v[{OW+4*r+2*ch}:{OW+4*r+2*ch+1}], v11 offset:{ch*4*CP + 512*(7-4*r)}")
        a("s_mov_b32 s12, 0x3f803f80")
        for q in range(3):
            a(f"s_cmp_gt_u32 s{S_W3}, {q}\ns_cselect_b32 s{13+q}, s12, 0")
        for ch in range(2):
            for r in range(2):
                d = P + 2*r + ch; first = True
                for q in (range(3) if r == 0 else range(7)):
                    w = f"s{13 + q % 4}" if (r == 0 or q >= 4) else "s12"
                    for h in range(2):
                        a(f"v_dot2_f32_bf16 v{d}, v{BL+14*ch+2*q+h}, {w}, {'0' if first else f'v{d}'}"); first = False
        for r in range(2):
            for ch in range(2):
                o = OW + 4*r + 2*ch; c = CU + 8*r + 4*ch
                a(f"""v_and_b32 v{c}, 0xffff0000, v{o+1}
v_lshlrev_b32 v{c+1}, 16, v{o+1}
v_and_b32 v{c+2}, 0xffff0000, v{o}
v_lshlrev_b32 v{c+3}, 16, v{o}
v_add_f32 v{c+1}, v{c}, v{c+1}
v_add_f32 v{c+2}, v{c+1}, v{c+2}
v_add_f32 v{c+3}, v{c+2}, v{c+3}
v_mov_b32 v{S+2*r+ch}, v{c+3}""")
        for mod in [f"row_shr:{sh} row_mask:0xf bank_mask:0xf bound_ctrl:0" for sh in (1, 2, 4, 8)] + \
                   ["row_bcast:15 row_mask:0xa bank_mask:0xf", "row_bcast:31 row_mask:0xc bank_mask:0xf"]:
            for k in range(8): a(f"v_add_f32_dpp v{P+k}, v{P+k}, v{P+k} {mod}")
        for k in range(4): a(f"v_readlane_b32 s{12+k}, v{P+k}, 63")
        for k in range(4): a(f"v_sub_f32 v{S+k}, v{S+k}, v{CU+4*k+3}")
        for k in range(4): a(f"v_add_f32 v{S+k}, s{12+k}, v{S+k}")
        for k in range(4):
            for e in range(4): a(f"v_add_f32 v{CU+4*k+e}, v{S+k}, v{CU+4*k+e}")

    def conv_pre(self):
        a = self.a
        a(f"""s_lshr_b32 s12, s{S_W3}, 1
s_and_b32 s14, s{S_W3}, 1
s_lshl_b32 s15, s14, 8
s_mul_i32 s13, s12, {4*CP}
s_add_u32 s13, s13, s15
s_add_u32 s13, s13, {L_E + 2*(1804 - 1792)}
v_and_b32 v2, 3, v1
v_sub_u32 v2, 3, v2
v_mul_u32_u24 v2, {CP}, v2
v_lshrrev_b32 v3, 4, v1
v_bfe_u32 v4, v1, 2, 2
v_lshlrev_b32 v5, 1, v3
v_sub_u32 v4, v5, v4
v_lshlrev_b32 v4, 3, v4
v_add3_u32 v10, v2, v4, s13
s_mul_i32 s13, s12, {HP}
s_add_u32 s13, s13, s15
s_add_u32 s13, s13, {L_H}
v_and_b32 v2, 15, v1
v_lshlrev_b32 v4, 5, v2
v_lshl_add_u32 v4, v3, 4, v4
v_add_u32 v11, s13, v4
v_bfe_u32 v4, v1, 1, 2
v_xor_b32 v4, v4, v3
v_lshl_add_u32 v4, v2, 2, v4
v_lshlrev_b32 v4, 4, v4
s_lshl_b32 s13, s{S_W3}, 13
s_add_u32 s13, s13, {L_Y}
v_add_u32 v12, s13, v4""")
    def conv_main(self):
        a = self.a
        ACC = 16; F = 64
        def fa(s, j): return F + 64 * (s % 2) + 4 * j
        def fb(s, p): return F + 64 * (s % 2) + 32 + 4 * p
        def reads(s):
            out = []
            for k in range(8):
                out.append(f"ds_read_b64 v[{fa(s,k)}:{fa(s,k)+1}], v10 offset:{512*(7-k) + 64*s}")
                out.append(f"ds_read_b64 v[{fa(s,k)+2}:{fa(s,k)+3}], v10 offset:{512*(7-k) + 64*s + 8}")
                out.append(f"ds_read_b128 v[{fb(s,k)}:{fb(s,k)+3}], v11 offset:{512*k + 64*s}")
            return out
        for x in reads(0): a(x)
        for s in range(4):
            if s < 3: trip = sorted([(max(j, Q - j), Q, j) for Q in range(8) for j in range(Q + 1)])
            else: trip = [(0, Q, j) for Q in range(8) for j in range(Q + 1)]
            seen = set(); mf = []
            for _, Q, j in trip:
                d = f"v[{ACC+4*Q}:{ACC+4*Q+3}]"
                c = "0" if (s == 0 and Q not in seen) else d
                seen.add(Q)
                mf.append(f"v_mfma_f32_16x16x32_bf16 {d}, v[{fa(s,j)}:{fa(s,j)+3}], v[{fb(s,Q-j)}:{fb(s,Q-j)+3}], {c}")
            if s < 3:
                seq = merge(mf, reads(s + 1))
                if s >= 1: seq = merge(seq, self.w13_loads()[7*(s-1):7*s])
            else:
                seq = []; k = 0
                wr = lambda Q: f"ds_write_b128 v12, v[{ACC+4*Q}:{ACC+4*Q+3}] offset:{1024*Q}"
                at = {12: 0, 15: 1, 18: 2, 21: 3, 24: 4, 29: 5}
                for i, x in enumerate(mf):
                    seq.append(x)
                    if i in at: seq.append(wr(at[i]))
                seq += [wr(6), wr(7)]
            for x in seq: a(x)

    def conv_epilogue_pre(self):
        a = self.a; MG = self.V_MG; XV = self.V_XV; CU = 64
        self.poll(self.mod_loads(), [MG + 2*i + 1 for i in range(6)], 60, [61, 62, 63], issued=True, sleep=2)
        for ch in range(2):
            a(f"v_mul_f32 v{MG+2*ch}, v{MG+8+2*ch}, v{MG+2*ch}\nv_mul_f32 v{MG+4+2*ch}, v{MG+8+2*ch}, v{MG+4+2*ch}")
        for r in range(2):
            for ch in range(2):
                for e in range(4):
                    a(f"v_fmac_f32 v{XV+2*(4*r+e)+ch}, v{MG+2*ch}, v{CU+8*r+4*ch+e}")
        a(f"""v_bfe_u32 v2, v1, 3, 2
v_xor_b32 v2, v2, v186
v_lshlrev_b32 v2, 4, v2
v_add_u32 v2, {L_Y}, v2
s_mul_i32 s12, s{S_W3}, {224*1024}
s_lshl_b32 s13, s{S_PAIR}, 10
s_add_u32 s12, s12, s13
s_add_u32 s70, s12, {X2}
s_add_u32 s71, s70, {4*224*1024}
v_lshlrev_b32 v3, 4, v1
s_lshl_b32 s12, s{S_W3}, 8
s_add_u32 s12, s12, s{S_PAIR}
s_lshl_b32 s12, s12, 6
s_add_u32 s72, s12, {FLG2}""")
    def conv_epilogue(self):
        a = self.a; AL = self.V_MG + 4; XV = self.V_XV; Y = 64
        for r in range(2):
            for ch in range(2):
                for kh in range(2):
                    b = Y + 16*r + 8*ch + 4*kh
                    a(f"ds_read_b128 v[{b}:{b+3}], v2 offset:{16384*ch + 8192*kh + 4096*r}")
        for r in range(2):
            for ch in range(2):
                for e in range(4):
                    b = Y + 16*r + 8*ch + e
                    a(f"v_add_f32 v{b}, v{b}, v{b+4}\nv_fmac_f32 v{XV+2*(4*r+e)+ch}, v{AL+2*ch}, v{b}")
            for e in range(4):
                i = 4*r + e
                a(f"v_cvt_pk_bf16_f32 v{96+i}, v{XV+2*i}, v{XV+2*i+1}")
            a(f"buffer_store_dwordx4 v[{96+4*r}:{99+4*r}], v3, {WS}, s{70+r} offen sc1")
    def flag_store(self, sreg):
        a = self.a
        a(f"v_mov_b32 v8, s{S_NONCE}\nv_mov_b32 v7, 0")
        a(f"s_mov_b64 exec, 1\nbuffer_store_dword v8, v7, {WS}, s{sreg} offen sc1\ns_mov_b64 exec, -1")

    V_WR = 192
    def w13_addr(self):
        a = self.a
        a(f"s_cmp_ge_u32 s{S_WAVE}, 4")
        self.srd_sel(R_A, P_WU, P_WG, 448 * 3584)
        a(f"""v_lshrrev_b32 v248, 3, v1
v_mul_u32_u24 v249, {14*3584}, v248
v_and_b32 v250, 7, v1
v_lshl_add_u32 v249, v250, 4, v249
s_mul_i32 s74, s{S_W3}, {112*3584}
s_lshl_b32 s13, s{S_FC}, 7
s_add_u32 s74, s74, s13
v_mul_u32_u24 v251, 112, v248
s_mul_i32 s73, s{S_W3}, 896
s_add_u32 s73, s73, {MODG + 4*448*8}""")
    def w13_loads(self):
        L = []
        for i in range(14):
            x = f"buffer_load_dwordx4 v[{self.V_WR+4*i}:{self.V_WR+4*i+3}], v249, {RA}, s74 offen offset:{3584*(i%2)}"
            if i % 2 == 1: x += f"\ns_add_u32 s74, s74, {2*3584}"
            L.append(x)
        return L
    V_SV = 16
    def s_loads(self):
        return [f"buffer_load_dwordx4 v[{self.V_SV+4*j}:{self.V_SV+4*j+3}], v251, {WS}, s73 offen offset:{16*j} sc1" for j in range(7)]
    def s_check(self):
        SV = self.V_SV
        self.poll(self.s_loads(), [SV + 2*i + 1 for i in range(14)], 60, list(range(52, 59)), issued=True, sleep=2)
    def w13_stage(self, hook=None):
        a = self.a; SV = self.V_SV
        a(f"""s_lshr_b32 s12, s{S_WAVE}, 2
s_mul_i32 s13, s12, {WM}
s_mul_i32 s14, s{S_W3}, {112*128}
s_add_u32 s13, s13, s14
s_add_u32 s13, s13, {L_W}
s_lshl_b32 s12, s12, 2
v_and_b32 v60, 1, v248
v_lshlrev_b32 v60, 1, v60
v_xor_b32 v60, v60, v250
v_xor_b32 v60, s12, v60
v_mul_u32_u24 v61, {14*128}, v248
v_lshl_add_u32 v60, v60, 4, v61
v_add_u32 v60, s13, v60
v_xor_b32 v61, 32, v60""")
        for i in range(14):
            w = self.V_WR + 4*i; s = SV + 2*i; t = 64 + 8*(i % 2); o = 80 + 4*(i % 2)
            a(f"v_lshrrev_b32 v{s+1}, 16, v{s}")
            for e in range(4):
                a(f"v_dot2_f32_bf16 v{t+2*e}, v{w+e}, v{s+1}, 0")
                a(f"v_dot2_f32_bf16 v{t+2*e+1}, v{w+e}, v{s}, 0")
            for e in range(4):
                a(f"v_cvt_pk_bf16_f32 v{o+e}, v{t+2*e}, v{t+2*e+1}")
            a(f"ds_write_b128 v{60 + (i//2) % 2}, v[{o}:{o+3}] offset:{128*i}")
            if hook: hook(i)

    def barrier2(self):
        a = self.a
        sk = self.lab("nopoll")
        a(f"s_cmp_ge_u32 s{S_WAVE}, 4\ns_cbranch_scc1 {sk}")
        st = a.state()
        a(f"""s_and_b32 s12, s{S_RB}, 3
s_lshl_b32 s12, s12, 14
s_add_u32 s12, s12, {FLG2}
v_min_u32 v62, 223, v0
v_lshlrev_b32 v62, 6, v62
s_mov_b64 vcc, -1""")
        self.poll([f"buffer_load_dword v63, v62, {WS}, s12 offen sc1"], [63], 60, [], masked=True)
        a.label(sk); a.set_state(st); a.win = []
        self.barrier()

    def x2_touch(self):
        self.a(f"""s_lshr_b32 s12, s{S_SLOT}, 2
s_lshl_b32 s12, s12, 15
s_mul_i32 s13, s{S_RB}, {224*1024}
s_add_u32 s12, s12, s13
s_lshl_b32 s13, s{S_WAVE}, 7
s_add_u32 s12, s12, s13
s_add_u32 s12, s12, {X2}
v_lshl_add_u32 v8, v2, 10, s12
buffer_load_dword v9, v8, {WS}, 0 offen sc1""")

    V_B = 80
    def gemm1(self):
        a = self.a; B = self.V_B
        ACC = 16; AF = 48; NA = 3
        AUG = 72
        a(f"""v_and_b32 v2, 31, v1
v_lshrrev_b32 v3, 5, v1
v_lshlrev_b32 v4, 2, v2
v_lshl_add_u32 v4, v3, 12, v4
s_mul_i32 s12, s{S_RB}, {224*1024}
s_lshl_b32 s13, s{S_WAVE}, 7
s_add_u32 s12, s12, s13
s_add_u32 s12, s12, {X2}
v_add_u32 v4, s12, v4
v_bfe_u32 v5, v1, 4, 1
v_bfe_u32 v6, v1, 2, 2
v_lshl_add_u32 v8, v3, 3, v6
v_lshlrev_b32 v8, 7, v8
v_mul_u32_u24 v9, {WM}, v5
v_add_u32 v8, v8, v9
v_lshrrev_b32 v6, 1, v6
v_lshl_add_u32 v6, v5, 1, v6
v_lshl_add_u32 v8, v6, 5, v8
v_and_b32 v6, 3, v1
v_lshl_add_u32 v10, v6, 3, v8
v_add_u32 v10, {L_W}, v10
v_xor_b32 v11, 32, v10
v_lshlrev_b32 v12, 4, v2
s_lshl_b32 s71, s{S_FC}, 11
s_add_u32 s71, s71, {CAUG}
s_lshl_b32 s12, s{S_RB}, 3
s_add_u32 s12, s12, s{S_WAVE}
s_mul_i32 s13, s12, 28
s_add_u32 s13, s13, s{S_FC}
s_lshl_b32 s72, s13, 12
s_add_u32 s72, s72, {ACT}
s_lshl_b32 s73, s13, 6
s_add_u32 s73, s73, {FLG3}
v_lshlrev_b32 v13, 4, v1""")
        def xl(s):
            L = [f"buffer_load_dword v{B+4*s+e}, v4, {WS}, 0 offen offset:{1024*e} sc1" for e in range(4)]
            return L + [f"v_add_u32 v4, 8192, v4"]
        def ard(s):
            b = AF + 8 * (s % NA)
            return [f"ds_read_b64_tr_b16 v[{b+4*t+2*h}:{b+4*t+2*h+1}], v{10+t} offset:{2048*s + 512*h}" for t in range(2) for h in range(2)]
        def cond_barrier(first_group):
            sk = self.lab("cb")
            a(f"s_cmp_ge_u32 s{S_WAVE}, 4\n" + ("s_cbranch_scc1" if first_group else "s_cbranch_scc0") + f" {sk}\ns_barrier")
            a.label(sk)
        NPRE = 8
        for p in range(2):
            if p == 0:
                cond_barrier(False)
                self.x2_touch()
                for s in range(NPRE):
                    for x in xl(s): a(x)
            augl = [f"buffer_load_dwordx4 v[{AUG+4*t}:{AUG+4*t+3}], v12, {WS}, s71 offen offset:{1024*p + 512*t} sc1" for t in range(2)]
            if p == 1:
                for x in augl: a(x)
            for s in range(NA - 1):
                for x in ard(s): a(x)
            a("s_setprio 1")
            for s in range(28):
                if p == 0 and s in (1,): self.stamp(f"g1s{s}")
                b = AF + 8 * (s % NA)
                nxt = ard(s + NA - 1) if s + NA - 1 < 28 else []
                ld = xl(s + NPRE) if (p == 0 and s + NPRE < 28) else []
                for t in range(2):
                    d = f"v[{ACC+16*t}:{ACC+16*t+15}]"
                    for x in nxt[2*t:2*t+2]: a(x)
                    a(f"v_mfma_f32_32x32x16_bf16 {d}, v[{b+4*t}:{b+4*t+3}], v[{B+4*s}:{B+4*s+3}], {'0' if s == 0 else d}")
                    for x in (ld[:2] if t == 0 else ld[2:]): a(x)
                if p == 0 and s + NPRE == 27:
                    for x in augl: a(x)
                    cond_barrier(True)
            a("s_setprio 0")
            if p == 0:
                self.stamp("g1p0")
                a("v_xor_b32 v10, 64, v10\nv_xor_b32 v11, 64, v11\ns_mov_b32 s12, 0x3f803f80")
                for k in range(112):
                    j = k % 2
                    if k < 2: a(f"v_dot2_f32_bf16 v{48+j}, v{B+k}, s12, 0\nv_dot2_f32_bf16 v{50+j}, v{B+k}, v{B+k}, 0")
                    else: a(f"v_dot2c_f32_bf16 v{48+j}, s12, v{B+k}\nv_dot2c_f32_bf16 v{50+j}, v{B+k}, v{B+k}")
                a("""v_add_f32 v48, v48, v49
v_add_f32 v50, v50, v51
v_mov_b32 v49, v48
v_mov_b32 v51, v50
v_permlane32_swap_b32 v48, v49
v_permlane32_swap_b32 v50, v51
v_add_f32 v48, v48, v49
v_add_f32 v50, v50, v51""")
                self.ln_finish(48, 50, 52)
                a(f"""v_cvt_pk_bf16_f32 v4, -v48, -v48
v_cvt_pk_bf16_f32 v6, v50, v50
v_mov_b32 v5, 0
v_mov_b32 v7, 0
v_and_b32 v50, 0xffff0000, v6
v_rcp_f32 v50, v50
v_cmp_gt_u32 vcc, 32, v1
v_mul_f32 v14, {f32(-LOG2E)}, v50
v_mul_f32 v15, v50, v50
v_cndmask_b32 v4, 0, v4, vcc
v_cndmask_b32 v6, 0, v6, vcc""")
            self.poll(augl, [AUG + 2*i + 1 for i in range(4)], 48, [49, 50], issued=True, sleep=2)
            for i in range(4): a(f"v_mov_b32 v{AUG+2*i+1}, 0")
            for t in range(2):
                d = f"v[{ACC+16*t}:{ACC+16*t+15}]"
                a(f"v_mfma_f32_32x32x16_bf16 {d}, v[{AUG+4*t}:{AUG+4*t+3}], v[4:7], {d}")
            for t in range(2):
                g = ACC + 16*t; T = 48; O = 56 + 4*t
                for i in range(8): a(f"v_mul_f32 v{T+i}, v14, v{g+i}")
                for i in range(8): a(f"v_exp_f32 v{T+i}, v{T+i}\nv_mul_f32 v{g+i}, v{g+i}, v{g+8+i}")
                for i in range(8): a(f"v_add_f32 v{T+i}, 1.0, v{T+i}")
                for i in range(8): a(f"v_rcp_f32 v{T+i}, v{T+i}\nv_mul_f32 v{g+i}, v15, v{g+i}")
                for i in range(8): a(f"v_mul_f32 v{g+i}, v{g+i}, v{T+i}")
                for i in range(4): a(f"v_cvt_pk_bf16_f32 v{O+i}, v{g+2*i}, v{g+2*i+1}")
                a(f"buffer_store_dwordx4 v[{O}:{O+3}], v13, {WS}, s72 offen offset:{2048*p + 1024*t} sc1")
            if p == 1: self.stamp("g1e1")
        a.wait(vm=0)
        self.flag_store(73)

    def gemm2(self):
        a = self.a
        WD = 144; ACC = 16; AB = 80; NB = 6; PF = 128
        self.srd(R_A, P_WD, 1792 * 896)
        a(f"""s_lshl_b32 s64, s{S_XCD}, 2
s_and_b32 s12, s{S_SLOT}, 3
s_add_u32 s64, s64, s12
s_lshr_b32 s65, s{S_SLOT}, 2
v_and_b32 v2, 31, v1
v_lshrrev_b32 v3, 5, v1
v_mul_u32_u24 v4, {4*896}, v3
v_lshl_add_u32 v4, v2, 2, v4
s_mul_i32 s12, s{S_WAVE}, {14*16*896}
s_lshl_b32 s13, s65, 7
s_add_u32 s12, s12, s13
v_add_u32 v4, s12, v4""")
        for m in range(14):
            for i in range(8):
                a(f"buffer_load_dword v{WD+8*m+i}, v4, {RA}, 0 offen offset:{896*(i%4)}")
                if i % 4 == 3: a(f"v_add_u32 v4, {8*896}, v4")
        a(f"""v_min_u32 v6, 55, v1
v_lshlrev_b32 v6, 6, v6
s_mul_i32 s12, s64, {56*64}
s_add_u32 s12, s12, {FLG3}""")
        self.poll([f"buffer_load_dword v8, v6, {WS}, s12 offen sc1"], [8], 9, [])
        self.stamp("h3")
        a(f"""s_mul_i32 s70, s64, {2*112*1024}
s_mul_i32 s12, s{S_WAVE}, {14*1024}
s_add_u32 s70, s70, s12
s_add_u32 s70, s70, {ACT}
v_lshlrev_b32 v10, 4, v1
v_add_u32 v11, {112*1024}, v10
s_mov_b32 s68, 0x05040100
s_mov_b32 s69, 0x07060302""")
        def bl(m):
            b = AB + 8 * (m % NB)
            L = [f"buffer_load_dwordx4 v[{b+4*g}:{b+4*g+3}], v{10+g}, {WS}, s70 offen offset:{1024*(m%4)} sc1" for g in range(2)]
            if m % 4 == 3: L.append("s_add_u32 s70, s70, 4096")
            return L
        def perms(m):
            o = PF + 8 * (m % 2); w = WD + 8*m
            return [f"v_perm_b32 v{o+4*par+k}, v{w+2*k+1}, v{w+2*k}, s{68+par}" for par in range(2) for k in range(4)]
        for m in range(NB):
            for x in bl(m): a(x)
        for x in perms(0): a(x)
        for m in range(14):
            o = PF + 8 * (m % 2); b = AB + 8 * (m % NB)
            mf = []
            for g in range(2):
                for par in range(2):
                    d = f"v[{ACC+32*g+16*par}:{ACC+32*g+16*par+15}]"
                    mf.append(f"v_mfma_f32_32x32x16_bf16 {d}, v[{o+4*par}:{o+4*par+3}], v[{b+4*g}:{b+4*g+3}], {'0' if m == 0 else d}")
            for x in merge(mf, perms(m + 1) if m < 13 else []): a(x)
            if m + NB < 14:
                for x in bl(m + NB): a(x)
        self.stamp("g2")
        XR = 144; GB = 148
        a(f"""s_lshr_b32 s12, s64, 2
s_mul_i32 s12, s12, {224*1024}
s_lshl_b32 s13, s65, 15
s_add_u32 s12, s12, s13
s_lshl_b32 s13, s{S_W3}, 13
s_add_u32 s12, s12, s13
s_and_b32 s13, s64, 3
s_lshl_b32 s13, s13, 8
s_add_u32 s12, s12, s13
s_lshr_b32 s13, s{S_WAVE}, 2
s_lshl_b32 s13, s13, 7
s_add_u32 s12, s12, s13
s_add_u32 s12, s12, {X2}
v_lshlrev_b32 v4, 2, v2
v_lshl_add_u32 v4, v3, 12, v4""")
        for e in range(4):
            a(f"buffer_load_dword v{XR+e}, v4, {WS}, s12 offen offset:{1024*e} sc1")
        a(f"""s_lshl_b32 s12, s65, 9
s_lshl_b32 s13, s{S_W3}, 7
s_add_u32 s12, s12, s13
s_add_u32 s12, s12, {MODG + 5*448*8}
v_lshlrev_b32 v5, 6, v3""")
        a("s_mov_b32 s71, s12")
        gbl = [f"buffer_load_dwordx4 v[{GB+4*e}:{GB+4*e+3}], v5, {WS}, s71 offen offset:{16*e} sc1" for e in range(4)]
        for x in gbl: a(x)
        a(f"""s_lshl_b32 s12, s{S_WAVE}, 14
v_add_u32 v6, s12, v10
s_lshl_b32 s12, s{S_WAVE}, 11
v_add_u32 v8, s12, v10
v_add_u32 v9, 65536, v8
s_barrier""")
        for g in range(2):
            for G in range(4):
                for par in range(2):
                    b = ACC + 32*g + 16*par + 4*G
                    a(f"ds_write_b128 v6, v[{b}:{b+3}] offset:{(g*4 + G)*2048 + par*1024}")
        self.barrier()
        R = 16
        for src in range(8):
            for par in range(2):
                b = R + 8*src + 4*par
                a(f"ds_read_b128 v[{b}:{b+3}], v{8 + src//4} offset:{(src % 4)*16384 + par*1024}")
        self.srd(R_B, P_OUT, 2048 * 896)
        a(f"""s_lshl_b32 s12, s64, 1
s_lshr_b32 s13, s{S_WAVE}, 2
s_add_u32 s12, s12, s13
s_mul_i32 s12, s12, {32*896}
s_lshl_b32 s13, s65, 7
s_add_u32 s12, s12, s13
s_lshl_b32 s13, s{S_W3}, 5
s_add_u32 s12, s12, s13
v_mul_u32_u24 v4, 896, v2
v_lshl_add_u32 v4, v3, 4, v4""")
        self.poll(gbl, [GB + 2*i + 1 for i in range(8)], 168, [169, 170, 171, 172], issued=True, sleep=2)
        for n in (4, 2, 1):
            for src in range(n):
                for k in range(8):
                    a(f"v_add_f32 v{R+8*src+k}, v{R+8*src+k}, v{R+8*(src+n)+k}")
        for e in range(4):
            a(f"""v_lshlrev_b32 v{32+2*e}, 16, v{XR+e}
v_and_b32 v{33+2*e}, 0xffff0000, v{XR+e}
v_fmac_f32 v{32+2*e}, v{GB+4*e}, v{R+e}
v_fmac_f32 v{33+2*e}, v{GB+4*e+2}, v{R+4+e}""")
        for e in range(4):
            a(f"v_cvt_pk_bf16_f32 v{40+e}, v{32+2*e}, v{33+2*e}")
        a(f"buffer_store_dwordx4 v[40:43], v4, {RB}, s12 offen")

    L_VEC = 2 * 448 * 128
    def gemv_dma(self, srd, pitch, sbase, valid):
        a = self.a
        sk = self.lab("nodma")
        a(f"""s_cmp_ge_u32 s68, {valid}
s_cbranch_scc1 {sk}
v_mul_u32_u24 v10, {pitch}, v36
v_lshl_add_u32 v11, v38, 4, v10
v_lshl_add_u32 v10, v37, 4, v10
s_mul_i32 s12, s{S_W3}, {112*pitch}
s_add_u32 s{sbase}, s{sbase}, s12
s_mul_i32 s12, s{S_WAVE}, {112*128}""")
        for i in range(14):
            a(f"s_mov_b32 m0, s12\ns_add_u32 s12, s12, 1024")
            a(f"buffer_load_dwordx4 v{10 + i % 2}, s[{srd}:{srd+3}], s{sbase} offen lds")
            a(f"s_add_u32 s{sbase}, s{sbase}, {8*pitch}")
        a.label(sk)
    def gemv_mma(self):
        a = self.a
        a.wait(vm=0, lgkm=0)
        a("s_barrier")
        for s in range(14):
            b = 64 + 8*s
            a(f"ds_read_b64_tr_b16 v[{b}:{b+1}], v40 offset:{4096*s}")
            a(f"ds_read_b64_tr_b16 v[{b+2}:{b+3}], v40 offset:{4096*s + 512}")
            a(f"ds_read_b128 v[{b+4}:{b+7}], v41 offset:{64*s}")
        for s in range(14):
            b = 64 + 8*s
            a(f"v_mfma_f32_16x16x32_bf16 v[32:35], v[{b}:{b+3}], v[{b+4}:{b+7}], {'0' if s == 0 else 'v[32:35]'}")

    def spare(self):
        a = self.a; LV = self.L_VEC
        self.zero_stamps()
        self.srd(R_A, P_C, 896)
        a(f"""v_lshlrev_b32 v39, 1, v0
buffer_load_ushort v60, v39, {RA}, 0 offen
s_lshl_b32 s67, s{S_XCD}, 2
s_add_u32 s67, s67, s{S_SLOT}
s_sub_u32 s67, s67, 28
s_lshr_b32 s12, s{S_WAVE}, 2
s_lshl_b32 s12, s12, 5
s_add_u32 s68, s67, s12
s_add_u32 s14, s68, 22
s_sub_u32 s15, s68, 10
s_cmp_lt_u32 s68, 10
s_cselect_b32 s14, s14, s15
s_cmp_ge_u32 s68, 32
s_cselect_b32 s14, s68, s14
s_mul_i32 s12, s14, 37
s_lshr_b32 s12, s12, 8
s_mul_i32 s13, s12, 7
s_sub_u32 s13, s14, s13
s_lshl_b32 s12, s12, 2
s_lshr_b32 s12, 0x534210, s12
s_and_b32 s65, s12, 15
s_mul_i32 s64, s65, 7
s_add_u32 s64, s64, s13
s_lshl_b32 s69, s64, 7
v_lshrrev_b32 v36, 3, v1
v_and_b32 v37, 2, v36
v_and_b32 v38, 7, v1
v_xor_b32 v37, v37, v38
v_xor_b32 v38, 4, v37
v_lshrrev_b32 v42, 4, v1
v_bfe_u32 v43, v1, 2, 2
v_lshl_add_u32 v40, v42, 3, v43
v_lshlrev_b32 v40, 7, v40
v_lshrrev_b32 v43, 1, v43
v_and_b32 v44, 1, v42
v_lshl_add_u32 v43, v44, 1, v43
v_xor_b32 v43, s{S_W3}, v43
v_lshl_add_u32 v40, v43, 5, v40
v_and_b32 v43, 3, v1
v_lshl_add_u32 v40, v43, 3, v40
s_lshr_b32 s12, s{S_WAVE}, 2
s_mul_i32 s12, s12, {448*128}
v_add_u32 v40, s12, v40
v_and_b32 v43, 1, v1
v_lshlrev_b32 v43, 10, v43
v_lshl_add_u32 v41, v42, 4, v43
v_add_u32 v41, {LV}, v41
v_add_u32 v39, {LV}, v39""")
        self.srd(R_B, P_WM, 448 * 5376)
        sk = self.lab("spB")
        a(f"s_cmp_lt_u32 s{S_WAVE}, 4\ns_cbranch_scc1 {sk}")
        st = a.state()
        self.phase_a_addr()
        self.phase_a()
        a("s_setprio 0")
        a(f"v_mov_b32 v4, {LV + 2048}\nds_write_b32 v4, v3")
        self.stamp("pubA")
        a.label(sk); a.set_state(st); a.win = []
        a("s_barrier")
        self.gemv_dma(R_B, 5376, 69, 42)
        a.wait(vm=0)
        a(f"""v_lshlrev_b32 v60, 16, v60
v_mul_f32 v62, {f32(-LOG2E)}, v60
v_exp_f32 v62, v62
v_add_f32 v62, 1.0, v62
v_rcp_f32 v62, v62
v_mul_f32 v60, v60, v62
v_cvt_pk_bf16_f32 v60, v60, v60
ds_write_b16 v39, v60
ds_write_b16 v39, v60 offset:1024""")
        self.stamp("chain")
        self.gemv_mma()
        a(f"v_mov_b32 v4, {LV + 2048}\nds_read_b32 v8, v4\nv_readfirstlane_b32 s{S_NONCE}, v8")
        a(f"""s_cmp_eq_u32 s65, 1
s_cselect_b32 s12, 1.0, 0
s_cmp_eq_u32 s65, 4
s_cselect_b32 s12, 1.0, s12""")
        for e in range(4):
            self.bf16r(32 + e, 32 + e)
            a(f"v_add_f32 v{32+e}, s12, v{32+e}")
            self.bf16r(48 + 2*e, 32 + e)
            a(f"v_mov_b32 v{49+2*e}, s{S_NONCE}")
        a(f"""v_lshlrev_b32 v45, 5, v42
s_lshl_b32 s12, s64, 9
s_lshl_b32 s13, s{S_W3}, 7
s_add_u32 s12, s12, s13
s_add_u32 s12, s12, {MODG}
s_cmp_lt_u32 s68, 42
s_cselect_b32 s13, 0, {OOB}
v_or_b32 v45, s13, v45
s_mov_b32 exec_lo, 0x00010001
s_mov_b32 exec_hi, 0x00010001
buffer_store_dwordx4 v[48:51], v45, {WS}, s12 offen sc1
buffer_store_dwordx4 v[52:55], v45, {WS}, s12 offen offset:16 sc1
s_mov_b64 exec, -1""")
        self.stamp("kgen")
        a(f"""s_barrier
s_sub_u32 s68, s{S_SLOT}, 28
s_lshl_b32 s68, s68, 1
s_lshr_b32 s12, s{S_WAVE}, 2
s_add_u32 s68, s68, s12
s_lshr_b32 s70, s{S_XCD}, 1
s_mul_i32 s70, s70, 7
s_add_u32 s70, s70, s68
s_and_b32 s71, s{S_XCD}, 1""")
        self.srd_sel(R_A, P_WU, P_WG, 448 * 3584)
        a("s_lshl_b32 s69, s70, 7")
        self.gemv_dma(R_A, 3584, 69, 7)
        a(f"v_min_u32 v46, 447, v0\nv_lshlrev_b32 v46, 3, v46\nv_add_u32 v46, {MODG + 3*448*8}, v46\ns_mov_b64 vcc, -1")
        loads = [f"buffer_load_dwordx2 v[{56+2*v}:{57+2*v}], v46, {WS}, 0 offen offset:{3584*v} sc1" for v in range(2)]
        self.poll(loads, [57, 59], 47, [], masked=True, sleep=2)
        self.stamp("h1")
        a("ds_write_b16_d16_hi v39, v58\nds_write_b16_d16_hi v39, v56 offset:1024")
        self.gemv_mma()
        for e in range(4):
            self.bf16r(47, 32 + e)
            a(f"v_sub_f32 v46, v{32+e}, v47\nv_cvt_pk_bf16_f32 v{48+2*e}, v47, v46\nv_mov_b32 v{49+2*e}, s{S_NONCE}")
        a(f"""v_lshlrev_b32 v45, 6, v42
v_and_b32 v46, 1, v1
v_lshl_add_u32 v45, v46, 3, v45
s_lshl_b32 s12, s70, 11
s_lshl_b32 s13, s71, 8
s_add_u32 s12, s12, s13
s_lshl_b32 s13, s{S_W3}, 9
s_add_u32 s12, s12, s13
s_add_u32 s12, s12, {CAUG}
s_cmp_lt_u32 s68, 7
s_cselect_b32 s13, 0, {OOB}
v_or_b32 v45, s13, v45
s_mov_b32 exec_lo, 0x00030003
s_mov_b32 exec_hi, 0x00030003""")
        for e in range(4):
            a(f"buffer_store_dwordx2 v[{48+2*e}:{49+2*e}], v45, {WS}, s12 offen offset:{16*e} sc1")
        a("s_mov_b64 exec, -1")
        self.stamp("pubX2")

    def finish(self):
        a = self.a
        a.label("L_fin"); a.win = []
        if self.stamps:
            a.wait(vm=0)
            self.stamp("end")
            a(f"""s_lshl_b32 s12, s2, 3
s_add_u32 s12, s12, s{S_WAVE}
s_lshl_b32 s12, s12, 7
s_add_u32 s12, s12, {TS}
v_mov_b32 v2, 0
s_mov_b64 exec, 1""")
            for q in range(5):
                for i in range(4): a(f"v_mov_b32 v{4+4*q+i}, s{S_TS+4*q+i}")
                a(f"buffer_store_dwordx4 v[{4+4*q}:{7+4*q}], v2, {WS}, s12 offen offset:{16*q}")
        if self.probe:
            idx = self.stamp_names.index(self.probe) if self.probe != "none" else None
            if idx is None: a("s_mov_b32 s12, 0")
            else:
                a(f"""s_sub_u32 s12, s{S_TS+idx}, s{S_NONCE}
s_cmp_eq_u32 s{S_TS+idx}, 0
s_cselect_b32 s12, 0, s12
s_max_i32 s12, s12, 0
s_min_u32 s12, s12, 10000
s_mul_i32 s12, s12, 10""")
            a(f"s_add_u32 s12, s12, 8000\ns_mov_b32 s9, 1000000")
            a.label("L_pw")
            a(f"""s_memrealtime s[14:15]
s_sub_u32 s13, s14, s{S_NONCE}
s_sub_u32 s9, s9, 1
s_cmp_eq_u32 s9, 0
s_cbranch_scc1 L_exit
s_cmp_lt_i32 s13, s12
s_cbranch_scc1 L_pw""")
        a.label("L_exit")
        a("s_endpgm")

    def build(self):
        a = self.a
        self.prologue()
        l1 = self.lab("e1"); l2 = self.lab("e2")
        a(f"s_cmp_lt_u32 s{S_WAVE}, 4\ns_cbranch_scc1 {l1}\ns_setprio 2")
        self.phase_a_loads()
        a.label(l1)
        a(f"s_cmp_ge_u32 s{S_SLOT}, 28\ns_cbranch_scc1 L_spare")
        st_spare = a.state()
        self.param_loads(0, 2)
        a(f"s_cmp_lt_u32 s{S_WAVE}, 4\ns_cbranch_scc1 {l2}")
        stA = a.state()
        self.param_loads(2, 6)
        self.zero_stamps()
        self.conv_scalars()
        self.phase_a_addr()
        self.handoff1_addr()
        self.phase_a()
        a(f"ds_write_b32 v7, v3 offset:{L_T + 11*256}")
        self.stamp("pubA")
        a("s_setprio 0")
        a("s_branch L_grpB")
        stB = a.state()
        a.label(l2); a.set_state(stA)
        self.code_touch()
        self.zero_stamps()
        self.conv_scalars()
        self.lds_zero()
        for x in self.gather_addrs(): a(x)
        self.w13_addr()
        a.wait(vm=0)
        self.warm_wmod()
        self.kgen_common()
        self.stamp("xarr")
        self.kgen_lo()
        self.kgen_contract_pre()
        self.stamp("chain")
        self.barrier()
        a(f"ds_read_b32 v8, v7 offset:{L_T + 11*256}")
        self.kgen_contract()
        a(f"v_readfirstlane_b32 s{S_NONCE}, v8")
        self.stamp("kgen")
        self.barrier()
        self.expand(0)
        self.conv_pre()
        a("s_setprio 1")
        self.barrier()
        self.stamp("conv0")
        self.conv_main()
        a("s_setprio 0")
        self.barrier()
        self.stamp("conv1")
        for x in self.s_loads(): a(x)
        a("s_barrier")
        self.s_check()
        self.w13_stage()
        a("s_branch L_join")
        a.label("L_grpB"); a.set_state(stB)
        self.kgen_common()
        self.kgen_hi()
        self.stamp("chain")
        self.barrier()
        for x in self.handoff1_loads(): a(x)
        self.warm_w13()
        for x in self.gather_addrs(): a(x)
        self.w13_addr()
        self.stamp("kgen")
        self.barrier()
        self.expand(1)
        self.make_z()
        self.barrier()
        self.stamp("conv0")
        for x in self.mod_loads() + self.s_loads(): a(x)
        self.x_fetch()
        self.cum_k()
        self.conv_epilogue_pre()
        for x in self.w13_loads(): a(x)
        self.stamp("pre")
        self.barrier()
        self.stamp("conv1")
        self.conv_epilogue()
        self.barrier()
        self.s_check()
        def hook(i):
            if i == 5:
                a.wait(vm=0)
                self.flag_store(72)
                self.stamp("pubX2")
        self.w13_stage(hook)
        a.label("L_join"); a.win = []
        self.stamp("staged")
        self.barrier2()
        self.stamp("h2")
        self.gemm1()
        self.stamp("pubAct")
        self.gemm2()
        a("s_branch L_fin")
        a.label("L_spare"); a.set_state(st_spare)
        self.spare()
        self.finish()
        body = a.text()
        return f"""{HEADER}; @launch grid=(256,1,1) block=(512,1,1) lds={LDS_BYTES}
.amdgcn_target "amdgcn-amd-amdhsa--gfx950"
.text
.globl {KNAME}
.p2align 8
.type {KNAME},@function
{KNAME}:
{body}.section .rodata,"a"
.p2align 6
.amdhsa_kernel {KNAME}
  .amdhsa_next_free_vgpr 256
  .amdhsa_next_free_sgpr 102
  .amdhsa_accum_offset 256
  .amdhsa_group_segment_fixed_size 0
  .amdhsa_kernarg_size 144
  .amdhsa_user_sgpr_count 2
  .amdhsa_user_sgpr_kernarg_segment_ptr 1
  .amdhsa_system_sgpr_workgroup_id_x 1
.end_amdhsa_kernel
"""

if __name__ == "__main__":
    out = sys.argv[1]
    probe = sys.argv[sys.argv.index("--probe") + 1] if "--probe" in sys.argv else None
    g = Gen(stamps="--stamps" in sys.argv or probe is not None, probe=probe)
    open(out, "w").write(g.build())
    if g.stamps: open(out + ".names", "w").write(repr(g.stamp_names))
    print("instructions", g.a.nins, "nop states", g.a.nops, "stamps", g.stamp_names)
```

```python
import re, copy

REG_RE = re.compile(r'^(-|\|)?(abs\()?([vas])(?:(\d+)|\[(\d+):(\d+)\])\)?\|?$')

def regs_of(op):
    op = op.strip()
    m = REG_RE.match(op)
    if m:
        k = m.group(3)
        if m.group(4) is not None:
            return {(k, int(m.group(4)))}
        return {(k, i) for i in range(int(m.group(5)), int(m.group(6)) + 1)}
    if op == 'vcc': return {('s', 'vcc_lo'), ('s', 'vcc_hi')}
    if op in ('vcc_lo', 'vcc_hi', 'm0', 'exec_lo', 'exec_hi'): return {('s', op)}
    if op == 'exec': return {('s', 'exec_lo'), ('s', 'exec_hi')}
    return set()

TRANS = ('v_exp_', 'v_log_', 'v_rcp_', 'v_rsq_', 'v_sqrt_', 'v_sin_', 'v_cos_')
NODST_S = ('s_cmp', 's_waitcnt', 's_barrier', 's_nop', 's_branch', 's_cbranch', 's_endpgm', 's_sleep', 's_setprio',
           's_bitcmp', 's_setpc')
VCC = {('s', 'vcc_lo'), ('s', 'vcc_hi')}
EXEC = {('s', 'exec_lo'), ('s', 'exec_hi')}

class Ins:
    def __init__(self, text):
        self.text = text
        t = text.split(';')[0].strip()
        parts = t.split(None, 1)
        self.mn = parts[0]
        rest = parts[1] if len(parts) > 1 else ''
        ops = []
        depth = 0; cur = ''
        for ch in rest:
            if ch == '[': depth += 1
            if ch == ']': depth -= 1
            if ch == ',' and depth == 0:
                ops.append(cur.strip()); cur = ''
            else: cur += ch
        if cur.strip(): ops.append(cur.strip())
        self.mods = ''
        if ops:
            last = ops[-1].split(None, 1)
            ops[-1] = last[0]
            self.mods = last[1] if len(last) > 1 else ''
        self.ops = ops
        mn = self.mn
        R = [regs_of(o) for o in ops]
        allr = set().union(*R) if R else set()
        self.defs = set(); self.uses = set()
        self.kind = 'other'
        self.srcC = set(); self.srcAB = set(); self.passes = 0
        self.dpp = 'dpp' in mn or any(k in self.mods for k in ('row_', 'quad_perm', 'wave_'))
        if mn.startswith('v_mfma'):
            self.kind = 'mfma'
            self.defs = R[0]; self.srcAB = R[1] | R[2]; self.srcC = R[3]; self.uses = R[1] | R[2] | R[3]
            self.passes = 8 if '32x32' in mn else 4
        elif mn.startswith('v_'):
            self.kind = 'valu'
            self.defs = set(R[0]); self.uses = set().union(*R[1:]) if len(R) > 1 else set()
            if '_co_' in mn or mn.startswith('v_div_scale') or mn.startswith('v_mad_u64'):
                self.defs |= R[1]; self.uses = set().union(*R[2:])
            if mn.startswith(('v_fmac', 'v_dot2c', 'v_pk_fmac', 'v_writelane')) or self.dpp or 'sdwa' in mn or 'dst_sel' in self.mods:
                self.uses |= R[0]
            if mn.startswith('v_permlane') and 'swap' in mn or mn.startswith('v_swap'):
                self.defs = R[0] | R[1]; self.uses = R[0] | R[1]
            if mn.startswith('v_cmpx'): self.defs |= EXEC
        elif mn.startswith('ds_'):
            self.kind = 'ds'
            if mn.startswith(('ds_read', 'ds_bpermute', 'ds_permute', 'ds_swizzle')) or '_rtn' in mn:
                self.defs = R[0]; self.uses = set().union(*R[1:])
                if 'd16' in mn: self.uses |= R[0]
            else: self.uses = allr
        elif mn.startswith(('buffer_', 'global_')):
            self.kind = 'vmem'
            islds = re.search(r'\blds\b', self.mods) or '_lds_' in mn
            if '_load' in mn and not islds:
                self.defs = R[0]; self.uses = set().union(*R[1:])
                if 'd16' in mn: self.uses |= R[0]
            elif '_atomic' in mn and 'sc0' in self.mods:
                self.defs = R[0]; self.uses = allr
            else: self.uses = allr
            if islds: self.uses |= {('s', 'm0')}
            self.wide_store = set()
            if '_store_dwordx4' in mn or '_store_dwordx3' in mn:
                self.wide_store = R[0] if mn.startswith('buffer_') else R[1]
        elif mn.startswith(('s_load', 's_buffer_load', 's_memtime', 's_memrealtime')):
            self.kind = 'smem'
            self.defs = R[0]; self.uses = set().union(*R[1:]) if len(R) > 1 else set()
        elif mn.startswith('s_'):
            self.kind = 'salu'
            if mn.startswith(NODST_S): self.uses = allr
            else:
                self.defs = set(R[0]) if R else set(); self.uses = set().union(*R[1:]) if len(R) > 1 else set()
                if 'saveexec' in mn: self.defs |= EXEC
        self.trans = mn.startswith(TRANS)
        self.dot = mn.startswith('v_dot')
        self.states = 1
        if mn == 's_nop': self.states = int(ops[0], 0) + 1

def need_states(p, c):
    n = 0
    vdef = {r for r in p.defs if r[0] in 'va'}
    sdef = {r for r in p.defs if r[0] == 's'}
    if p.kind == 'valu':
        if c.kind == 'mfma' and vdef & c.uses: n = max(n, 3 if p.dot else 2)
        if c.kind == 'mfma' and sdef & EXEC: n = max(n, 4)
        if c.kind == 'valu':
            if c.dpp and vdef & c.uses: n = max(n, 2)
            if c.dpp and sdef & EXEC: n = max(n, 5)
            if c.mn.startswith('v_permlane') and vdef & c.uses: n = max(n, 2)
            if c.mn.startswith(('v_readlane', 'v_readfirstlane')) and vdef & c.uses: n = max(n, 1)
            if c.mn.startswith(('v_readlane', 'v_readfirstlane', 'v_writelane', 'v_permlane')) and sdef & EXEC: n = max(n, 4)
            if sdef & c.uses: n = max(n, 4 if c.mn.startswith(('v_readlane', 'v_writelane')) else 2)
            if p.trans and not c.trans and vdef & c.uses: n = max(n, 1)
            if ('op_sel' in p.mods and not p.mn.startswith('v_pk_') or 'dst_sel' in p.mods) and vdef & (c.uses | c.defs): n = max(n, 1)
        if p.dot and vdef & (c.uses | c.defs):
            if c.mn == p.mn:
                ab = set()
                for o in c.ops[1:3]: ab |= regs_of(o)
                if vdef & ab: n = max(n, 3)
            else: n = max(n, 3)
        if p.trans and c.kind in ('ds', 'vmem') and vdef & c.uses: n = max(n, 1)
        if c.kind == 'vmem' and sdef & c.uses: n = max(n, 5)
        if c.kind in ('salu', 'smem') and sdef & c.uses: n = max(n, 1)
    if p.kind == 'salu' and ('s', 'm0') in p.defs and ('s', 'm0') in c.uses and c.kind in ('vmem', 'ds'): n = max(n, 1)
    if p.kind == 'mfma':
        hi = p.passes == 8
        if c.kind == 'mfma':
            if p.defs & c.srcAB: n = max(n, 12 if hi else 8)
            if p.defs & c.srcC and not (p.defs == c.srcC and p.passes == c.passes): n = max(n, 10 if hi else 6)
            if p.defs & c.defs and not (p.defs == c.defs and p.passes == c.passes): n = max(n, 10 if hi else 6)
        elif c.kind in ('valu', 'ds', 'vmem'):
            if p.defs & (c.uses | c.defs): n = max(n, 12 if hi else 8)
            if p.srcC & c.defs: n = max(n, 7 if hi else 3)
    if p.kind == 'vmem' and p.wide_store and p.wide_store & c.defs and c.kind in ('valu', 'mfma', 'ds', 'vmem'): n = max(n, 2)
    return n

class Asm:
    def __init__(self):
        self.lines = []
        self.vm = []
        self.lg = []
        self.sm = set()
        self.win = []
        self.nins = 0
        self.nops = 0
        self.inj = []; self.inj_every = 0; self.inj_cnt = 0
    def inject(self, items, every):
        self.inj = list(items); self.inj_every = every; self.inj_cnt = 0
    def flush_inject(self):
        items, self.inj = self.inj, []
        for x in items: self(x)
    def raw(self, s): self.lines.append(s)
    def comment(self, s): self.lines.append('    ; ' + s)
    def label(self, name):
        self.lines.append(name + ':')
    def state(self): return (copy.copy(self.vm), copy.copy(self.lg), set(self.sm), list(self.win))
    def set_state(self, st): self.vm, self.lg, self.sm, self.win = list(st[0]), list(st[1]), set(st[2]), list(st[3])
    def _push(self, ins):
        self.lines.append('    ' + ins.text)
        self.win.append(ins); self.win = self.win[-24:]
        self.nins += 1
    def wait(self, vm=None, lgkm=None):
        parts = []
        if vm is not None:
            vm = min(vm, 63)
            parts.append(f'vmcnt({vm})'); self.vm = self.vm[len(self.vm) - vm:] if vm < len(self.vm) else self.vm
            if vm == 0: self.vm = []
        if lgkm is not None:
            lgkm = min(lgkm, 15)
            parts.append(f'lgkmcnt({lgkm})')
            if lgkm == 0: self.lg = []; self.sm = set()
            elif lgkm < len(self.lg): self.lg = self.lg[len(self.lg) - lgkm:]
        self._push(Ins('s_waitcnt ' + ' '.join(parts)))
    def __call__(self, text):
        for line in text.split('\n'):
            line = line.strip()
            if not line: continue
            if line.startswith(';'): self.comment(line[1:].strip()); continue
            if line.endswith(':'): self.label(line[:-1]); continue
            self.emit(line)
            if self.inj and not line.startswith('s_cmp') and not line.startswith('s_bitcmp'):
                self.inj_cnt += 1
                if self.inj_cnt >= self.inj_every:
                    self.inj_cnt = 0
                    x = self.inj.pop(0); rest, self.inj = self.inj, []
                    self(x)
                    self.inj = rest
    def emit(self, text):
        ins = Ins(text)
        if ins.mn == 's_waitcnt':
            m = re.search(r'vmcnt\((\d+)\)', text); l = re.search(r'lgkmcnt\((\d+)\)', text)
            self.wait(int(m.group(1)) if m else None, int(l.group(1)) if l else None)
            return
        touch = ins.defs | ins.uses
        wv = wl = None
        for i in range(len(self.vm) - 1, -1, -1):
            if self.vm[i] & touch: wv = len(self.vm) - 1 - i; break
        for i in range(len(self.lg) - 1, -1, -1):
            if self.lg[i] & touch: wl = len(self.lg) - 1 - i; break
        if self.sm & touch or (wl is not None and self.sm): wl = 0
        if wv is not None or wl is not None: self.wait(wv, wl)
        need = 0; dist = 0
        for p in reversed(self.win):
            need = max(need, need_states(p, ins) - dist)
            dist += p.states
            if dist >= 20: break
        if need > 0:
            self._push(Ins(f's_nop {need - 1}')); self.nops += need
        self._push(ins)
        if ins.kind == 'vmem': self.vm.append(set(ins.defs))
        elif ins.kind == 'ds': self.lg.append(set(ins.defs))
        elif ins.kind == 'smem': self.sm |= ins.defs
    def text(self): return '\n'.join(self.lines) + '\n'

def merge(main, fill, start=0, end=None):
    end = len(main) if end is None else end
    n = end - start
    out = list(main[:start]); k = 0
    for i in range(n):
        out.append(main[start + i])
        tgt = (i + 1) * len(fill) // n
        out.extend(fill[k:tgt]); k = tgt
    out.extend(main[end:])
    return out

def vr(b, n=1, k='v'): return f'{k}{b}' if n == 1 else f'{k}[{b}:{b + n - 1}]'
def ar(b, n=1): return vr(b, n, 'a')
def sr(b, n=1): return vr(b, n, 's')
```

```python
import sys, struct, math
from asmlib import *

KNAME = "adaLN_cond__ssm_conv_s4__swiglu_ffn__prompt_kernel"
HEADER = open("adaLN_cond__ssm_conv_s4__swiglu_ffn__prompt.s.ref").read().split("; Override launch")[0]

XG, STAT, MODG, FLG2, CAUG, FLG3, X2, ACT, TS = 0x0, 0x400000, 0x410000, 0x420000, 0x440000, 0x450000, 0x500000, 0x700000, 0xF00000
WS_BYTES = 0x1000000
OOB = 0x7fff0000
S_WAVE, S_XCD, S_SLOT, S_PAIR, S_NONCE, S_W3 = 4, 5, 6, 7, 8, 3
P_U, P_ARE, P_AIM, P_BRE, P_BIM, P_CRE, P_CIM, P_LDT, P_DSK, P_BX, P_WG, P_WU, P_WD, P_C, P_WM, P_OUT, P_DBG, P_WS = range(16, 52, 2)
R_WS, R_A, R_B, R_D = 52, 56, 60, 96
S_RB, S_FC = 66, 67
S_TS = 76
SPIN = 20000
CODE_SHARE = 11
WS = f"s[{R_WS}:{R_WS+3}]"
RA = f"s[{R_A}:{R_A+3}]"
RB = f"s[{R_B}:{R_B+3}]"
RD = f"s[{R_D}:{R_D+3}]"
TP = 73 * 256
L_T = 0
L_H = 2 * TP
HP = 4576
L_E = L_H + 2 * HP
EP = 528
EW = 54 * EP
CP = 4160
L_Y = L_E + 8 * CP
L_XS = L_Y + 32768
LDS_BYTES = 163840
assert L_E + 4 * EW <= LDS_BYTES and L_Y + 32768 <= LDS_BYTES
L_W = 0
WM = 448 * 128

def f32(x): return "0x%08x" % struct.unpack("<I", struct.pack("<f", x))[0]
LOG2E = 1.4426950408889634

class Gen:
    def __init__(self, stamps=False, probe=None, opts=None):
        self.o = dict(b2="atomic", b2sleep=0, hook=5)
        self.o.update(opts or {})
        self.a = Asm(); self.stamps = stamps; self.uid = 0; self.probe = probe
        self.stamp_names = []
    def lab(self, n):
        self.uid += 1
        return f"L_{n}_{self.uid}"
    def srd(self, r, p, nbytes):
        self.a(f"s_mov_b32 s{r}, s{p}\ns_mov_b32 s{r+1}, s{p+1}\ns_mov_b32 s{r+2}, {nbytes}\ns_mov_b32 s{r+3}, 0x00020000")
    def srd_sel(self, r, p1, p0, nbytes):
        self.a(f"s_cselect_b32 s{r}, s{p1}, s{p0}\ns_cselect_b32 s{r+1}, s{p1+1}, s{p0+1}\ns_mov_b32 s{r+2}, {nbytes}\ns_mov_b32 s{r+3}, 0x00020000")
    def stamp(self, name):
        if not self.stamps: return
        a = self.a
        if name not in self.stamp_names: self.stamp_names.append(name)
        idx = self.stamp_names.index(name)
        assert idx < 20, self.stamp_names
        a.wait(lgkm=0)
        a("s_memrealtime s[14:15]")
        a(f"s_mov_b32 s{S_TS + idx}, s14")
    def barrier(self):
        self.a.wait(lgkm=0)
        self.a("s_barrier")
    def poll(self, loads, tags, dst, tmp, issued=False, masked=False, sleep=0):
        a = self.a
        ok = self.lab("ok"); lp = self.lab("spin"); out = self.lab("out")
        if issued:
            self.tagcheck(dst, tags, tmp)
            a(f"v_cmp_ne_u32 vcc, 0, v{dst}\ns_cbranch_vccz {ok}")
        st = a.state()
        a(f"s_mov_b32 s9, {SPIN}")
        a.label(lp)
        if masked: a("s_mov_b64 exec, vcc")
        for x in loads: a(x)
        self.tagcheck(dst, tags, tmp)
        a(f"v_cmp_ne_u32 vcc, 0, v{dst}\ns_cbranch_vccz {out}")
        if sleep: a(f"s_sleep {sleep}")
        a(f"s_sub_u32 s9, s9, 1\ns_cmp_lg_u32 s9, 0\ns_cbranch_scc1 {lp}")
        a.label(out)
        if masked: a("s_mov_b64 exec, -1")
        a.label(ok)
        if issued: a.set_state(st)
    def tagcheck(self, dst, tags, tmp):
        a = self.a; parts = []
        n = (len(tags) + 1) // 2
        for i in range(0, len(tags) - 1, 2):
            o = dst if n == 1 else tmp[i//2]
            a(f"v_bitop3_b32 v{o}, v{tags[i]}, v{tags[i+1]}, s{S_NONCE} bitop3:0x7e"); parts.append(o)
        if len(tags) % 2:
            o = dst if n == 1 else tmp[len(tags)//2]
            a(f"v_xor_b32 v{o}, s{S_NONCE}, v{tags[-1]}"); parts.append(o)
        while len(parts) > 1:
            if len(parts) >= 3:
                o = dst if len(parts) == 3 else parts[0]
                a(f"v_or3_b32 v{o}, v{parts[0]}, v{parts[1]}, v{parts[2]}"); parts = parts[3:] + [o]
            else:
                a(f"v_or_b32 v{dst}, v{parts[0]}, v{parts[1]}"); parts = [dst]
    def bf16r(self, d, s):
        self.a(f"v_cvt_pk_bf16_f32 v{d}, v{s}, v{s}\nv_and_b32 v{d}, 0xffff0000, v{d}")

    def prologue(self):
        a = self.a
        a(f"""s_cmp_ge_u32 s2, 256
s_cbranch_scc1 L_exit
s_load_dwordx4 s[48:51], s[0:1], 128
s_load_dwordx16 s[16:31], s[0:1], 0
s_load_dwordx16 s[32:47], s[0:1], 64
s_memrealtime s[10:11]
v_lshrrev_b32 v2, 6, v0
v_and_b32 v1, 63, v0
v_readfirstlane_b32 s{S_WAVE}, v2
s_and_b32 s{S_XCD}, s2, 7
s_lshr_b32 s{S_SLOT}, s2, 3
s_mul_i32 s{S_PAIR}, s{S_XCD}, 28
s_add_u32 s{S_PAIR}, s{S_PAIR}, s{S_SLOT}
s_and_b32 s{S_W3}, s{S_WAVE}, 3
v_and_b32 v186, 255, v0
v_and_b32 v3, 31, v0
v_lshrrev_b32 v4, 5, v186
v_mul_u32_u24 v4, 896, v4
v_lshl_add_u32 v4, v3, 4, v4
v_mov_b32 v5, {OOB}
v_cmp_gt_u32 vcc, 28, v3
s_mul_i32 s12, s2, {8*896}
v_cndmask_b32 v4, v5, v4, vcc
v_and_b32 v5, 3, v0
v_mul_u32_u24 v5, 1792, v5
v_and_b32 v6, 0xfc, v0
v_add3_u32 v5, v5, v6, s12
v_mov_b32 v7, 0
s_lshl_b32 s13, s{S_PAIR}, 10
v_lshl_add_u32 v10, v186, 2, s13
""")
        a.wait(lgkm=0)
        if self.stamps:
            self.stamp_names = ["start"]
            a(f"s_mov_b32 s{S_TS}, s10")
        self.srd(R_D, P_DBG, 256)
        nn = self.lab("nononce")
        a(f"""s_or_b32 s13, s2, s{S_WAVE}
s_cmp_lg_u32 s13, 0
s_cbranch_scc1 {nn}
s_or_b32 s13, s10, 1
v_mov_b32 v8, s13
v_lshlrev_b32 v9, 7, v1
s_mov_b64 exec, 3
buffer_store_dword v8, v9, {RD}, 0 offen sc1
s_mov_b64 exec, -1""")
        a.vm = []
        a.label(nn)
        self.srd(R_WS, P_WS, WS_BYTES)

    def phase_a_loads(self):
        a = self.a
        self.srd(R_A, P_U, 2048 * 896)
        a(f"buffer_load_dwordx4 v[12:15], v4, {RA}, s12 offen")
        a(f"buffer_load_dwordx4 v[16:19], v4, {RA}, s12 offen offset:448")
        for k in range(4):
            a(f"buffer_load_dword v{20+4*k}, v5, {RA}, 0 offen offset:{256*k}")
            a(f"buffer_load_dword v{22+4*k}, v5, {RA}, 0 offen offset:{256*k+896}")
    def nonce_sample(self):
        self.a(f"s_load_dword s{S_NONCE}, s[{P_DBG}:{P_DBG+1}], 0")
    def get_nonce(self):
        a = self.a
        ok = self.lab("nonce_ok"); lp = self.lab("nonce_poll")
        a(f"s_cmp_lg_u32 s{S_NONCE}, 0")
        st = a.state()
        a(f"s_cbranch_scc1 {ok}\ns_mov_b32 s9, {SPIN}")
        a.label(lp)
        a(f"""buffer_load_dword v8, v7, {RD}, 0 offen offset:128 sc1
v_readfirstlane_b32 s{S_NONCE}, v8
s_sub_u32 s9, s9, 1
s_cmp_eq_u32 s9, 0
s_cbranch_scc1 {ok}
s_cmp_eq_u32 s{S_NONCE}, 0
s_cbranch_scc1 {lp}""")
        a.label(ok)
        a.set_state(st); a.win = []
        a("s_nop 1")

    def phase_a_addr(self):
        self.a(f"""v_and_b32 v5, 3, v0
v_lshlrev_b32 v5, 4, v5
v_lshrrev_b32 v6, 2, v186
v_lshl_add_u32 v5, v6, 7, v5
v_mov_b32 v6, {OOB}
v_cmp_gt_u32 vcc, 128, v186
v_add_u32 v56, 0x4000, v5
v_add_u32 v57, 0x6000, v5
v_cndmask_b32 v57, v6, v57, vcc
v_add_u32 v6, 0x2000, v5
v_lshrrev_b32 v4, 5, v186
v_lshlrev_b32 v4, 3, v4
s_lshr_b32 s70, s2, 1
s_mul_i32 s70, s70, 28672
s_and_b32 s13, s2, 1
s_lshl_b32 s13, s13, 6
s_add_u32 s70, s70, s13
s_add_u32 s70, s70, {XG}
s_lshl_b32 s71, s2, 6
s_add_u32 s71, s71, {STAT}""")
    def phase_a(self):
        a = self.a
        a("s_mov_b32 s13, 0x3f803f80")
        a(f"v_dot2_f32_bf16 v2, v12, s13, 0\nv_dot2_f32_bf16 v3, v12, v12, 0")
        self.nonce_sample()
        for r in range(13, 20):
            a(f"v_dot2_f32_bf16 v2, v{r}, s13, v2\nv_dot2_f32_bf16 v3, v{r}, v{r}, v3")
        for sh in (1, 2, 4, 8):
            a(f"v_add_f32_dpp v2, v2, v2 row_shr:{sh} row_mask:0xf bank_mask:0xf bound_ctrl:0")
            a(f"v_add_f32_dpp v3, v3, v3 row_shr:{sh} row_mask:0xf bank_mask:0xf bound_ctrl:0")
        a("v_add_f32_dpp v2, v2, v2 row_bcast:15 row_mask:0xa bank_mask:0xf")
        a("v_add_f32_dpp v3, v3, v3 row_bcast:15 row_mask:0xa bank_mask:0xf")
        self.ln_finish(2, 3, 14)
        a("v_cvt_pk_bf16_f32 v2, v2, v3")
        self.stamp("xarr")
        self.get_nonce()
        a(f"""v_mov_b32 v3, s{S_NONCE}
s_mov_b32 exec_lo, 0x80000000
s_mov_b32 exec_hi, 0x80000000
buffer_store_dwordx2 v[2:3], v4, {WS}, s71 offen sc1
s_mov_b64 exec, -1""")
        for k, ad in enumerate((5, 6, 56, 57)):
            a(f"v_mov_b32 v{21+4*k}, s{S_NONCE}\nv_mov_b32 v{23+4*k}, s{S_NONCE}")
            a(f"buffer_store_dwordx4 v[{20+4*k}:{23+4*k}], v{ad}, {WS}, s70 offen sc1")

    def ln_finish(self, vs, vq, t):
        a = self.a
        a(f"""v_mul_f32 v{vs}, {f32(1/448)}, v{vs}
v_mul_f32 v{vq}, {f32(1/448)}, v{vq}
v_fma_f32 v{vq}, -v{vs}, v{vs}, v{vq}
v_max_f32 v{vq}, 0, v{vq}""")
        self.bf16r(vq, vq)
        a(f"v_add_f32 v{vq}, {f32(1e-5)}, v{vq}")
        self.bf16r(vq, vq)
        a(f"v_sqrt_f32 v{vq}, v{vq}")

    V_PAR = 36
    V_GA = 44
    def zero_stamps(self):
        if self.stamps:
            for i in range(1, 20): self.a(f"s_mov_b32 s{S_TS+i}, 0")
    def param_loads(self, n0, n1):
        a = self.a
        for i, p in list(enumerate((P_ARE, P_AIM, P_BRE, P_BIM, P_CRE, P_CIM)))[n0:n1]:
            self.srd(R_B, p, 448 * 512)
            a(f"buffer_load_dword v{self.V_PAR+i}, v10, {RB}, 0 offen")
    def conv_scalars(self):
        self.a(f"""s_lshl_b32 s13, s{S_PAIR}, 2
s_load_dword s64, s[{P_LDT}:{P_LDT+1}], s13
s_load_dword s65, s[{P_DSK}:{P_DSK+1}], s13
s_and_b32 s{S_RB}, s{S_XCD}, 1
s_lshl_b32 s{S_RB}, s{S_RB}, 2
s_and_b32 s13, s{S_SLOT}, 3
s_add_u32 s{S_RB}, s{S_RB}, s13
s_lshr_b32 s{S_FC}, s{S_XCD}, 1
s_mul_i32 s{S_FC}, s{S_FC}, 7
s_lshr_b32 s13, s{S_SLOT}, 2
s_add_u32 s{S_FC}, s{S_FC}, s13""")
    def code_touch(self):
        a = self.a
        sk = self.lab("ct"); pc = self.lab("pc")
        a(f"s_cmp_lg_u32 s{S_WAVE}, 0\ns_cbranch_scc1 {sk}")
        st = a.state()
        a("s_getpc_b64 s[12:13]")
        a.label(pc)
        a(f"""s_mul_i32 s14, s{S_SLOT}, {CODE_SHARE}
v_min_u32 v57, {CODE_SHARE-1}, v1
v_add_u32 v57, s14, v57
v_lshlrev_b32 v57, 7, v57
v_min_u32 v57, L_exit-{pc}, v57
v_mov_b32 v59, s13
v_add_co_u32 v58, vcc, s12, v57
v_addc_co_u32 v59, vcc, 0, v59, vcc
global_load_dword v57, v[58:59], off""")
        a.label(sk); a.set_state(st); a.win = []
    def lds_zero(self):
        self.a(f"""v_mov_b32 v60, 0
v_mov_b32 v61, 0
v_lshlrev_b32 v11, 3, v1
ds_write_b64 v11, v[60:61] offset:{L_H}
ds_write_b64 v11, v[60:61] offset:{L_H + HP}
ds_write_b64 v7, v[60:61] offset:{L_T + 9*256}
ds_write_b64 v7, v[60:61] offset:{L_T + TP + 9*256}""")
    def gather_addrs(self):
        L = ["v_lshlrev_b32 v59, 3, v186", "v_sub_u32 v59, 2047, v59", "v_cvt_f32_u32 v59, v59"]
        for m in range(0, 11, 2):
            L += [f"v_add_f32 v60, {f32(-m)}, v59", f"v_add_f32 v61, {f32(-m-1)}, v59", "v_cvt_pk_bf16_f32 v62, v60, v61"]
            for h in range(2):
                if m + h > 10: continue
                g = self.V_GA + m + h
                L += ["v_lshlrev_b32 v63, 16, v62" if h == 0 else "v_and_b32 v63, 0xffff0000, v62",
                      "v_cvt_u32_f32 v63, v63", f"v_and_b32 v{g}, 0xf8, v63", "v_and_b32 v11, 7, v63",
                      f"v_lshl_or_b32 v{g}, v11, 8, v{g}", "v_lshrrev_b32 v11, 8, v63", f"v_lshl_or_b32 v{g}, v11, 11, v{g}"]
        L += [f"v_mov_b32 v11, {9*256}", "v_cmp_eq_u32 vcc, 255, v186"]
        L += [f"v_cndmask_b32 v{self.V_GA+m}, v{self.V_GA+m}, v11, vcc" for m in range(8, 11)]
        return L
    def w13_touch(self):
        a = self.a
        a(f"s_bitcmp1_b32 s{S_W3}, 1")
        self.srd_sel(R_B, P_WU, P_WG, 448 * 3584)
        a(f"""s_and_b32 s13, s{S_SLOT}, 3
s_lshl_b32 s13, s13, 1
s_and_b32 s14, s{S_W3}, 1
s_add_u32 s13, s13, s14
s_mul_i32 s13, s13, {56*3584}
s_lshl_b32 s14, s{S_FC}, 7
s_add_u32 s13, s13, s14
v_min_u32 v57, 55, v1
v_mul_u32_u24 v57, 3584, v57
buffer_load_dword v58, v57, {RB}, s13 offen""")

    def cmul(self, d, x, r, t):
        return [f"v_pk_mul_f32 v[{t}:{t+1}], v[{x}:{x+1}], v[{r}:{r+1}] op_sel_hi:[1,0]",
                f"v_pk_fma_f32 v[{d}:{d+1}], v[{x}:{x+1}], v[{r}:{r+1}], v[{t}:{t+1}] op_sel:[1,1,0] op_sel_hi:[0,1,1] neg_lo:[0,1,0]"]

    def kgen_common(self):
        a = self.a; P = self.V_PAR
        a(f"""s_lshl_b32 s12, s64, 16
s_and_b32 s13, s64, 0xffff0000
s_cmp_lt_u32 s{S_W3}, 2
s_cselect_b32 s64, s12, s13
s_lshl_b32 s12, s65, 16
s_and_b32 s13, s65, 0xffff0000
s_cmp_lt_u32 s{S_W3}, 2
s_cselect_b32 s65, s12, s13
s_bitcmp1_b32 s{S_WAVE}, 0
s_cselect_b32 s65, 0, s65
s_mul_i32 s68, s{S_W3}, {EW}
s_add_u32 s68, s68, {L_E}""")
        lh = struct.unpack("<f", struct.pack("<f", LOG2E))[0]
        a(f"""v_mov_b32 v2, {f32(lh)}
v_mul_f32 v3, s64, v2
v_fma_f32 v4, s64, v2, -v3
v_mov_b32 v2, {f32(LOG2E - lh)}
v_fma_f32 v4, s64, v2, v4
v_exp_f32 v3, v3
v_mul_f32 v4, {f32(math.log(2))}, v4
v_fma_f32 v3, v3, v4, v3""")
        self.bf16r(2, 3)
        a(f"v_lshl_add_u32 v10, v1, 3, s68")
        for k in range(2):
            u = 80 + 6*k
            for i in range(2):
                a(f"v_lshlrev_b32 v{u+i}, 16, v{P+i}" if k == 0 else f"v_and_b32 v{u+i}, 0xffff0000, v{P+i}")
            a(f"""v_mul_f32 v{u}, v2, v{u}
v_mul_f32 v{u+1}, v2, v{u+1}
v_mul_f32 v{u}, {f32(LOG2E)}, v{u}
v_mul_f32 v{u+1}, {f32(1/(2*math.pi))}, v{u+1}""")
    def rho(self, L, R, sg):
        a = self.a
        for k in range(2):
            u = 80 + 6*k; t = 92 + 2*k
            a(f"v_mul_f32 v{t}, {f32(L)}, v{u}\nv_mul_f32 v{t+1}, {f32(L)}, v{u+1}\nv_fract_f32 v{t+1}, v{t+1}")
        for k in range(2):
            t = 92 + 2*k
            a(f"v_exp_f32 v{t}, v{t}\nv_cos_f32 v{R[k]}, v{t+1}\nv_sin_f32 v{R[k]+1}, v{t+1}")
        for k in range(2):
            t = 92 + 2*k
            a(f"v_mul_f32 v{R[k]}, v{t}, v{R[k]}\nv_mul_f32 v{R[k]+1}, {sg}v{t}, v{R[k]+1}")
    def chain_runner(self):
        outs = [96, 98, 100, 102]; st = {"i": 0, "pend": None}; seq = []
        T = [92, 94]
        def put(row, src):
            o = outs[st["i"] % 4]; st["i"] += 1
            return [f"v_cvt_pk_bf16_f32 v{o}, v{src[0]}, v{src[0]+1}", f"v_cvt_pk_bf16_f32 v{o+1}, v{src[1]}, v{src[1]+1}",
                    f"ds_write_b64 v10, v[{o}:{o+1}] offset:{row*EP}"]
        def first(row, src): st["pend"] = put(row, src)
        def chain(dst, src, rho, row):
            m0 = self.cmul(dst[0], src[0], rho[0], T[0]); m1 = self.cmul(dst[1], src[1], rho[1], T[1])
            p = st["pend"]
            seq.extend([m0[0], m1[0], p[0], m0[1], m1[1], p[1], p[2]])
            st["pend"] = put(row, dst)
        def done():
            seq.extend(st["pend"]); return seq
        return first, chain, done
    def kgen_lo(self):
        a = self.a
        R8 = [72, 74]; pp = [[80, 82], [84, 86]]
        self.rho(8, R8, "-")
        a(f"v_mov_b32 v102, 0x3f80\nv_mov_b32 v103, 0x3f80\nds_write_b64 v10, v[102:103] offset:{22*EP}")
        first, chain, done = self.chain_runner()
        first(23, R8); cur = R8
        for c in range(2, 32):
            chain(pp[c % 2], cur, R8, 22 + c); cur = pp[c % 2]
        for s in done(): a(s)
    def kgen_hi(self):
        a = self.a; P = self.V_PAR
        W = [64, 66]; R1 = [68, 70]; R256 = [76, 78]; pp = [[80, 82], [84, 86]]
        for k in range(2):
            u = 80 + 6*k
            for i in range(2, 6):
                a(f"v_lshlrev_b32 v{u+i}, 16, v{P+i}" if k == 0 else f"v_and_b32 v{u+i}, 0xffff0000, v{P+i}")
            a(f"""v_mul_f32 v{u+2}, v2, v{u+2}
v_mul_f32 v{u+3}, v2, v{u+3}
v_mul_f32 v{W[k]}, v{u+4}, v{u+2}
v_mul_f32 v{W[k]+1}, v{u+4}, v{u+3}
v_fma_f32 v{W[k]}, -v{u+5}, v{u+3}, v{W[k]}
v_fma_f32 v{W[k]+1}, v{u+5}, v{u+2}, v{W[k]+1}""")
        self.rho(1, R1, "")
        self.rho(256, R256, "")
        first, chain, done = self.chain_runner()
        keep = {0: W, 2: [104, 106], 4: [108, 110], 6: [112, 114]}
        first(0, W); cur = W
        for j in range(1, 8):
            nxt = keep.get(j, pp[(j // 2) % 2])
            chain(nxt, cur, R1, j); cur = nxt
        A0 = [116, 118]; A4 = [120, 122]; B0 = [124, 126]; B4 = [128, 130]
        for dst, src, row in ((A0, keep[0], 8), (A4, keep[4], 12), (pp[0], keep[2], 9), (pp[1], keep[6], 13),
                              (B0, A0, 10), (B4, A4, 14), (A0, B0, 11), (A4, B4, 15),
                              (B0, A0, 16), (A0, B0, 17), (B0, A0, 18), (A0, B0, 20), (B0, A0, 21)):
            chain(dst, src, R256, row)
        for s in done(): a(s)

    def kgen_contract(self):
        a = self.a
        ACC = 64; F = 96
        def rd(s):
            b = F + 8 * (s % 7)
            return [f"ds_read_b128 v[{b}:{b+3}], v10 offset:{32*s}", f"ds_read_b128 v[{b+4}:{b+7}], v10 offset:{22*EP + 32*s}"]
        for s in range(7):
            for x in rd(s): a(x)
        for s in range(16):
            b = F + 8 * (s % 7)
            a(f"v_mfma_f32_32x32x16_bf16 v[{ACC}:{ACC+15}], v[{b}:{b+3}], v[{b+4}:{b+7}], v[{ACC}:{ACC+15}]")
            if s + 7 < 16:
                for x in rd(s + 7): a(x)
        for i, row in enumerate((0, 1, 2, 3, 8, 10, 16, 24)):
            a(f"ds_write_b32 v11, v{ACC+i} offset:{L_T + row*256}")
        for i, row in enumerate((32, 40, 48)):
            a(f"ds_write_b32 v12, v{ACC+8+i} offset:{L_T + row*256}")
    def kgen_contract_pre(self):
        a = self.a; ACC = 64
        a(f"""v_and_b32 v2, 31, v1
v_mul_u32_u24 v10, {EP}, v2
v_lshrrev_b32 v3, 5, v1
v_lshl_add_u32 v10, v3, 4, v10
v_add_u32 v10, s68, v10
s_lshr_b32 s12, s{S_W3}, 1
s_mul_i32 s12, s12, {TP}
s_and_b32 s13, s{S_W3}, 1
s_lshl_b32 s13, s13, 2
s_add_u32 s12, s12, s13
v_lshl_add_u32 v2, v2, 3, s12
v_mul_u32_u24 v12, {24*256}, v3
v_add_u32 v12, v12, v2
v_lshl_add_u32 v11, v3, 10, v2
v_mov_b32 v3, s65
v_cmp_eq_u32 vcc, 0, v1""")
        for i in range(1, 16): a(f"v_mov_b32 v{ACC+i}, 0")
        a(f"v_cndmask_b32 v{ACC}, v{ACC+1}, v3, vcc")

    def expand(self, ch):
        a = self.a; G = 64; O = 96
        for m in range(11):
            a(f"ds_read_b64 v[{G+2*m}:{G+2*m+1}], v{self.V_GA+m} offset:{L_T + ch*TP}")
        a(f"""v_lshlrev_b32 v10, 4, v186
v_add_u32 v10, {L_E + ch*4*CP}, v10
v_lshrrev_b32 v11, 1, v0
v_mul_u32_u24 v11, {CP}, v11
v_and_b32 v12, 1, v0
v_lshl_add_u32 v11, v12, 4, v11
v_mov_b32 v60, 0
v_mov_b32 v61, 0
v_mov_b32 v62, 0
v_mov_b32 v63, 0
v_cmp_gt_u32 vcc, 16, v0
s_and_saveexec_b64 s[12:13], vcc
ds_write_b128 v11, v[60:63] offset:{L_E + 4096}
s_mov_b64 exec, s[12:13]""")
        for m in range(11):
            a(f"v_add_f32 v{G+2*m}, v{G+2*m}, v{G+2*m+1}")
        for c in range(4):
            o = O + 4*c
            for k in range(4):
                m = c + 2*k
                a(f"v_cvt_pk_bf16_f32 v{o+k}, v{G+2*m}, v{G+2*(m+1)}")
            a(f"ds_write_b128 v10, v[{o}:{o+3}] offset:{c*CP}")

    V_XG = 136
    V_SG = 152
    V_MG = 168
    def handoff1_loads(self):
        L = [f"buffer_load_dwordx4 v[{self.V_XG+4*k}:{self.V_XG+4*k+3}], v{180+k}, {WS}, 0 offen sc1" for k in range(4)]
        L += [f"buffer_load_dwordx4 v[{self.V_SG+4*k}:{self.V_SG+4*k+3}], v{187 + k//2}, {WS}, {'s75' if k % 2 else '0'} offen sc1" for k in range(4)]
        return L
    def handoff1_addr(self):
        self.a(f"""v_lshrrev_b32 v180, 3, v186
v_mul_u32_u24 v180, 28672, v180
v_and_b32 v181, 7, v0
v_lshl_add_u32 v180, v181, 4, v180
s_lshl_b32 s13, s{S_PAIR}, 7
s_add_u32 s13, s13, {XG}
v_add_u32 v180, s13, v180
v_add_u32 v181, {32*28672}, v180
v_add_u32 v182, {64*28672}, v180
v_add_u32 v183, {96*28672}, v180
s_mov_b32 s75, 4096
v_lshlrev_b32 v187, 4, v186
v_add_u32 v187, {STAT}, v187
v_add_u32 v188, 8192, v187
s_lshl_b32 s13, s{S_PAIR}, 4
s_add_u32 s13, s13, {MODG}
v_mov_b32 v184, s13
v_add_u32 v185, {2*448*8}, v184""")
    def mod_loads(self):
        MG = self.V_MG
        return [f"buffer_load_dwordx4 v[{MG}:{MG+3}], v184, {WS}, 0 offen sc1",
                f"buffer_load_dwordx4 v[{MG+4}:{MG+7}], v184, {WS}, 0 offen offset:{448*8} sc1",
                f"buffer_load_dwordx4 v[{MG+8}:{MG+11}], v185, {WS}, 0 offen sc1"]

    V_XV = 120
    def make_z(self):
        a = self.a
        tags = [self.V_XG + 2*i + 1 for i in range(8)] + [self.V_SG + 2*i + 1 for i in range(8)]
        self.poll(self.handoff1_loads(), tags, 60, list(range(64, 74)), issued=True, masked=True)
        self.stamp("h1")
        MS = 64; H = 80
        for i in range(8):
            g = self.V_SG + 2*i
            a(f"v_and_b32 v{MS+2*i+1}, 0xffff0000, v{g}\nv_lshlrev_b32 v{MS+2*i}, 16, v{g}\nv_rcp_f32 v{MS+2*i+1}, v{MS+2*i+1}")
        for i in range(8):
            g = self.V_XG + 2*i
            a(f"v_lshlrev_b32 v{H+2*i}, 16, v{g}\nv_and_b32 v{H+2*i+1}, 0xffff0000, v{g}")
        for i in range(8):
            x = f"v[{H+2*i}:{H+2*i+1}]"
            a(f"v_pk_add_f32 {x}, {x}, v[{MS+2*i}:{MS+2*i+1}] op_sel_hi:[1,0] neg_lo:[0,1] neg_hi:[0,1]")
        for i in range(8):
            x = f"v[{H+2*i}:{H+2*i+1}]"
            a(f"v_pk_mul_f32 {x}, {x}, v[{MS+2*i}:{MS+2*i+1}] op_sel:[0,1] op_sel_hi:[1,1]")
        a(f"v_lshlrev_b32 v10, 2, v186\nv_lshlrev_b32 v11, 3, v186\nv_add_u32 v11, {L_XS}, v11")
        for k in range(4):
            for ch in range(2):
                o = 64 + 2*k + ch; b = H + 4*k + ch
                a(f"v_cvt_pk_bf16_f32 v{o}, v{b}, v{b+2}")
                a(f"ds_write_b32 v10, v{o} offset:{L_H + ch*HP + 480 + 1024*k}")
        for k in range(4):
            g = self.V_XG + 4*k
            a(f"v_mov_b32 v{g+1}, v{g+2}\nds_write_b64 v11, v[{g}:{g+1}] offset:{2048*k}")
    def x_fetch(self):
        a = self.a; XV = self.V_XV; g = self.V_XG
        a(f"v_lshlrev_b32 v11, 4, v186\nv_add_u32 v11, {L_XS}, v11")
        for r in range(2): a(f"ds_read_b128 v[{g+4*r}:{g+4*r+3}], v11 offset:{4096*r}")
        for i in range(8):
            a(f"v_lshlrev_b32 v{XV+2*i}, 16, v{g+i}\nv_and_b32 v{XV+2*i+1}, 0xffff0000, v{g+i}")

    def cum_k(self):
        a = self.a
        BL = 80; OW = 108; P = 44; S = 48; CU = 64
        a(f"""v_lshlrev_b32 v10, 3, v1
v_sub_u32 v10, {L_E + 2*(2044 - 1792)}, v10
s_lshl_b32 s12, s{S_W3}, 9
v_subrev_u32 v11, s12, v10""")
        for ch in range(2):
            for q in range(7):
                a(f"ds_read_b64 v[{BL+14*ch+2*q}:{BL+14*ch+2*q+1}], v10 offset:{ch*4*CP + 512*(7-q)}")
        for r in range(2):
            for ch in range(2):
                a(f"ds_read_b64 v[{OW+4*r+2*ch}:{OW+4*r+2*ch+1}], v11 offset:{ch*4*CP + 512*(7-4*r)}")
        a("s_mov_b32 s12, 0x3f803f80")
        for q in range(3):
            a(f"s_cmp_gt_u32 s{S_W3}, {q}\ns_cselect_b32 s{13+q}, s12, 0")
        for ch in range(2):
            for r in range(2):
                d = P + 2*r + ch; first = True
                for q in (range(3) if r == 0 else range(7)):
                    w = f"s{13 + q % 4}" if (r == 0 or q >= 4) else "s12"
                    for h in range(2):
                        a(f"v_dot2_f32_bf16 v{d}, v{BL+14*ch+2*q+h}, {w}, {'0' if first else f'v{d}'}"); first = False
        for r in range(2):
            for ch in range(2):
                o = OW + 4*r + 2*ch; c = CU + 8*r + 4*ch
                a(f"""v_and_b32 v{c}, 0xffff0000, v{o+1}
v_lshlrev_b32 v{c+1}, 16, v{o+1}
v_and_b32 v{c+2}, 0xffff0000, v{o}
v_lshlrev_b32 v{c+3}, 16, v{o}
v_add_f32 v{c+1}, v{c}, v{c+1}
v_add_f32 v{c+2}, v{c+1}, v{c+2}
v_add_f32 v{c+3}, v{c+2}, v{c+3}
v_mov_b32 v{S+2*r+ch}, v{c+3}""")
        for mod in [f"row_shr:{sh} row_mask:0xf bank_mask:0xf bound_ctrl:0" for sh in (1, 2, 4, 8)] + \
                   ["row_bcast:15 row_mask:0xa bank_mask:0xf", "row_bcast:31 row_mask:0xc bank_mask:0xf"]:
            for k in range(8): a(f"v_add_f32_dpp v{P+k}, v{P+k}, v{P+k} {mod}")
        for k in range(4): a(f"v_readlane_b32 s{12+k}, v{P+k}, 63")
        for k in range(4): a(f"v_sub_f32 v{S+k}, v{S+k}, v{CU+4*k+3}")
        for k in range(4): a(f"v_add_f32 v{S+k}, s{12+k}, v{S+k}")
        for k in range(4):
            for e in range(4): a(f"v_add_f32 v{CU+4*k+e}, v{S+k}, v{CU+4*k+e}")

    def conv_pre(self):
        a = self.a
        a(f"""s_lshr_b32 s12, s{S_W3}, 1
s_and_b32 s14, s{S_W3}, 1
s_lshl_b32 s15, s14, 8
s_mul_i32 s13, s12, {4*CP}
s_add_u32 s13, s13, s15
s_add_u32 s13, s13, {L_E + 2*(1804 - 1792)}
v_and_b32 v2, 3, v1
v_sub_u32 v2, 3, v2
v_mul_u32_u24 v2, {CP}, v2
v_lshrrev_b32 v3, 4, v1
v_bfe_u32 v4, v1, 2, 2
v_lshlrev_b32 v5, 1, v3
v_sub_u32 v4, v5, v4
v_lshlrev_b32 v4, 3, v4
v_add3_u32 v10, v2, v4, s13
s_mul_i32 s13, s12, {HP}
s_add_u32 s13, s13, s15
s_add_u32 s13, s13, {L_H}
v_and_b32 v2, 15, v1
v_lshlrev_b32 v4, 5, v2
v_lshl_add_u32 v4, v3, 4, v4
v_add_u32 v11, s13, v4
v_bfe_u32 v4, v1, 1, 2
v_xor_b32 v4, v4, v3
v_lshl_add_u32 v4, v2, 2, v4
v_lshlrev_b32 v4, 4, v4
s_lshl_b32 s13, s{S_W3}, 13
s_add_u32 s13, s13, {L_Y}
v_add_u32 v12, s13, v4""")
    def conv_main(self):
        a = self.a
        ACC = 16; F = 64
        def fa(s, j): return F + 64 * (s % 2) + 4 * j
        def fb(s, p): return F + 64 * (s % 2) + 32 + 4 * p
        def reads(s):
            out = []
            for k in range(8):
                out.append(f"ds_read_b64 v[{fa(s,k)}:{fa(s,k)+1}], v10 offset:{512*(7-k) + 64*s}")
                out.append(f"ds_read_b64 v[{fa(s,k)+2}:{fa(s,k)+3}], v10 offset:{512*(7-k) + 64*s + 8}")
                out.append(f"ds_read_b128 v[{fb(s,k)}:{fb(s,k)+3}], v11 offset:{512*k + 64*s}")
            return out
        for x in reads(0): a(x)
        for s in range(4):
            if s < 3: trip = sorted([(max(j, Q - j), Q, j) for Q in range(8) for j in range(Q + 1)])
            else: trip = [(0, Q, j) for Q in range(8) for j in range(Q + 1)]
            seen = set(); mf = []
            for _, Q, j in trip:
                d = f"v[{ACC+4*Q}:{ACC+4*Q+3}]"
                c = "0" if (s == 0 and Q not in seen) else d
                seen.add(Q)
                mf.append(f"v_mfma_f32_16x16x32_bf16 {d}, v[{fa(s,j)}:{fa(s,j)+3}], v[{fb(s,Q-j)}:{fb(s,Q-j)+3}], {c}")
            if s < 3:
                seq = merge(mf, reads(s + 1))
                if s < 2: seq = merge(seq, self.w13_loads()[7*s:7*s+7])
            else:
                seq = []; k = 0
                wr = lambda Q: f"ds_write_b128 v12, v[{ACC+4*Q}:{ACC+4*Q+3}] offset:{1024*Q}"
                at = {12: 0, 15: 1, 18: 2, 21: 3, 24: 4, 29: 5}
                for i, x in enumerate(mf):
                    seq.append(x)
                    if i in at: seq.append(wr(at[i]))
                seq += [wr(6), wr(7)]
            for x in seq: a(x)

    def conv_epilogue_pre(self):
        a = self.a; MG = self.V_MG; XV = self.V_XV; CU = 64
        self.poll(self.mod_loads(), [MG + 2*i + 1 for i in range(6)], 60, [61, 62, 63], issued=True, sleep=2)
        for ch in range(2):
            a(f"v_mul_f32 v{MG+2*ch}, v{MG+8+2*ch}, v{MG+2*ch}\nv_mul_f32 v{MG+4+2*ch}, v{MG+8+2*ch}, v{MG+4+2*ch}")
        for r in range(2):
            for ch in range(2):
                for e in range(4):
                    a(f"v_fmac_f32 v{XV+2*(4*r+e)+ch}, v{MG+2*ch}, v{CU+8*r+4*ch+e}")
        a(f"""v_bfe_u32 v2, v1, 3, 2
v_xor_b32 v2, v2, v186
v_lshlrev_b32 v2, 4, v2
v_add_u32 v2, {L_Y}, v2
s_mul_i32 s12, s{S_W3}, {224*1024}
s_lshl_b32 s13, s{S_PAIR}, 10
s_add_u32 s12, s12, s13
s_add_u32 s70, s12, {X2}
s_add_u32 s71, s70, {4*224*1024}
v_lshlrev_b32 v3, 4, v1
s_lshl_b32 s12, s{S_W3}, 8
s_add_u32 s12, s12, s{S_PAIR}
s_lshl_b32 s12, s12, 6
s_add_u32 s72, s12, {FLG2}""")
    def conv_epilogue(self):
        a = self.a; AL = self.V_MG + 4; XV = self.V_XV; Y = 64
        for r in range(2):
            for ch in range(2):
                for kh in range(2):
                    b = Y + 16*r + 8*ch + 4*kh
                    a(f"ds_read_b128 v[{b}:{b+3}], v2 offset:{16384*ch + 8192*kh + 4096*r}")
        for r in range(2):
            for ch in range(2):
                for e in range(4):
                    b = Y + 16*r + 8*ch + e
                    a(f"v_add_f32 v{b}, v{b}, v{b+4}\nv_fmac_f32 v{XV+2*(4*r+e)+ch}, v{AL+2*ch}, v{b}")
            for e in range(4):
                i = 4*r + e
                a(f"v_cvt_pk_bf16_f32 v{96+i}, v{XV+2*i}, v{XV+2*i+1}")
            a(f"buffer_store_dwordx4 v[{96+4*r}:{99+4*r}], v3, {WS}, s{70+r} offen sc1")
    def counters_clear(self):
        if self.o["b2"] != "atomic": return
        a = self.a
        sk = self.lab("cc")
        a(f"""s_lshl_b32 s13, s2, 3
s_add_u32 s13, s13, s{S_WAVE}
s_cmp_lg_u32 s13, 4
s_cbranch_scc1 {sk}
v_lshlrev_b32 v9, 8, v1
v_add_u32 v9, {FLG2}, v9
buffer_store_dword v7, v9, {WS}, 0 offen sc1""")
        a.wait(vm=0)
        a.label(sk)
    def arrive2(self):
        a = self.a
        if self.o["b2"] != "atomic":
            self.flag_store(72); return
        a(f"""s_lshl_b32 s72, s{S_W3}, 3
s_add_u32 s72, s72, s{S_XCD}
s_lshl_b32 s72, s72, 8
s_add_u32 s72, s72, {FLG2}
v_mov_b32 v8, 1
v_mov_b32 v7, 0
s_mov_b64 exec, 1
buffer_atomic_add v8, v7, {WS}, s72 offen sc1
s_mov_b64 exec, -1""")
    def flag_store(self, sreg):
        a = self.a
        a(f"v_mov_b32 v8, s{S_NONCE}\nv_mov_b32 v7, 0")
        a(f"s_mov_b64 exec, 1\nbuffer_store_dword v8, v7, {WS}, s{sreg} offen sc1\ns_mov_b64 exec, -1")

    V_WR = 192
    def w13_addr(self):
        a = self.a
        a(f"s_cmp_ge_u32 s{S_WAVE}, 4")
        self.srd_sel(R_A, P_WU, P_WG, 448 * 3584)
        a(f"""v_lshrrev_b32 v248, 3, v1
v_mul_u32_u24 v249, {14*3584}, v248
v_and_b32 v250, 7, v1
v_lshl_add_u32 v249, v250, 4, v249
s_mul_i32 s74, s{S_W3}, {112*3584}
s_lshl_b32 s13, s{S_FC}, 7
s_add_u32 s74, s74, s13
v_mul_u32_u24 v251, 112, v248
s_mul_i32 s73, s{S_W3}, 896
s_add_u32 s73, s73, {MODG + 4*448*8}""")
    def w13_loads(self):
        L = []
        for i in range(14):
            x = f"buffer_load_dwordx4 v[{self.V_WR+4*i}:{self.V_WR+4*i+3}], v249, {RA}, s74 offen offset:{3584*(i%2)}"
            if i % 2 == 1: x += f"\ns_add_u32 s74, s74, {2*3584}"
            L.append(x)
        return L
    V_SV = 16
    def s_loads(self):
        return [f"buffer_load_dwordx4 v[{self.V_SV+4*j}:{self.V_SV+4*j+3}], v251, {WS}, s73 offen offset:{16*j} sc1" for j in range(7)]
    def s_check(self):
        SV = self.V_SV
        self.poll(self.s_loads(), [SV + 2*i + 1 for i in range(14)], 60, list(range(52, 59)), issued=True, sleep=2)
    def w13_stage(self, hook=None):
        a = self.a; SV = self.V_SV
        a(f"""s_lshr_b32 s12, s{S_WAVE}, 2
s_mul_i32 s13, s12, {WM}
s_mul_i32 s14, s{S_W3}, {112*128}
s_add_u32 s13, s13, s14
s_add_u32 s13, s13, {L_W}
s_lshl_b32 s12, s12, 2
v_and_b32 v60, 1, v248
v_lshlrev_b32 v60, 1, v60
v_xor_b32 v60, v60, v250
v_xor_b32 v60, s12, v60
v_mul_u32_u24 v61, {14*128}, v248
v_lshl_add_u32 v60, v60, 4, v61
v_add_u32 v60, s13, v60
v_xor_b32 v61, 32, v60""")
        for i in range(14):
            w = self.V_WR + 4*i; s = SV + 2*i; t = 64 + 8*(i % 2); o = 80 + 4*(i % 2)
            a(f"v_lshrrev_b32 v{s+1}, 16, v{s}")
            for e in range(4):
                a(f"v_dot2_f32_bf16 v{t+2*e}, v{w+e}, v{s+1}, 0")
                a(f"v_dot2_f32_bf16 v{t+2*e+1}, v{w+e}, v{s}, 0")
            for e in range(4):
                a(f"v_cvt_pk_bf16_f32 v{o+e}, v{t+2*e}, v{t+2*e+1}")
            a(f"ds_write_b128 v{60 + (i//2) % 2}, v[{o}:{o+3}] offset:{128*i}")
            if hook: hook(i)

    def barrier2(self):
        a = self.a
        sk = self.lab("nopoll")
        if self.o["b2"] == "atomic":
            lp = self.lab("spin")
            a(f"s_cmp_lg_u32 s{S_WAVE}, 0\ns_cbranch_scc1 {sk}")
            st = a.state()
            a(f"""s_and_b32 s12, s{S_RB}, 3
s_lshl_b32 s12, s12, 11
s_add_u32 s12, s12, {FLG2}
v_and_b32 v62, 7, v1
v_lshl_add_u32 v62, v62, 8, s12
s_mov_b32 s9, {SPIN}""")
            a.label(lp)
            a(f"""buffer_load_dword v63, v62, {WS}, 0 offen sc1
v_cmp_ne_u32 vcc, 28, v63
s_cbranch_vccz {sk}""")
            if self.o["b2sleep"]: a(f"s_sleep {self.o['b2sleep']}")
            a(f"s_sub_u32 s9, s9, 1\ns_cmp_lg_u32 s9, 0\ns_cbranch_scc1 {lp}")
        else:
            a(f"s_cmp_ge_u32 s{S_WAVE}, 4\ns_cbranch_scc1 {sk}")
            st = a.state()
            a(f"""s_and_b32 s12, s{S_RB}, 3
s_lshl_b32 s12, s12, 14
s_add_u32 s12, s12, {FLG2}
v_min_u32 v62, 223, v0
v_lshlrev_b32 v62, 6, v62
s_mov_b64 vcc, -1""")
            self.poll([f"buffer_load_dword v63, v62, {WS}, s12 offen sc1"], [63], 60, [], masked=True, sleep=self.o["b2sleep"])
        a.label(sk); a.set_state(st); a.win = []
        self.barrier()

    def x2_touch(self):
        self.a(f"""s_lshr_b32 s12, s{S_SLOT}, 2
s_lshl_b32 s12, s12, 15
s_mul_i32 s13, s{S_RB}, {224*1024}
s_add_u32 s12, s12, s13
s_lshl_b32 s13, s{S_WAVE}, 7
s_add_u32 s12, s12, s13
s_add_u32 s12, s12, {X2}
v_lshl_add_u32 v8, v2, 10, s12
buffer_load_dword v9, v8, {WS}, 0 offen sc1""")

    V_B = 80
    def gemm1(self):
        a = self.a; B = self.V_B
        ACC = 16; AF = 48; NA = 3
        AUG = 72
        a(f"""v_and_b32 v2, 31, v1
v_lshrrev_b32 v3, 5, v1
v_lshlrev_b32 v4, 2, v2
v_lshl_add_u32 v4, v3, 12, v4
s_mul_i32 s12, s{S_RB}, {224*1024}
s_lshl_b32 s13, s{S_WAVE}, 7
s_add_u32 s12, s12, s13
s_add_u32 s12, s12, {X2}
v_add_u32 v4, s12, v4
v_bfe_u32 v5, v1, 4, 1
v_bfe_u32 v6, v1, 2, 2
v_lshl_add_u32 v8, v3, 3, v6
v_lshlrev_b32 v8, 7, v8
v_mul_u32_u24 v9, {WM}, v5
v_add_u32 v8, v8, v9
v_lshrrev_b32 v6, 1, v6
v_lshl_add_u32 v6, v5, 1, v6
v_lshl_add_u32 v8, v6, 5, v8
v_and_b32 v6, 3, v1
v_lshl_add_u32 v10, v6, 3, v8
v_add_u32 v10, {L_W}, v10
v_xor_b32 v11, 32, v10
v_lshlrev_b32 v12, 4, v2
s_lshl_b32 s71, s{S_FC}, 11
s_add_u32 s71, s71, {CAUG}
s_lshl_b32 s12, s{S_RB}, 3
s_add_u32 s12, s12, s{S_WAVE}
s_mul_i32 s13, s12, 28
s_add_u32 s13, s13, s{S_FC}
s_lshl_b32 s72, s13, 12
s_add_u32 s72, s72, {ACT}
s_lshl_b32 s73, s13, 6
s_add_u32 s73, s73, {FLG3}
v_lshlrev_b32 v13, 4, v1""")
        def xl(s):
            L = [f"buffer_load_dword v{B+4*s+e}, v4, {WS}, 0 offen offset:{1024*e} sc1" for e in range(4)]
            return L + [f"v_add_u32 v4, 8192, v4"]
        def ard(s):
            b = AF + 8 * (s % NA)
            return [f"ds_read_b64_tr_b16 v[{b+4*t+2*h}:{b+4*t+2*h+1}], v{10+t} offset:{2048*s + 512*h}" for t in range(2) for h in range(2)]
        cond_barrier = self.group_barrier
        NPRE = 8
        for p in range(2):
            if p == 0:
                cond_barrier(False)
                self.x2_touch()
                for s in range(NPRE):
                    for x in xl(s): a(x)
            augl = [f"buffer_load_dwordx4 v[{AUG+4*t}:{AUG+4*t+3}], v12, {WS}, s71 offen offset:{1024*p + 512*t} sc1" for t in range(2)]
            if p == 1:
                for x in augl: a(x)
            for s in range(NA - 1):
                for x in ard(s): a(x)
            a("s_setprio 1")
            for s in range(28):
                if p == 0 and s in (1,): self.stamp(f"g1s{s}")
                b = AF + 8 * (s % NA)
                nxt = ard(s + NA - 1) if s + NA - 1 < 28 else []
                ld = xl(s + NPRE) if (p == 0 and s + NPRE < 28) else []
                for t in range(2):
                    d = f"v[{ACC+16*t}:{ACC+16*t+15}]"
                    for x in nxt[2*t:2*t+2]: a(x)
                    a(f"v_mfma_f32_32x32x16_bf16 {d}, v[{b+4*t}:{b+4*t+3}], v[{B+4*s}:{B+4*s+3}], {'0' if s == 0 else d}")
                    for x in (ld[:2] if t == 0 else ld[2:]): a(x)
                if p == 0 and s + NPRE == 27:
                    for x in augl: a(x)
                    cond_barrier(True)
            a("s_setprio 0")
            if p == 0:
                self.stamp("g1p0")
                a("v_xor_b32 v10, 64, v10\nv_xor_b32 v11, 64, v11\ns_mov_b32 s12, 0x3f803f80")
                for k in range(112):
                    j = k % 2
                    if k < 2: a(f"v_dot2_f32_bf16 v{48+j}, v{B+k}, s12, 0\nv_dot2_f32_bf16 v{50+j}, v{B+k}, v{B+k}, 0")
                    else: a(f"v_dot2c_f32_bf16 v{48+j}, s12, v{B+k}\nv_dot2c_f32_bf16 v{50+j}, v{B+k}, v{B+k}")
                a("""v_add_f32 v48, v48, v49
v_add_f32 v50, v50, v51
v_mov_b32 v49, v48
v_mov_b32 v51, v50
v_permlane32_swap_b32 v48, v49
v_permlane32_swap_b32 v50, v51
v_add_f32 v48, v48, v49
v_add_f32 v50, v50, v51""")
                self.ln_finish(48, 50, 52)
                a(f"""v_cvt_pk_bf16_f32 v4, -v48, -v48
v_cvt_pk_bf16_f32 v6, v50, v50
v_mov_b32 v5, 0
v_mov_b32 v7, 0
v_and_b32 v50, 0xffff0000, v6
v_rcp_f32 v50, v50
v_cmp_gt_u32 vcc, 32, v1
v_mul_f32 v14, {f32(-LOG2E)}, v50
v_mul_f32 v15, v50, v50
v_cndmask_b32 v4, 0, v4, vcc
v_cndmask_b32 v6, 0, v6, vcc""")
            self.poll(augl, [AUG + 2*i + 1 for i in range(4)], 48, [49, 50], issued=True, sleep=2)
            for i in range(4): a(f"v_mov_b32 v{AUG+2*i+1}, 0")
            for t in range(2):
                d = f"v[{ACC+16*t}:{ACC+16*t+15}]"
                a(f"v_mfma_f32_32x32x16_bf16 {d}, v[{AUG+4*t}:{AUG+4*t+3}], v[4:7], {d}")
            for t in range(2):
                g = ACC + 16*t; T = 48; O = 56 + 4*t
                for i in range(8): a(f"v_mul_f32 v{T+i}, v14, v{g+i}")
                for i in range(8): a(f"v_exp_f32 v{T+i}, v{T+i}\nv_mul_f32 v{g+i}, v{g+i}, v{g+8+i}")
                for i in range(8): a(f"v_add_f32 v{T+i}, 1.0, v{T+i}")
                for i in range(8): a(f"v_rcp_f32 v{T+i}, v{T+i}\nv_mul_f32 v{g+i}, v15, v{g+i}")
                for i in range(8): a(f"v_mul_f32 v{g+i}, v{g+i}, v{T+i}")
                for i in range(4): a(f"v_cvt_pk_bf16_f32 v{O+i}, v{g+2*i}, v{g+2*i+1}")
                a(f"buffer_store_dwordx4 v[{O}:{O+3}], v13, {WS}, s72 offen offset:{2048*p + 1024*t} sc1")
            if p == 1: self.stamp("g1e1")
        a.wait(vm=0)
        self.flag_store(73)

    def gemm2(self):
        a = self.a
        WD = 144; ACC = 16; AB = 80; NB = 6; PF = 128
        self.srd(R_A, P_WD, 1792 * 896)
        a(f"""s_lshl_b32 s64, s{S_XCD}, 2
s_and_b32 s12, s{S_SLOT}, 3
s_add_u32 s64, s64, s12
s_lshr_b32 s65, s{S_SLOT}, 2
v_and_b32 v2, 31, v1
v_lshrrev_b32 v3, 5, v1
v_mul_u32_u24 v4, {4*896}, v3
v_lshl_add_u32 v4, v2, 2, v4
s_mul_i32 s12, s{S_WAVE}, {14*16*896}
s_lshl_b32 s13, s65, 7
s_add_u32 s12, s12, s13
v_add_u32 v4, s12, v4""")
        for m in range(14):
            for i in range(8):
                a(f"buffer_load_dword v{WD+8*m+i}, v4, {RA}, 0 offen offset:{896*(i%4)}")
                if i % 4 == 3: a(f"v_add_u32 v4, {8*896}, v4")
        a(f"""v_min_u32 v6, 55, v1
v_lshlrev_b32 v6, 6, v6
s_mul_i32 s12, s64, {56*64}
s_add_u32 s12, s12, {FLG3}""")
        self.poll([f"buffer_load_dword v8, v6, {WS}, s12 offen sc1"], [8], 9, [])
        self.stamp("h3")
        a(f"""s_mul_i32 s70, s64, {2*112*1024}
s_mul_i32 s12, s{S_WAVE}, {14*1024}
s_add_u32 s70, s70, s12
s_add_u32 s70, s70, {ACT}
v_lshlrev_b32 v10, 4, v1
v_add_u32 v11, {112*1024}, v10
s_mov_b32 s68, 0x05040100
s_mov_b32 s69, 0x07060302""")
        def bl(m):
            b = AB + 8 * (m % NB)
            L = [f"buffer_load_dwordx4 v[{b+4*g}:{b+4*g+3}], v{10+g}, {WS}, s70 offen offset:{1024*(m%4)} sc1" for g in range(2)]
            if m % 4 == 3: L.append("s_add_u32 s70, s70, 4096")
            return L
        def perms(m):
            o = PF + 8 * (m % 2); w = WD + 8*m
            return [f"v_perm_b32 v{o+4*par+k}, v{w+2*k+1}, v{w+2*k}, s{68+par}" for par in range(2) for k in range(4)]
        for m in range(NB):
            for x in bl(m): a(x)
        for x in perms(0): a(x)
        for m in range(14):
            o = PF + 8 * (m % 2); b = AB + 8 * (m % NB)
            mf = []
            for g in range(2):
                for par in range(2):
                    d = f"v[{ACC+32*g+16*par}:{ACC+32*g+16*par+15}]"
                    mf.append(f"v_mfma_f32_32x32x16_bf16 {d}, v[{o+4*par}:{o+4*par+3}], v[{b+4*g}:{b+4*g+3}], {'0' if m == 0 else d}")
            for x in merge(mf, perms(m + 1) if m < 13 else []): a(x)
            if m + NB < 14:
                for x in bl(m + NB): a(x)
        self.stamp("g2")
        XR = 144; GB = 148
        a(f"""s_lshr_b32 s12, s64, 2
s_mul_i32 s12, s12, {224*1024}
s_lshl_b32 s13, s65, 15
s_add_u32 s12, s12, s13
s_lshl_b32 s13, s{S_W3}, 13
s_add_u32 s12, s12, s13
s_and_b32 s13, s64, 3
s_lshl_b32 s13, s13, 8
s_add_u32 s12, s12, s13
s_lshr_b32 s13, s{S_WAVE}, 2
s_lshl_b32 s13, s13, 7
s_add_u32 s12, s12, s13
s_add_u32 s12, s12, {X2}
v_lshlrev_b32 v4, 2, v2
v_lshl_add_u32 v4, v3, 12, v4""")
        for e in range(4):
            a(f"buffer_load_dword v{XR+e}, v4, {WS}, s12 offen offset:{1024*e} sc1")
        a(f"""s_lshl_b32 s12, s65, 9
s_lshl_b32 s13, s{S_W3}, 7
s_add_u32 s12, s12, s13
s_add_u32 s12, s12, {MODG + 5*448*8}
v_lshlrev_b32 v5, 6, v3""")
        a("s_mov_b32 s71, s12")
        gbl = [f"buffer_load_dwordx4 v[{GB+4*e}:{GB+4*e+3}], v5, {WS}, s71 offen offset:{16*e} sc1" for e in range(4)]
        for x in gbl: a(x)
        a(f"""s_lshl_b32 s12, s{S_WAVE}, 14
v_add_u32 v6, s12, v10
s_lshl_b32 s12, s{S_WAVE}, 11
v_add_u32 v8, s12, v10
v_add_u32 v9, 65536, v8
s_barrier""")
        for g in range(2):
            for G in range(4):
                for par in range(2):
                    b = ACC + 32*g + 16*par + 4*G
                    a(f"ds_write_b128 v6, v[{b}:{b+3}] offset:{(g*4 + G)*2048 + par*1024}")
        self.barrier()
        R = 16
        for src in range(8):
            for par in range(2):
                b = R + 8*src + 4*par
                a(f"ds_read_b128 v[{b}:{b+3}], v{8 + src//4} offset:{(src % 4)*16384 + par*1024}")
        self.srd(R_B, P_OUT, 2048 * 896)
        a(f"""s_lshl_b32 s12, s64, 1
s_lshr_b32 s13, s{S_WAVE}, 2
s_add_u32 s12, s12, s13
s_mul_i32 s12, s12, {32*896}
s_lshl_b32 s13, s65, 7
s_add_u32 s12, s12, s13
s_lshl_b32 s13, s{S_W3}, 5
s_add_u32 s12, s12, s13
v_mul_u32_u24 v4, 896, v2
v_lshl_add_u32 v4, v3, 4, v4""")
        self.poll(gbl, [GB + 2*i + 1 for i in range(8)], 168, [169, 170, 171, 172], issued=True, sleep=2)
        for n in (4, 2, 1):
            for src in range(n):
                for k in range(8):
                    a(f"v_add_f32 v{R+8*src+k}, v{R+8*src+k}, v{R+8*(src+n)+k}")
        for e in range(4):
            a(f"""v_lshlrev_b32 v{32+2*e}, 16, v{XR+e}
v_and_b32 v{33+2*e}, 0xffff0000, v{XR+e}
v_fmac_f32 v{32+2*e}, v{GB+4*e}, v{R+e}
v_fmac_f32 v{33+2*e}, v{GB+4*e+2}, v{R+4+e}""")
        for e in range(4):
            a(f"v_cvt_pk_bf16_f32 v{40+e}, v{32+2*e}, v{33+2*e}")
        a(f"buffer_store_dwordx4 v[40:43], v4, {RB}, s12 offen")

    L_VEC = 2 * 448 * 128
    def gemv_dma(self, srd, pitch, sbase, valid):
        a = self.a
        sk = self.lab("nodma")
        a(f"""s_cmp_ge_u32 s68, {valid}
s_cbranch_scc1 {sk}
v_mul_u32_u24 v10, {pitch}, v36
v_lshl_add_u32 v11, v38, 4, v10
v_lshl_add_u32 v10, v37, 4, v10
s_mul_i32 s12, s{S_W3}, {112*pitch}
s_add_u32 s{sbase}, s{sbase}, s12
s_mul_i32 s12, s{S_WAVE}, {112*128}""")
        for i in range(14):
            a(f"s_mov_b32 m0, s12\ns_add_u32 s12, s12, 1024")
            a(f"buffer_load_dwordx4 v{10 + i % 2}, s[{srd}:{srd+3}], s{sbase} offen lds")
            a(f"s_add_u32 s{sbase}, s{sbase}, {8*pitch}")
        a.label(sk)
    def gemv_mma(self):
        a = self.a
        def rd(s):
            b = 64 + 8*s
            return [f"ds_read_b64_tr_b16 v[{b}:{b+1}], v40 offset:{4096*s}",
                    f"ds_read_b64_tr_b16 v[{b+2}:{b+3}], v40 offset:{4096*s + 512}",
                    f"ds_read_b128 v[{b+4}:{b+7}], v41 offset:{64*s}"]
        for s in range(4):
            for x in rd(s): a(x)
        for s in range(14):
            b = 64 + 8*s
            a(f"v_mfma_f32_16x16x32_bf16 v[32:35], v[{b}:{b+3}], v[{b+4}:{b+7}], {'0' if s == 0 else 'v[32:35]'}")
            if s + 4 < 14:
                for x in rd(s + 4): a(x)
    def group_barrier(self, first_group):
        sk = self.lab("gb")
        self.a(f"s_cmp_ge_u32 s{S_WAVE}, 4\n" + ("s_cbranch_scc1" if first_group else "s_cbranch_scc0") + f" {sk}\ns_barrier")
        self.a.label(sk)

    def spare(self):
        a = self.a; LV = self.L_VEC
        self.zero_stamps()
        self.srd(R_A, P_C, 896)
        a(f"""v_lshlrev_b32 v39, 1, v0
buffer_load_ushort v60, v39, {RA}, 0 offen
s_lshl_b32 s67, s{S_XCD}, 2
s_add_u32 s67, s67, s{S_SLOT}
s_sub_u32 s67, s67, 28
s_lshr_b32 s12, s{S_WAVE}, 2
s_lshl_b32 s12, s12, 5
s_add_u32 s68, s67, s12
s_add_u32 s14, s68, 22
s_sub_u32 s15, s68, 10
s_cmp_lt_u32 s68, 10
s_cselect_b32 s14, s14, s15
s_cmp_ge_u32 s68, 32
s_cselect_b32 s14, s68, s14
s_mul_i32 s12, s14, 37
s_lshr_b32 s12, s12, 8
s_mul_i32 s13, s12, 7
s_sub_u32 s13, s14, s13
s_lshl_b32 s12, s12, 2
s_lshr_b32 s12, 0x534210, s12
s_and_b32 s65, s12, 15
s_mul_i32 s64, s65, 7
s_add_u32 s64, s64, s13
s_lshl_b32 s69, s64, 7
v_lshrrev_b32 v36, 3, v1
v_and_b32 v37, 2, v36
v_and_b32 v38, 7, v1
v_xor_b32 v37, v37, v38
v_xor_b32 v38, 4, v37
v_lshrrev_b32 v42, 4, v1
v_bfe_u32 v43, v1, 2, 2
v_lshl_add_u32 v40, v42, 3, v43
v_lshlrev_b32 v40, 7, v40
v_lshrrev_b32 v43, 1, v43
v_and_b32 v44, 1, v42
v_lshl_add_u32 v43, v44, 1, v43
v_xor_b32 v43, s{S_W3}, v43
v_lshl_add_u32 v40, v43, 5, v40
v_and_b32 v43, 3, v1
v_lshl_add_u32 v40, v43, 3, v40
s_lshr_b32 s12, s{S_WAVE}, 2
s_mul_i32 s12, s12, {448*128}
v_add_u32 v40, s12, v40
v_and_b32 v43, 1, v1
v_mul_u32_u24 v43, 1088, v43
v_lshl_add_u32 v41, v42, 4, v43
v_add_u32 v41, {LV}, v41
v_add_u32 v39, {LV}, v39""")
        self.srd(R_B, P_WM, 448 * 5376)
        def silu():
            a(f"""v_lshlrev_b32 v60, 16, v60
v_mul_f32 v62, {f32(-LOG2E)}, v60
v_exp_f32 v62, v62
v_add_f32 v62, 1.0, v62
v_rcp_f32 v62, v62
v_mul_f32 v60, v60, v62
v_cvt_pk_bf16_f32 v60, v60, v60
ds_write_b16 v39, v60
ds_write_b16 v39, v60 offset:1088""")
            a.wait(lgkm=0)
        sk = self.lab("spB"); sj = self.lab("spJ")
        a(f"s_cmp_ge_u32 s{S_WAVE}, 4\ns_cbranch_scc1 {sk}")
        st = a.state()
        self.gemv_dma(R_B, 5376, 69, 42)
        silu()
        a(f"s_branch {sj}")
        a.label(sk); a.set_state(st)
        self.phase_a_addr()
        self.phase_a()
        a("s_setprio 0")
        a(f"v_mov_b32 v4, {LV + 2304}\nds_write_b32 v4, v3")
        self.stamp("pubA")
        silu()
        a("s_barrier")
        self.gemv_dma(R_B, 5376, 69, 42)
        a.label(sj); a.win = []
        a.wait(vm=0)
        self.stamp("chain")
        a("s_barrier")
        a(f"v_mov_b32 v4, {LV + 2304}\nds_read_b32 v8, v4\nv_readfirstlane_b32 s{S_NONCE}, v8")
        skm = self.lab("nomod")
        a(f"s_cmp_ge_u32 s68, 42\ns_cbranch_scc1 {skm}")
        self.gemv_mma()
        a(f"""s_cmp_eq_u32 s65, 1
s_cselect_b32 s12, 1.0, 0
s_cmp_eq_u32 s65, 4
s_cselect_b32 s12, 1.0, s12""")
        for e in range(4):
            self.bf16r(32 + e, 32 + e)
            a(f"v_add_f32 v{32+e}, s12, v{32+e}")
            self.bf16r(48 + 2*e, 32 + e)
            a(f"v_mov_b32 v{49+2*e}, s{S_NONCE}")
        a(f"""v_lshlrev_b32 v45, 5, v42
s_lshl_b32 s12, s64, 9
s_lshl_b32 s13, s{S_W3}, 7
s_add_u32 s12, s12, s13
s_add_u32 s12, s12, {MODG}
s_mov_b32 exec_lo, 0x00010001
s_mov_b32 exec_hi, 0x00010001
buffer_store_dwordx4 v[48:51], v45, {WS}, s12 offen sc1
buffer_store_dwordx4 v[52:55], v45, {WS}, s12 offen offset:16 sc1
s_mov_b64 exec, -1""")
        self.stamp("kgen")
        a.label(skm); a.win = []
        self.group_barrier(True)
        a(f"""s_barrier
s_sub_u32 s68, s{S_SLOT}, 28
s_lshl_b32 s68, s68, 1
s_lshr_b32 s12, s{S_WAVE}, 2
s_add_u32 s68, s68, s12
s_lshr_b32 s70, s{S_XCD}, 1
s_mul_i32 s70, s70, 7
s_add_u32 s70, s70, s68
s_and_b32 s71, s{S_XCD}, 1""")
        self.srd_sel(R_A, P_WU, P_WG, 448 * 3584)
        a("s_lshl_b32 s69, s70, 7")
        self.gemv_dma(R_A, 3584, 69, 7)
        a(f"v_min_u32 v46, 447, v0\nv_lshlrev_b32 v46, 3, v46\nv_add_u32 v46, {MODG + 3*448*8}, v46\ns_mov_b64 vcc, -1")
        loads = [f"buffer_load_dwordx2 v[{56+2*v}:{57+2*v}], v46, {WS}, 0 offen offset:{3584*v} sc1" for v in range(2)]
        self.poll(loads, [57, 59], 47, [], masked=True, sleep=2)
        self.stamp("h1")
        a("ds_write_b16_d16_hi v39, v58\nds_write_b16_d16_hi v39, v56 offset:1088")
        a.wait(vm=0, lgkm=0)
        a(f"s_barrier\ns_cmp_ge_u32 s68, 7\ns_cbranch_scc1 L_fin")
        self.gemv_mma()
        for e in range(4):
            self.bf16r(47, 32 + e)
            a(f"v_sub_f32 v46, v{32+e}, v47\nv_cvt_pk_bf16_f32 v{48+2*e}, v47, v46\nv_mov_b32 v{49+2*e}, s{S_NONCE}")
        a(f"""v_lshlrev_b32 v45, 6, v42
v_and_b32 v46, 1, v1
v_lshl_add_u32 v45, v46, 3, v45
s_lshl_b32 s12, s70, 11
s_lshl_b32 s13, s71, 8
s_add_u32 s12, s12, s13
s_lshl_b32 s13, s{S_W3}, 9
s_add_u32 s12, s12, s13
s_add_u32 s12, s12, {CAUG}
s_mov_b32 exec_lo, 0x00030003
s_mov_b32 exec_hi, 0x00030003""")
        for e in range(4):
            a(f"buffer_store_dwordx2 v[{48+2*e}:{49+2*e}], v45, {WS}, s12 offen offset:{16*e} sc1")
        a("s_mov_b64 exec, -1")
        self.stamp("pubX2")

    def finish(self):
        a = self.a
        a.label("L_fin"); a.win = []
        if self.stamps:
            a.wait(vm=0)
            self.stamp("end")
            a(f"""s_lshl_b32 s12, s2, 3
s_add_u32 s12, s12, s{S_WAVE}
s_lshl_b32 s12, s12, 7
s_add_u32 s12, s12, {TS}
v_mov_b32 v2, 0
s_mov_b64 exec, 1""")
            for q in range(5):
                for i in range(4): a(f"v_mov_b32 v{4+4*q+i}, s{S_TS+4*q+i}")
                a(f"buffer_store_dwordx4 v[{4+4*q}:{7+4*q}], v2, {WS}, s12 offen offset:{16*q}")
        if self.probe:
            idx = self.stamp_names.index(self.probe) if self.probe != "none" else None
            if idx is None: a("s_mov_b32 s12, 0")
            else:
                a(f"""s_sub_u32 s12, s{S_TS+idx}, s{S_NONCE}
s_cmp_eq_u32 s{S_TS+idx}, 0
s_cselect_b32 s12, 0, s12
s_max_i32 s12, s12, 0
s_min_u32 s12, s12, 10000
s_mul_i32 s12, s12, 10""")
            a(f"s_add_u32 s12, s12, 8000\ns_mov_b32 s9, 1000000")
            a.label("L_pw")
            a(f"""s_memrealtime s[14:15]
s_sub_u32 s13, s14, s{S_NONCE}
s_sub_u32 s9, s9, 1
s_cmp_eq_u32 s9, 0
s_cbranch_scc1 L_exit
s_cmp_lt_i32 s13, s12
s_cbranch_scc1 L_pw""")
        a.label("L_exit")
        a("s_endpgm")

    def build(self):
        a = self.a
        self.prologue()
        l1 = self.lab("e1"); l2 = self.lab("e2")
        a(f"s_cmp_lt_u32 s{S_WAVE}, 4\ns_cbranch_scc1 {l1}\ns_setprio 2")
        self.phase_a_loads()
        a.label(l1)
        a(f"s_cmp_ge_u32 s{S_SLOT}, 28\ns_cbranch_scc1 L_spare")
        st_spare = a.state()
        self.param_loads(0, 2)
        a(f"s_cmp_lt_u32 s{S_WAVE}, 4\ns_cbranch_scc1 {l2}")
        stA = a.state()
        self.param_loads(2, 6)
        self.zero_stamps()
        self.conv_scalars()
        self.phase_a_addr()
        self.handoff1_addr()
        stc = a.state()
        self.counters_clear()
        a.set_state(stc); a.win = []
        self.phase_a()
        a(f"ds_write_b32 v7, v3 offset:{L_T + 11*256}")
        self.stamp("pubA")
        a("s_setprio 0")
        a("s_branch L_grpB")
        stB = a.state()
        a.label(l2); a.set_state(stA)
        self.code_touch()
        self.zero_stamps()
        self.conv_scalars()
        self.lds_zero()
        for x in self.gather_addrs(): a(x)
        self.w13_addr()
        self.kgen_common()
        self.stamp("xarr")
        self.kgen_lo()
        self.kgen_contract_pre()
        self.stamp("chain")
        self.barrier()
        a(f"ds_read_b32 v8, v7 offset:{L_T + 11*256}")
        self.kgen_contract()
        a(f"v_readfirstlane_b32 s{S_NONCE}, v8")
        self.w13_touch()
        self.stamp("kgen")
        self.barrier()
        self.expand(0)
        self.conv_pre()
        a("s_setprio 1")
        self.barrier()
        self.stamp("conv0")
        self.conv_main()
        a("s_setprio 0")
        self.barrier()
        self.stamp("conv1")
        for x in self.s_loads(): a(x)
        a("s_barrier")
        self.s_check()
        self.w13_stage()
        a("s_branch L_join")
        a.label("L_grpB"); a.set_state(stB)
        self.kgen_common()
        self.kgen_hi()
        self.stamp("chain")
        self.barrier()
        for x in self.handoff1_loads(): a(x)
        for x in self.gather_addrs(): a(x)
        self.w13_addr()
        self.stamp("kgen")
        self.barrier()
        self.expand(1)
        self.make_z()
        self.barrier()
        self.stamp("conv0")
        a.inject(self.w13_loads() + self.mod_loads() + self.s_loads(), 7)
        self.x_fetch()
        self.cum_k()
        a.flush_inject()
        self.conv_epilogue_pre()
        self.s_check()
        self.stamp("pre")
        self.barrier()
        self.stamp("conv1")
        self.conv_epilogue()
        self.stamp("cepi")
        self.barrier()
        def hook(i):
            if i == self.o['hook']:
                a.wait(vm=0)
                self.arrive2()
                self.stamp("pubX2")
            if i == 13 and self.stamps:
                a.wait(vm=0)
                self.stamp("ack2")
        self.w13_stage(hook)
        a.label("L_join"); a.win = []
        self.stamp("staged")
        self.barrier2()
        self.stamp("h2")
        self.gemm1()
        self.gemm2()
        a("s_branch L_fin")
        a.label("L_spare"); a.set_state(st_spare)
        self.spare()
        self.finish()
        body = a.text()
        return f"""{HEADER}; @launch grid=(256,1,1) block=(512,1,1) lds={LDS_BYTES}
.amdgcn_target "amdgcn-amd-amdhsa--gfx950"
.text
.globl {KNAME}
.p2align 8
.type {KNAME},@function
{KNAME}:
{body}.section .rodata,"a"
.p2align 6
.amdhsa_kernel {KNAME}
  .amdhsa_next_free_vgpr 256
  .amdhsa_next_free_sgpr 102
  .amdhsa_accum_offset 256
  .amdhsa_group_segment_fixed_size 0
  .amdhsa_kernarg_size 144
  .amdhsa_user_sgpr_count 2
  .amdhsa_user_sgpr_kernarg_segment_ptr 1
  .amdhsa_system_sgpr_workgroup_id_x 1
.end_amdhsa_kernel
"""

if __name__ == "__main__":
    out = sys.argv[1]
    probe = sys.argv[sys.argv.index("--probe") + 1] if "--probe" in sys.argv else None
    opts = {}
    for x in sys.argv[2:]:
        if "=" in x:
            k, v = x.split("="); opts[k] = int(v) if v.lstrip("-").isdigit() else v
    g = Gen(stamps="--stamps" in sys.argv or probe is not None, probe=probe, opts=opts)
    open(out, "w").write(g.build())
    if g.stamps: open(out + ".names", "w").write(repr(g.stamp_names))
    print("instructions", g.a.nins, "nop states", g.a.nops, "stamps", g.stamp_names)
```

```python
import re, copy

REG_RE = re.compile(r'^(-|\|)?(abs\()?([vas])(?:(\d+)|\[(\d+):(\d+)\])\)?\|?$')

def regs_of(op):
    op = op.strip()
    m = REG_RE.match(op)
    if m:
        k = m.group(3)
        if m.group(4) is not None:
            return {(k, int(m.group(4)))}
        return {(k, i) for i in range(int(m.group(5)), int(m.group(6)) + 1)}
    if op == 'vcc': return {('s', 'vcc_lo'), ('s', 'vcc_hi')}
    if op in ('vcc_lo', 'vcc_hi', 'm0', 'exec_lo', 'exec_hi'): return {('s', op)}
    if op == 'exec': return {('s', 'exec_lo'), ('s', 'exec_hi')}
    return set()

TRANS = ('v_exp_', 'v_log_', 'v_rcp_', 'v_rsq_', 'v_sqrt_', 'v_sin_', 'v_cos_')
NODST_S = ('s_atomic', 's_cmp', 's_waitcnt', 's_barrier', 's_nop', 's_branch', 's_cbranch', 's_endpgm', 's_sleep', 's_setprio',
           's_bitcmp', 's_setpc')
VCC = {('s', 'vcc_lo'), ('s', 'vcc_hi')}
EXEC = {('s', 'exec_lo'), ('s', 'exec_hi')}

class Ins:
    def __init__(self, text):
        self.text = text
        t = text.split(';')[0].strip()
        parts = t.split(None, 1)
        self.mn = parts[0]
        rest = parts[1] if len(parts) > 1 else ''
        ops = []
        depth = 0; cur = ''
        for ch in rest:
            if ch == '[': depth += 1
            if ch == ']': depth -= 1
            if ch == ',' and depth == 0:
                ops.append(cur.strip()); cur = ''
            else: cur += ch
        if cur.strip(): ops.append(cur.strip())
        self.mods = ''
        if ops:
            last = ops[-1].split(None, 1)
            ops[-1] = last[0]
            self.mods = last[1] if len(last) > 1 else ''
        self.ops = ops
        mn = self.mn
        R = [regs_of(o) for o in ops]
        allr = set().union(*R) if R else set()
        self.defs = set(); self.uses = set()
        self.kind = 'other'
        self.srcC = set(); self.srcAB = set(); self.passes = 0
        self.dpp = 'dpp' in mn or any(k in self.mods for k in ('row_', 'quad_perm', 'wave_'))
        if mn.startswith('v_mfma'):
            self.kind = 'mfma'
            self.defs = R[0]; self.srcAB = R[1] | R[2]; self.srcC = R[3]; self.uses = R[1] | R[2] | R[3]
            self.passes = 8 if '32x32' in mn else 4
        elif mn.startswith('v_'):
            self.kind = 'valu'
            self.defs = set(R[0]); self.uses = set().union(*R[1:]) if len(R) > 1 else set()
            if '_co_' in mn or mn.startswith('v_div_scale') or mn.startswith('v_mad_u64'):
                self.defs |= R[1]; self.uses = set().union(*R[2:])
            if mn.startswith(('v_fmac', 'v_dot2c', 'v_pk_fmac', 'v_writelane')) or self.dpp or 'sdwa' in mn or 'dst_sel' in self.mods:
                self.uses |= R[0]
            if mn.startswith('v_permlane') and 'swap' in mn or mn.startswith('v_swap'):
                self.defs = R[0] | R[1]; self.uses = R[0] | R[1]
            if mn.startswith('v_cmpx'): self.defs |= EXEC
        elif mn.startswith('ds_'):
            self.kind = 'ds'
            if mn.startswith(('ds_read', 'ds_bpermute', 'ds_permute', 'ds_swizzle')) or '_rtn' in mn:
                self.defs = R[0]; self.uses = set().union(*R[1:])
                if 'd16' in mn: self.uses |= R[0]
            else: self.uses = allr
        elif mn.startswith(('buffer_', 'global_')):
            self.kind = 'vmem'
            islds = re.search(r'\blds\b', self.mods) or '_lds_' in mn
            if '_load' in mn and not islds:
                self.defs = R[0]; self.uses = set().union(*R[1:])
                if 'd16' in mn: self.uses |= R[0]
            elif '_atomic' in mn and 'sc0' in self.mods:
                self.defs = R[0]; self.uses = allr
            else: self.uses = allr
            if islds: self.uses |= {('s', 'm0')}
            self.wide_store = set()
            if '_store_dwordx4' in mn or '_store_dwordx3' in mn:
                self.wide_store = R[0] if mn.startswith('buffer_') else R[1]
        elif mn.startswith(('s_load', 's_buffer_load', 's_memtime', 's_memrealtime')):
            self.kind = 'smem'
            self.defs = R[0]; self.uses = set().union(*R[1:]) if len(R) > 1 else set()
        elif mn.startswith('s_'):
            self.kind = 'salu'
            if mn.startswith(NODST_S): self.uses = allr
            else:
                self.defs = set(R[0]) if R else set(); self.uses = set().union(*R[1:]) if len(R) > 1 else set()
                if 'saveexec' in mn: self.defs |= EXEC
        self.trans = mn.startswith(TRANS)
        self.dot = mn.startswith('v_dot')
        self.states = 1
        if mn == 's_nop': self.states = int(ops[0], 0) + 1

def need_states(p, c):
    n = 0
    vdef = {r for r in p.defs if r[0] in 'va'}
    sdef = {r for r in p.defs if r[0] == 's'}
    if p.kind == 'valu':
        if c.kind == 'mfma' and vdef & c.uses: n = max(n, 3 if p.dot else 2)
        if c.kind == 'mfma' and sdef & EXEC: n = max(n, 4)
        if c.kind == 'valu':
            if c.dpp and vdef & c.uses: n = max(n, 2)
            if c.dpp and sdef & EXEC: n = max(n, 5)
            if c.mn.startswith('v_permlane') and vdef & c.uses: n = max(n, 2)
            if c.mn.startswith(('v_readlane', 'v_readfirstlane')) and vdef & c.uses: n = max(n, 1)
            if c.mn.startswith(('v_readlane', 'v_readfirstlane', 'v_writelane', 'v_permlane')) and sdef & EXEC: n = max(n, 4)
            if sdef & c.uses: n = max(n, 4 if c.mn.startswith(('v_readlane', 'v_writelane')) else 2)
            if p.trans and not c.trans and vdef & c.uses: n = max(n, 1)
            if ('op_sel' in p.mods and not p.mn.startswith('v_pk_') or 'dst_sel' in p.mods) and vdef & (c.uses | c.defs): n = max(n, 1)
        if p.dot and vdef & (c.uses | c.defs):
            if c.mn == p.mn:
                ab = set()
                for o in c.ops[1:3]: ab |= regs_of(o)
                if vdef & ab: n = max(n, 3)
            else: n = max(n, 3)
        if p.trans and c.kind in ('ds', 'vmem') and vdef & c.uses: n = max(n, 1)
        if c.kind == 'vmem' and sdef & c.uses: n = max(n, 5)
        if c.kind in ('salu', 'smem') and sdef & c.uses: n = max(n, 1)
    if p.kind == 'salu' and ('s', 'm0') in p.defs and ('s', 'm0') in c.uses and c.kind in ('vmem', 'ds'): n = max(n, 1)
    if p.kind == 'mfma':
        hi = p.passes == 8
        if c.kind == 'mfma':
            if p.defs & c.srcAB: n = max(n, 12 if hi else 8)
            if p.defs & c.srcC and not (p.defs == c.srcC and p.passes == c.passes): n = max(n, 10 if hi else 6)
            if p.defs & c.defs and not (p.defs == c.defs and p.passes == c.passes): n = max(n, 10 if hi else 6)
        elif c.kind in ('valu', 'ds', 'vmem'):
            if p.defs & (c.uses | c.defs): n = max(n, 12 if hi else 8)
            if p.srcC & c.defs: n = max(n, 7 if hi else 3)
    if p.kind == 'vmem' and p.wide_store and p.wide_store & c.defs and c.kind in ('valu', 'mfma', 'ds', 'vmem'): n = max(n, 2)
    return n

class Asm:
    def __init__(self):
        self.lines = []
        self.vm = []
        self.lg = []
        self.sm = set()
        self.win = []
        self.nins = 0
        self.nops = 0
        self.inj = []; self.inj_every = 0; self.inj_cnt = 0
    def inject(self, items, every):
        self.inj = list(items); self.inj_every = every; self.inj_cnt = 0
    def flush_inject(self):
        items, self.inj = self.inj, []
        for x in items: self(x)
    def raw(self, s): self.lines.append(s)
    def comment(self, s): self.lines.append('    ; ' + s)
    def label(self, name):
        self.lines.append(name + ':')
    def state(self): return (copy.copy(self.vm), copy.copy(self.lg), set(self.sm), list(self.win))
    def set_state(self, st): self.vm, self.lg, self.sm, self.win = list(st[0]), list(st[1]), set(st[2]), list(st[3])
    def _push(self, ins):
        self.lines.append('    ' + ins.text)
        self.win.append(ins); self.win = self.win[-24:]
        self.nins += 1
    def wait(self, vm=None, lgkm=None):
        parts = []
        if vm is not None:
            vm = min(vm, 63)
            parts.append(f'vmcnt({vm})'); self.vm = self.vm[len(self.vm) - vm:] if vm < len(self.vm) else self.vm
            if vm == 0: self.vm = []
        if lgkm is not None:
            lgkm = min(lgkm, 15)
            parts.append(f'lgkmcnt({lgkm})')
            if lgkm == 0: self.lg = []; self.sm = set()
            elif lgkm < len(self.lg): self.lg = self.lg[len(self.lg) - lgkm:]
        self._push(Ins('s_waitcnt ' + ' '.join(parts)))
    def __call__(self, text):
        for line in text.split('\n'):
            line = line.strip()
            if not line: continue
            if line.startswith(';'): self.comment(line[1:].strip()); continue
            if line.endswith(':'): self.label(line[:-1]); continue
            self.emit(line)
            if self.inj and not line.startswith('s_cmp') and not line.startswith('s_bitcmp'):
                self.inj_cnt += 1
                if self.inj_cnt >= self.inj_every:
                    self.inj_cnt = 0
                    x = self.inj.pop(0); rest, self.inj = self.inj, []
                    self(x)
                    self.inj = rest
    def emit(self, text):
        ins = Ins(text)
        if ins.mn == 's_waitcnt':
            m = re.search(r'vmcnt\((\d+)\)', text); l = re.search(r'lgkmcnt\((\d+)\)', text)
            self.wait(int(m.group(1)) if m else None, int(l.group(1)) if l else None)
            return
        touch = ins.defs | ins.uses
        wv = wl = None
        for i in range(len(self.vm) - 1, -1, -1):
            if self.vm[i] & touch: wv = len(self.vm) - 1 - i; break
        for i in range(len(self.lg) - 1, -1, -1):
            if self.lg[i] & touch: wl = len(self.lg) - 1 - i; break
        if self.sm & touch or (wl is not None and self.sm): wl = 0
        if wv is not None or wl is not None: self.wait(wv, wl)
        need = 0; dist = 0
        for p in reversed(self.win):
            need = max(need, need_states(p, ins) - dist)
            dist += p.states
            if dist >= 20: break
        if need > 0:
            self._push(Ins(f's_nop {need - 1}')); self.nops += need
        self._push(ins)
        if ins.kind == 'vmem': self.vm.append(set(ins.defs))
        elif ins.kind == 'ds': self.lg.append(set(ins.defs))
        elif ins.kind == 'smem': self.sm |= ins.defs
    def mark(self):
        tok = ('mark', self.nins)
        self.vm[-1] = set(self.vm[-1]) | {tok}
        return tok
    def wait_mark(self, tok):
        for i in range(len(self.vm) - 1, -1, -1):
            if tok in self.vm[i]:
                self.wait(vm=len(self.vm) - 1 - i); return
    def text(self): return '\n'.join(self.lines) + '\n'

def merge(main, fill, start=0, end=None):
    end = len(main) if end is None else end
    n = end - start
    out = list(main[:start]); k = 0
    for i in range(n):
        out.append(main[start + i])
        tgt = (i + 1) * len(fill) // n
        out.extend(fill[k:tgt]); k = tgt
    out.extend(main[end:])
    return out

def vr(b, n=1, k='v'): return f'{k}{b}' if n == 1 else f'{k}[{b}:{b + n - 1}]'
def ar(b, n=1): return vr(b, n, 'a')
def sr(b, n=1): return vr(b, n, 's')
```

```python
import sys, struct, math
from asmlib import *

KNAME = "adaLN_cond__ssm_conv_s4__swiglu_ffn__prompt_kernel"
HEADER = open("adaLN_cond__ssm_conv_s4__swiglu_ffn__prompt.s.ref").read().split("; Override launch")[0]

XG, STAT, MODG, FLG2, CAUG, FLG3, X2, ACT, TS = 0x0, 0x400000, 0x410000, 0x420000, 0x440000, 0x450000, 0x500000, 0x700000, 0xF00000
STAT2 = 0x408000
F3P = 32 * 28 * 128
WS_BYTES = 0x1000000
OOB = 0x7fff0000
S_WAVE, S_XCD, S_SLOT, S_PAIR, S_NONCE, S_W3 = 4, 5, 6, 7, 8, 3
P_U, P_ARE, P_AIM, P_BRE, P_BIM, P_CRE, P_CIM, P_LDT, P_DSK, P_BX, P_WG, P_WU, P_WD, P_C, P_WM, P_OUT, P_DBG, P_WS = range(16, 52, 2)
R_WS, R_A, R_B, R_D = 52, 56, 60, 96
S_RB, S_FC = 66, 67
S_TS = 76
SPIN = 20000
CODE_SHARE = 12
WS = f"s[{R_WS}:{R_WS+3}]"
RA = f"s[{R_A}:{R_A+3}]"
RB = f"s[{R_B}:{R_B+3}]"
RD = f"s[{R_D}:{R_D+3}]"
TP = 73 * 256
L_T = 0
L_H = 2 * TP
HP = 4576
L_E = L_H + 2 * HP
EP = 528
EW = 54 * EP
CP = 4160
L_Y = L_E + 8 * CP
L_XS = L_Y + 32768
LDS_BYTES = 163840
assert L_E + 4 * EW <= LDS_BYTES and L_Y + 32768 <= LDS_BYTES
L_W = 0
WM = 448 * 128
L_CNT = LDS_BYTES - 64

def f32(x): return "0x%08x" % struct.unpack("<I", struct.pack("<f", x))[0]
LOG2E = 1.4426950408889634

class Gen:
    def __init__(self, stamps=False, probe=None, opts=None):
        self.o = dict(b2="flag", b2sleep=0, hook=2, npre=8, h3sleep=2, skip='cepi,ack2,xarr,pre', bdelay=18, flag_at=8, warm=1, stat_at=20, wdrate=0, wdpre=56, wdtouch=0, cyc=0, wd1='p1', early_poll=0)
        self.o.update(opts or {})
        self.a = Asm(); self.stamps = stamps; self.uid = 0; self.probe = probe
        self.stamp_names = []
    def lab(self, n):
        self.uid += 1
        return f"L_{n}_{self.uid}"
    def srd(self, r, p, nbytes):
        self.a(f"s_mov_b32 s{r}, s{p}\ns_mov_b32 s{r+1}, s{p+1}\ns_mov_b32 s{r+2}, {nbytes}\ns_mov_b32 s{r+3}, 0x00020000")
    def srd_sel(self, r, p1, p0, nbytes):
        self.a(f"s_cselect_b32 s{r}, s{p1}, s{p0}\ns_cselect_b32 s{r+1}, s{p1+1}, s{p0+1}\ns_mov_b32 s{r+2}, {nbytes}\ns_mov_b32 s{r+3}, 0x00020000")
    def stamp(self, name):
        if not self.stamps: return
        if name in self.o["skip"].split(","): return
        a = self.a
        if name not in self.stamp_names: self.stamp_names.append(name)
        idx = self.stamp_names.index(name)
        assert idx < 20, self.stamp_names
        a.wait(lgkm=0)
        a("s_memtime s[14:15]" if self.o["cyc"] else "s_memrealtime s[14:15]")
        a(f"s_mov_b32 s{S_TS + idx}, s14")
    def barrier(self):
        self.a.wait(lgkm=0)
        self.a("s_barrier")
    def poll(self, loads, tags, dst, tmp, issued=False, masked=False, sleep=0):
        a = self.a
        ok = self.lab("ok"); lp = self.lab("spin"); out = self.lab("out")
        if issued:
            self.tagcheck(dst, tags, tmp)
            a(f"v_cmp_ne_u32 vcc, 0, v{dst}\ns_cbranch_vccz {ok}")
        st = a.state()
        a(f"s_mov_b32 s9, {SPIN}")
        a.label(lp)
        if masked: a("s_mov_b64 exec, vcc")
        for x in loads: a(x)
        self.tagcheck(dst, tags, tmp)
        a(f"v_cmp_ne_u32 vcc, 0, v{dst}\ns_cbranch_vccz {out}")
        if sleep: a(f"s_sleep {sleep}")
        a(f"s_sub_u32 s9, s9, 1\ns_cmp_lg_u32 s9, 0\ns_cbranch_scc1 {lp}")
        a.label(out)
        if masked: a("s_mov_b64 exec, -1")
        a.label(ok)
        if issued: a.set_state(st)
    def tagcheck(self, dst, tags, tmp):
        a = self.a; parts = []
        n = (len(tags) + 1) // 2
        for i in range(0, len(tags) - 1, 2):
            o = dst if n == 1 else tmp[i//2]
            a(f"v_bitop3_b32 v{o}, v{tags[i]}, v{tags[i+1]}, s{S_NONCE} bitop3:0x7e"); parts.append(o)
        if len(tags) % 2:
            o = dst if n == 1 else tmp[len(tags)//2]
            a(f"v_xor_b32 v{o}, s{S_NONCE}, v{tags[-1]}"); parts.append(o)
        while len(parts) > 1:
            if len(parts) >= 3:
                o = dst if len(parts) == 3 else parts[0]
                a(f"v_or3_b32 v{o}, v{parts[0]}, v{parts[1]}, v{parts[2]}"); parts = parts[3:] + [o]
            else:
                a(f"v_or_b32 v{dst}, v{parts[0]}, v{parts[1]}"); parts = [dst]
    def bf16r(self, d, s):
        self.a(f"v_cvt_pk_bf16_f32 v{d}, v{s}, v{s}\nv_and_b32 v{d}, 0xffff0000, v{d}")

    def prologue(self):
        a = self.a
        a(f"""s_cmp_ge_u32 s2, 256
s_cbranch_scc1 L_exit
s_load_dwordx4 s[48:51], s[0:1], 128
s_load_dwordx16 s[16:31], s[0:1], 0
s_load_dwordx16 s[32:47], s[0:1], 64
s_memrealtime s[10:11]
v_lshrrev_b32 v2, 6, v0
v_and_b32 v1, 63, v0
v_readfirstlane_b32 s{S_WAVE}, v2
s_and_b32 s{S_XCD}, s2, 7
s_lshr_b32 s{S_SLOT}, s2, 3
s_mul_i32 s{S_PAIR}, s{S_XCD}, 28
s_add_u32 s{S_PAIR}, s{S_PAIR}, s{S_SLOT}
s_and_b32 s{S_W3}, s{S_WAVE}, 3
v_and_b32 v186, 255, v0
v_and_b32 v3, 31, v0
v_lshrrev_b32 v4, 5, v186
v_mul_u32_u24 v4, 896, v4
v_lshl_add_u32 v4, v3, 4, v4
v_mov_b32 v5, {OOB}
v_cmp_gt_u32 vcc, 28, v3
s_mul_i32 s12, s2, {8*896}
v_cndmask_b32 v4, v5, v4, vcc
v_and_b32 v5, 3, v0
v_mul_u32_u24 v5, 1792, v5
v_and_b32 v6, 0xfc, v0
v_add3_u32 v5, v5, v6, s12
v_mov_b32 v7, 0
s_lshl_b32 s13, s{S_PAIR}, 10
v_lshl_add_u32 v10, v186, 2, s13
""")
        a.wait(lgkm=0)
        if self.stamps:
            self.stamp_names = ["start"]
            a(f"s_mov_b32 s{S_TS}, s10")
        self.srd(R_D, P_DBG, 256)
        nn = self.lab("nononce")
        a(f"""s_or_b32 s13, s2, s{S_WAVE}
s_cmp_lg_u32 s13, 0
s_cbranch_scc1 {nn}
s_or_b32 s13, s10, 1
v_mov_b32 v8, s13
v_lshlrev_b32 v9, 7, v1
s_mov_b64 exec, 3
buffer_store_dword v8, v9, {RD}, 0 offen sc1
s_mov_b64 exec, -1""")
        a.vm = []
        a.label(nn)
        self.srd(R_WS, P_WS, WS_BYTES)

    def phase_a_loads(self):
        a = self.a
        self.srd(R_A, P_U, 2048 * 896)
        a(f"buffer_load_dwordx4 v[12:15], v4, {RA}, s12 offen")
        a(f"buffer_load_dwordx4 v[16:19], v4, {RA}, s12 offen offset:448")
        for k in range(4):
            a(f"buffer_load_dword v{20+4*k}, v5, {RA}, 0 offen offset:{256*k}")
            a(f"buffer_load_dword v{22+4*k}, v5, {RA}, 0 offen offset:{256*k+896}")
    def nonce_sample(self):
        self.a(f"s_load_dword s{S_NONCE}, s[{P_DBG}:{P_DBG+1}], 0")
    def get_nonce(self):
        a = self.a
        ok = self.lab("nonce_ok"); lp = self.lab("nonce_poll")
        a(f"s_cmp_lg_u32 s{S_NONCE}, 0")
        st = a.state()
        a(f"s_cbranch_scc1 {ok}\ns_mov_b32 s9, {SPIN}")
        a.label(lp)
        a(f"""buffer_load_dword v8, v7, {RD}, 0 offen offset:128 sc1
v_readfirstlane_b32 s{S_NONCE}, v8
s_sub_u32 s9, s9, 1
s_cmp_eq_u32 s9, 0
s_cbranch_scc1 {ok}
s_cmp_eq_u32 s{S_NONCE}, 0
s_cbranch_scc1 {lp}""")
        a.label(ok)
        a.set_state(st); a.win = []
        a("s_nop 1")

    def phase_a_addr(self):
        self.a(f"""v_and_b32 v5, 3, v0
v_lshlrev_b32 v5, 4, v5
v_lshrrev_b32 v6, 2, v186
v_lshl_add_u32 v5, v6, 7, v5
v_mov_b32 v6, {OOB}
v_cmp_gt_u32 vcc, 128, v186
v_add_u32 v56, 0x4000, v5
v_add_u32 v57, 0x6000, v5
v_cndmask_b32 v57, v6, v57, vcc
v_add_u32 v6, 0x2000, v5
v_lshrrev_b32 v4, 5, v186
v_lshlrev_b32 v4, 3, v4
s_lshr_b32 s70, s2, 1
s_mul_i32 s70, s70, 28672
s_and_b32 s13, s2, 1
s_lshl_b32 s13, s13, 6
s_add_u32 s70, s70, s13
s_add_u32 s70, s70, {XG}
s_lshl_b32 s71, s2, 6
s_add_u32 s71, s71, {STAT}""")
    def phase_a(self):
        a = self.a
        a("s_mov_b32 s13, 0x3f803f80")
        a(f"v_dot2_f32_bf16 v2, v12, s13, 0\nv_dot2_f32_bf16 v3, v12, v12, 0")
        self.nonce_sample()
        for r in range(13, 20):
            a(f"v_dot2_f32_bf16 v2, v{r}, s13, v2\nv_dot2_f32_bf16 v3, v{r}, v{r}, v3")
        for sh in (1, 2, 4, 8):
            a(f"v_add_f32_dpp v2, v2, v2 row_shr:{sh} row_mask:0xf bank_mask:0xf bound_ctrl:0")
            a(f"v_add_f32_dpp v3, v3, v3 row_shr:{sh} row_mask:0xf bank_mask:0xf bound_ctrl:0")
        a("v_add_f32_dpp v2, v2, v2 row_bcast:15 row_mask:0xa bank_mask:0xf")
        a("v_add_f32_dpp v3, v3, v3 row_bcast:15 row_mask:0xa bank_mask:0xf")
        self.ln_finish(2, 3, 14)
        a("v_cvt_pk_bf16_f32 v2, v2, v3")
        self.stamp("xarr")
        self.get_nonce()
        a(f"""v_mov_b32 v3, s{S_NONCE}
s_mov_b32 exec_lo, 0x80000000
s_mov_b32 exec_hi, 0x80000000
buffer_store_dwordx2 v[2:3], v4, {WS}, s71 offen sc1
s_mov_b64 exec, -1""")
        for k, ad in enumerate((5, 6, 56, 57)):
            a(f"v_mov_b32 v{21+4*k}, s{S_NONCE}\nv_mov_b32 v{23+4*k}, s{S_NONCE}")
            a(f"buffer_store_dwordx4 v[{20+4*k}:{23+4*k}], v{ad}, {WS}, s70 offen sc1")

    def ln_finish(self, vs, vq, t):
        a = self.a
        a(f"""v_mul_f32 v{vs}, {f32(1/448)}, v{vs}
v_mul_f32 v{vq}, {f32(1/448)}, v{vq}
v_fma_f32 v{vq}, -v{vs}, v{vs}, v{vq}
v_max_f32 v{vq}, 0, v{vq}""")
        self.bf16r(vq, vq)
        a(f"v_add_f32 v{vq}, {f32(1e-5)}, v{vq}")
        self.bf16r(vq, vq)
        a(f"v_sqrt_f32 v{vq}, v{vq}")

    V_PAR = 36
    V_GA = 44
    def zero_stamps(self):
        if self.stamps:
            for i in range(1, 20): self.a(f"s_mov_b32 s{S_TS+i}, 0")
    def param_loads(self, n0, n1):
        a = self.a
        for i, p in list(enumerate((P_ARE, P_AIM, P_BRE, P_BIM, P_CRE, P_CIM)))[n0:n1]:
            self.srd(R_B, p, 448 * 512)
            a(f"buffer_load_dword v{self.V_PAR+i}, v10, {RB}, 0 offen")
    def conv_scalars(self):
        self.a(f"""s_lshl_b32 s13, s{S_PAIR}, 2
s_load_dword s64, s[{P_LDT}:{P_LDT+1}], s13
s_load_dword s65, s[{P_DSK}:{P_DSK+1}], s13
s_and_b32 s{S_RB}, s{S_XCD}, 1
s_lshl_b32 s{S_RB}, s{S_RB}, 2
s_and_b32 s13, s{S_SLOT}, 3
s_add_u32 s{S_RB}, s{S_RB}, s13
s_lshr_b32 s{S_FC}, s{S_XCD}, 1
s_mul_i32 s{S_FC}, s{S_FC}, 7
s_lshr_b32 s13, s{S_SLOT}, 2
s_add_u32 s{S_FC}, s{S_FC}, s13""")
    def code_touch(self):
        a = self.a
        sk = self.lab("ct"); pc = self.lab("pc")
        a(f"s_cmp_lg_u32 s{S_WAVE}, 0\ns_cbranch_scc1 {sk}")
        st = a.state()
        a("s_getpc_b64 s[12:13]")
        a.label(pc)
        a(f"""s_mul_i32 s14, s{S_SLOT}, {CODE_SHARE}
v_min_u32 v57, {CODE_SHARE-1}, v1
v_add_u32 v57, s14, v57
v_lshlrev_b32 v57, 7, v57
v_min_u32 v57, L_exit-{pc}, v57
v_mov_b32 v59, s13
v_add_co_u32 v58, vcc, s12, v57
v_addc_co_u32 v59, vcc, 0, v59, vcc
global_load_dword v57, v[58:59], off""")
        a.label(sk); a.set_state(st); a.win = []
    def lds_zero(self):
        self.a(f"""v_mov_b32 v60, 0
v_mov_b32 v61, 0
v_lshlrev_b32 v11, 3, v1
ds_write_b64 v11, v[60:61] offset:{L_H}
ds_write_b64 v11, v[60:61] offset:{L_H + HP}
ds_write_b64 v7, v[60:61] offset:{L_T + 9*256}
ds_write_b64 v7, v[60:61] offset:{L_T + TP + 9*256}
v_mov_b32 v11, {L_CNT}
ds_write_b64 v11, v[60:61]
ds_write_b64 v11, v[60:61] offset:8""")
    def gather_addrs(self):
        L = ["v_lshlrev_b32 v59, 3, v186", "v_sub_u32 v59, 2047, v59", "v_cvt_f32_u32 v59, v59"]
        for m in range(0, 11, 2):
            L += [f"v_add_f32 v60, {f32(-m)}, v59", f"v_add_f32 v61, {f32(-m-1)}, v59", "v_cvt_pk_bf16_f32 v62, v60, v61"]
            for h in range(2):
                if m + h > 10: continue
                g = self.V_GA + m + h
                L += ["v_lshlrev_b32 v63, 16, v62" if h == 0 else "v_and_b32 v63, 0xffff0000, v62",
                      "v_cvt_u32_f32 v63, v63", f"v_and_b32 v{g}, 0xf8, v63", "v_and_b32 v11, 7, v63",
                      f"v_lshl_or_b32 v{g}, v11, 8, v{g}", "v_lshrrev_b32 v11, 8, v63", f"v_lshl_or_b32 v{g}, v11, 11, v{g}"]
        L += [f"v_mov_b32 v11, {9*256}", "v_cmp_eq_u32 vcc, 255, v186"]
        L += [f"v_cndmask_b32 v{self.V_GA+m}, v{self.V_GA+m}, v11, vcc" for m in range(8, 11)]
        return L
    def touch(self, srd, share_lines, index_sreg, vt):
        self.a(f"""s_mul_i32 s13, s{index_sreg}, {share_lines*128}
v_min_u32 v{vt}, {share_lines-1}, v1
v_lshl_add_u32 v{vt}, v{vt}, 7, s13
buffer_load_dword v{vt+1}, v{vt}, s[{srd}:{srd+3}], 0 offen""")
    def mod_block(self):
        self.a(f"""s_add_u32 s14, s68, 22
s_sub_u32 s15, s68, 10
s_cmp_lt_u32 s68, 10
s_cselect_b32 s14, s14, s15
s_cmp_ge_u32 s68, 32
s_cselect_b32 s14, s68, s14
s_mul_i32 s12, s14, 37
s_lshr_b32 s12, s12, 8
s_mul_i32 s13, s12, 7
s_sub_u32 s13, s14, s13
s_lshl_b32 s12, s12, 2
s_lshr_b32 s12, 0x534210, s12
s_and_b32 s65, s12, 15
s_mul_i32 s64, s65, 7
s_add_u32 s64, s64, s13""")
    def warm_wmod(self):
        a = self.a
        self.srd(R_B, P_WM, 448 * 5376)
        a(f"s_lshl_b32 s68, s{S_XCD}, 2\ns_add_u32 s68, s68, s{S_W3}")
        self.mod_block()
        a("s_lshl_b32 s70, s64, 7\ns_add_u32 s68, s68, 32")
        self.mod_block()
        a(f"""s_lshl_b32 s71, s64, 7
s_cmp_lt_u32 s68, 42
s_cselect_b32 s71, s71, s70
s_lshl_b32 s13, s{S_SLOT}, 4
v_and_b32 v55, 15, v1
v_add_u32 v55, s13, v55
v_mul_u32_u24 v55, 5376, v55
v_mov_b32 v56, s70
v_mov_b32 v11, s71
v_cmp_gt_u32 vcc, 16, v1
v_cndmask_b32 v56, v11, v56, vcc
v_add_u32 v55, v55, v56
buffer_load_dword v56, v55, {RB}, 0 offen""")
    def w13_touch(self):
        a = self.a
        a(f"s_bitcmp1_b32 s{S_W3}, 1")
        self.srd_sel(R_B, P_WU, P_WG, 448 * 3584)
        a(f"""s_lshl_b32 s13, s{S_SLOT}, 1
s_and_b32 s14, s{S_W3}, 1
s_add_u32 s13, s13, s14
s_mul_i32 s13, s13, {8*3584}
s_lshr_b32 s14, s{S_XCD}, 1
s_mul_i32 s14, s14, 896
s_add_u32 s13, s13, s14
v_lshrrev_b32 v252, 3, v1
v_mul_u32_u24 v252, 3584, v252
v_and_b32 v253, 7, v1
v_min_u32 v253, 6, v253
v_lshl_add_u32 v252, v253, 7, v252
v_add_u32 v252, s13, v252
buffer_load_dword v253, v252, {RB}, 0 offen""")
    def wd_touch(self):
        a = self.a
        self.srd(R_B, P_WD, 1792 * 896)
        a(f"""s_mul_i32 s12, s{S_XCD}, 7
s_lshr_b32 s12, s12, 1
s_add_u32 s12, s12, s{S_SLOT}
s_sub_u32 s13, s12, 28
s_cmp_ge_u32 s12, 28
s_cselect_b32 s12, s13, s12
s_lshl_b32 s12, s12, 3
s_lshl_b32 s13, s{S_W3}, 1
s_add_u32 s12, s12, s13""")
        self.touch(R_B, 56, 12, 252)
        a("s_add_u32 s12, s12, 1")
        self.touch(R_B, 56, 12, 254)

    def cmul(self, d, x, r, t):
        return [f"v_pk_mul_f32 v[{t}:{t+1}], v[{x}:{x+1}], v[{r}:{r+1}] op_sel_hi:[1,0]",
                f"v_pk_fma_f32 v[{d}:{d+1}], v[{x}:{x+1}], v[{r}:{r+1}], v[{t}:{t+1}] op_sel:[1,1,0] op_sel_hi:[0,1,1] neg_lo:[0,1,0]"]

    def kgen_common(self):
        a = self.a; P = self.V_PAR
        a(f"""s_lshl_b32 s12, s64, 16
s_and_b32 s13, s64, 0xffff0000
s_cmp_lt_u32 s{S_W3}, 2
s_cselect_b32 s64, s12, s13
s_lshl_b32 s12, s65, 16
s_and_b32 s13, s65, 0xffff0000
s_cmp_lt_u32 s{S_W3}, 2
s_cselect_b32 s65, s12, s13
s_bitcmp1_b32 s{S_WAVE}, 0
s_cselect_b32 s65, 0, s65
s_mul_i32 s68, s{S_W3}, {EW}
s_add_u32 s68, s68, {L_E}""")
        lh = struct.unpack("<f", struct.pack("<f", LOG2E))[0]
        a(f"""v_mov_b32 v2, {f32(lh)}
v_mul_f32 v3, s64, v2
v_fma_f32 v4, s64, v2, -v3
v_mov_b32 v2, {f32(LOG2E - lh)}
v_fma_f32 v4, s64, v2, v4
v_exp_f32 v3, v3
v_mul_f32 v4, {f32(math.log(2))}, v4
v_fma_f32 v3, v3, v4, v3""")
        self.bf16r(2, 3)
        a(f"v_lshl_add_u32 v10, v1, 3, s68")
        for k in range(2):
            u = 80 + 6*k
            for i in range(2):
                a(f"v_lshlrev_b32 v{u+i}, 16, v{P+i}" if k == 0 else f"v_and_b32 v{u+i}, 0xffff0000, v{P+i}")
            a(f"""v_mul_f32 v{u}, v2, v{u}
v_mul_f32 v{u+1}, v2, v{u+1}
v_mul_f32 v{u}, {f32(LOG2E)}, v{u}
v_mul_f32 v{u+1}, {f32(1/(2*math.pi))}, v{u+1}""")
    def rho(self, L, R, sg):
        a = self.a
        for k in range(2):
            u = 80 + 6*k; t = 92 + 2*k
            a(f"v_mul_f32 v{t}, {f32(L)}, v{u}\nv_mul_f32 v{t+1}, {f32(L)}, v{u+1}\nv_fract_f32 v{t+1}, v{t+1}")
        for k in range(2):
            t = 92 + 2*k
            a(f"v_exp_f32 v{t}, v{t}\nv_cos_f32 v{R[k]}, v{t+1}\nv_sin_f32 v{R[k]+1}, v{t+1}")
        for k in range(2):
            t = 92 + 2*k
            a(f"v_mul_f32 v{R[k]}, v{t}, v{R[k]}\nv_mul_f32 v{R[k]+1}, {sg}v{t}, v{R[k]+1}")
    def chain_runner(self):
        outs = [96, 98, 100, 102]; st = {"i": 0, "pend": None}; seq = []
        T = [92, 94]
        def put(row, src):
            o = outs[st["i"] % 4]; st["i"] += 1
            return [f"v_cvt_pk_bf16_f32 v{o}, v{src[0]}, v{src[0]+1}", f"v_cvt_pk_bf16_f32 v{o+1}, v{src[1]}, v{src[1]+1}",
                    f"ds_write_b64 v10, v[{o}:{o+1}] offset:{row*EP}"]
        def first(row, src): st["pend"] = put(row, src)
        def chain(dst, src, rho, row):
            m0 = self.cmul(dst[0], src[0], rho[0], T[0]); m1 = self.cmul(dst[1], src[1], rho[1], T[1])
            p = st["pend"]
            seq.extend([m0[0], m1[0], p[0], m0[1], m1[1], p[1], p[2]])
            st["pend"] = put(row, dst)
        def done():
            seq.extend(st["pend"]); return seq
        return first, chain, done
    def kgen_lo(self):
        a = self.a
        R8 = [72, 74]; pp = [[80, 82], [84, 86]]
        self.rho(8, R8, "-")
        a(f"v_mov_b32 v102, 0x3f80\nv_mov_b32 v103, 0x3f80\nds_write_b64 v10, v[102:103] offset:{22*EP}")
        first, chain, done = self.chain_runner()
        first(23, R8); cur = R8
        for c in range(2, 32):
            chain(pp[c % 2], cur, R8, 22 + c); cur = pp[c % 2]
        for s in done(): a(s)
    def kgen_hi(self):
        a = self.a; P = self.V_PAR
        W = [64, 66]; R1 = [68, 70]; R256 = [76, 78]; pp = [[80, 82], [84, 86]]
        for k in range(2):
            u = 80 + 6*k
            for i in range(2, 6):
                a(f"v_lshlrev_b32 v{u+i}, 16, v{P+i}" if k == 0 else f"v_and_b32 v{u+i}, 0xffff0000, v{P+i}")
            a(f"""v_mul_f32 v{u+2}, v2, v{u+2}
v_mul_f32 v{u+3}, v2, v{u+3}
v_mul_f32 v{W[k]}, v{u+4}, v{u+2}
v_mul_f32 v{W[k]+1}, v{u+4}, v{u+3}
v_fma_f32 v{W[k]}, -v{u+5}, v{u+3}, v{W[k]}
v_fma_f32 v{W[k]+1}, v{u+5}, v{u+2}, v{W[k]+1}""")
        self.rho(1, R1, "")
        self.rho(256, R256, "")
        first, chain, done = self.chain_runner()
        keep = {0: W, 2: [104, 106], 4: [108, 110], 6: [112, 114]}
        first(0, W); cur = W
        for j in range(1, 8):
            nxt = keep.get(j, pp[(j // 2) % 2])
            chain(nxt, cur, R1, j); cur = nxt
        A0 = [116, 118]; A4 = [120, 122]; B0 = [124, 126]; B4 = [128, 130]
        for dst, src, row in ((A0, keep[0], 8), (A4, keep[4], 12), (pp[0], keep[2], 9), (pp[1], keep[6], 13),
                              (B0, A0, 10), (B4, A4, 14), (A0, B0, 11), (A4, B4, 15),
                              (B0, A0, 16), (A0, B0, 17), (B0, A0, 18), (A0, B0, 20), (B0, A0, 21)):
            chain(dst, src, R256, row)
        for s in done(): a(s)

    def kgen_contract(self):
        a = self.a
        ACC = 64; F = 96
        def rd(s):
            b = F + 8 * (s % 7)
            return [f"ds_read_b128 v[{b}:{b+3}], v10 offset:{32*s}", f"ds_read_b128 v[{b+4}:{b+7}], v10 offset:{22*EP + 32*s}"]
        for s in range(7):
            for x in rd(s): a(x)
        for s in range(16):
            b = F + 8 * (s % 7)
            a(f"v_mfma_f32_32x32x16_bf16 v[{ACC}:{ACC+15}], v[{b}:{b+3}], v[{b+4}:{b+7}], v[{ACC}:{ACC+15}]")
            if s + 7 < 16:
                for x in rd(s + 7): a(x)
        for i, row in enumerate((0, 1, 2, 3, 8, 10, 16, 24)):
            a(f"ds_write_b32 v11, v{ACC+i} offset:{L_T + row*256}")
        for i, row in enumerate((32, 40, 48)):
            a(f"ds_write_b32 v12, v{ACC+8+i} offset:{L_T + row*256}")
    def kgen_contract_pre(self):
        a = self.a; ACC = 64
        a(f"""v_and_b32 v2, 31, v1
v_mul_u32_u24 v10, {EP}, v2
v_lshrrev_b32 v3, 5, v1
v_lshl_add_u32 v10, v3, 4, v10
v_add_u32 v10, s68, v10
s_lshr_b32 s12, s{S_W3}, 1
s_mul_i32 s12, s12, {TP}
s_and_b32 s13, s{S_W3}, 1
s_lshl_b32 s13, s13, 2
s_add_u32 s12, s12, s13
v_lshl_add_u32 v2, v2, 3, s12
v_mul_u32_u24 v12, {24*256}, v3
v_add_u32 v12, v12, v2
v_lshl_add_u32 v11, v3, 10, v2
v_mov_b32 v3, s65
v_cmp_eq_u32 vcc, 0, v1""")
        for i in range(1, 16): a(f"v_mov_b32 v{ACC+i}, 0")
        a(f"v_cndmask_b32 v{ACC}, v{ACC+1}, v3, vcc")

    def expand(self, ch):
        a = self.a; G = 64; O = 96
        for m in range(11):
            a(f"ds_read_b64 v[{G+2*m}:{G+2*m+1}], v{self.V_GA+m} offset:{L_T + ch*TP}")
        a(f"""v_lshlrev_b32 v10, 4, v186
v_add_u32 v10, {L_E + ch*4*CP}, v10
v_lshrrev_b32 v11, 1, v0
v_mul_u32_u24 v11, {CP}, v11
v_and_b32 v12, 1, v0
v_lshl_add_u32 v11, v12, 4, v11
v_mov_b32 v60, 0
v_mov_b32 v61, 0
v_mov_b32 v62, 0
v_mov_b32 v63, 0
v_cmp_gt_u32 vcc, 16, v0
s_and_saveexec_b64 s[12:13], vcc
ds_write_b128 v11, v[60:63] offset:{L_E + 4096}
s_mov_b64 exec, s[12:13]""")
        for m in range(11):
            a(f"v_add_f32 v{G+2*m}, v{G+2*m}, v{G+2*m+1}")
        for c in range(4):
            o = O + 4*c
            for k in range(4):
                m = c + 2*k
                a(f"v_cvt_pk_bf16_f32 v{o+k}, v{G+2*m}, v{G+2*(m+1)}")
            a(f"ds_write_b128 v10, v[{o}:{o+3}] offset:{c*CP}")

    V_XG = 136
    V_SG = 152
    V_MG = 168
    def handoff1_loads(self):
        L = [f"buffer_load_dwordx4 v[{self.V_XG+4*k}:{self.V_XG+4*k+3}], v{180+k}, {WS}, 0 offen sc1" for k in range(4)]
        L += [f"buffer_load_dwordx4 v[{self.V_SG+4*k}:{self.V_SG+4*k+3}], v{187 + k//2}, {WS}, {'s75' if k % 2 else '0'} offen sc1" for k in range(4)]
        return L
    def handoff1_addr(self):
        self.a(f"""v_lshrrev_b32 v180, 3, v186
v_mul_u32_u24 v180, 28672, v180
v_and_b32 v181, 7, v0
v_lshl_add_u32 v180, v181, 4, v180
s_lshl_b32 s13, s{S_PAIR}, 7
s_add_u32 s13, s13, {XG}
v_add_u32 v180, s13, v180
v_add_u32 v181, {32*28672}, v180
v_add_u32 v182, {64*28672}, v180
v_add_u32 v183, {96*28672}, v180
s_mov_b32 s75, 4096
v_lshlrev_b32 v187, 4, v186
v_add_u32 v187, {STAT}, v187
v_add_u32 v188, 8192, v187
s_lshl_b32 s13, s{S_PAIR}, 4
s_add_u32 s13, s13, {MODG}
v_mov_b32 v184, s13
v_add_u32 v185, {2*448*8}, v184""")
    def mod_loads(self):
        MG = self.V_MG
        return [f"buffer_load_dwordx4 v[{MG}:{MG+3}], v184, {WS}, 0 offen sc1",
                f"buffer_load_dwordx4 v[{MG+4}:{MG+7}], v184, {WS}, 0 offen offset:{448*8} sc1",
                f"buffer_load_dwordx4 v[{MG+8}:{MG+11}], v185, {WS}, 0 offen sc1"]

    V_XV = 120
    def make_z(self):
        a = self.a
        tags = [self.V_XG + 2*i + 1 for i in range(8)] + [self.V_SG + 2*i + 1 for i in range(8)]
        self.poll(self.handoff1_loads(), tags, 60, list(range(64, 74)), issued=True, masked=True)
        self.stamp("h1")
        MS = 64; H = 80
        for i in range(8):
            g = self.V_SG + 2*i
            a(f"v_and_b32 v{MS+2*i+1}, 0xffff0000, v{g}\nv_lshlrev_b32 v{MS+2*i}, 16, v{g}\nv_rcp_f32 v{MS+2*i+1}, v{MS+2*i+1}")
        for i in range(8):
            g = self.V_XG + 2*i
            a(f"v_lshlrev_b32 v{H+2*i}, 16, v{g}\nv_and_b32 v{H+2*i+1}, 0xffff0000, v{g}")
        for i in range(8):
            x = f"v[{H+2*i}:{H+2*i+1}]"
            a(f"v_pk_add_f32 {x}, {x}, v[{MS+2*i}:{MS+2*i+1}] op_sel_hi:[1,0] neg_lo:[0,1] neg_hi:[0,1]")
        for i in range(8):
            x = f"v[{H+2*i}:{H+2*i+1}]"
            a(f"v_pk_mul_f32 {x}, {x}, v[{MS+2*i}:{MS+2*i+1}] op_sel:[0,1] op_sel_hi:[1,1]")
        a(f"v_lshlrev_b32 v10, 2, v186\nv_lshlrev_b32 v11, 3, v186\nv_add_u32 v11, {L_XS}, v11")
        for k in range(4):
            for ch in range(2):
                o = 64 + 2*k + ch; b = H + 4*k + ch
                a(f"v_cvt_pk_bf16_f32 v{o}, v{b}, v{b+2}")
                a(f"ds_write_b32 v10, v{o} offset:{L_H + ch*HP + 480 + 1024*k}")
        for k in range(4):
            g = self.V_XG + 4*k
            a(f"v_mov_b32 v{g+1}, v{g+2}\nds_write_b64 v11, v[{g}:{g+1}] offset:{2048*k}")
    def x_fetch(self):
        a = self.a; XV = self.V_XV; g = self.V_XG
        a(f"v_lshlrev_b32 v11, 4, v186\nv_add_u32 v11, {L_XS}, v11")
        for r in range(2): a(f"ds_read_b128 v[{g+4*r}:{g+4*r+3}], v11 offset:{4096*r}")
        for i in range(8):
            a(f"v_lshlrev_b32 v{XV+2*i}, 16, v{g+i}\nv_and_b32 v{XV+2*i+1}, 0xffff0000, v{g+i}")

    def cum_k(self):
        a = self.a
        OW = 108; S = 48; CU = 64; T = 80; P = 44
        a(f"""v_lshlrev_b32 v10, 3, v1
v_sub_u32 v10, {L_E + 2*(2044 - 1792)}, v10
s_lshl_b32 s12, s{S_W3}, 9
v_subrev_u32 v11, s12, v10""")
        for r in range(2):
            for ch in range(2):
                a(f"ds_read_b64 v[{OW+4*r+2*ch}:{OW+4*r+2*ch+1}], v11 offset:{ch*4*CP + 512*(7-4*r)}")
        for k in range(4):
            o = OW + 2*k; c = CU + 4*k
            a(f"""v_and_b32 v{c}, 0xffff0000, v{o+1}
v_lshlrev_b32 v{c+1}, 16, v{o+1}
v_and_b32 v{c+2}, 0xffff0000, v{o}
v_lshlrev_b32 v{c+3}, 16, v{o}
v_add_f32 v{c+1}, v{c}, v{c+1}
v_add_f32 v{c+2}, v{c+1}, v{c+2}
v_add_f32 v{c+3}, v{c+2}, v{c+3}
v_mov_b32 v{S+k}, v{c+3}""")
        for mod in [f"row_shr:{sh} row_mask:0xf bank_mask:0xf bound_ctrl:0" for sh in (1, 2, 4, 8)] + \
                   ["row_bcast:15 row_mask:0xa bank_mask:0xf", "row_bcast:31 row_mask:0xc bank_mask:0xf"]:
            for k in range(4): a(f"v_add_f32_dpp v{S+k}, v{S+k}, v{S+k} {mod}")
        a.flush_inject()
        if self.o["wdtouch"]: self.wd_touch()
        a(f"""s_lshl_b32 s12, s{S_W3}, 4
v_mov_b32 v10, s12
s_mov_b32 exec_lo, 0
s_mov_b32 exec_hi, 0x80000000
ds_write_b128 v10, v[{S}:{S+3}] offset:{L_T}
s_mov_b64 exec, -1""")
        self.barrier()
        for w in range(4): a(f"ds_read_b128 v[{T+4*w}:{T+4*w+3}], v7 offset:{L_T + 16*w}")
        for q in range(3):
            a(f"s_cmp_gt_u32 s{S_W3}, {q}\ns_cselect_b32 s{13+q}, 1.0, 0")
        for k in range(4): a(f"v_sub_f32 v{S+k}, v{S+k}, v{CU+4*k+3}")
        for w in range(3):
            for k in range(4): a(f"v_fmac_f32 v{S+k}, s{13+w}, v{T+4*w+k}")
        for w in range(4):
            for ch in range(2): a(f"v_add_f32 v{S+2+ch}, v{S+2+ch}, v{T+4*w+ch}")
        for k in range(4):
            for e in range(4): a(f"v_add_f32 v{CU+4*k+e}, v{S+k}, v{CU+4*k+e}")

    def conv_pre(self):
        a = self.a
        a(f"""s_lshr_b32 s12, s{S_W3}, 1
s_and_b32 s14, s{S_W3}, 1
s_lshl_b32 s15, s14, 8
s_mul_i32 s13, s12, {4*CP}
s_add_u32 s13, s13, s15
s_add_u32 s13, s13, {L_E + 2*(1804 - 1792)}
v_and_b32 v2, 3, v1
v_sub_u32 v2, 3, v2
v_mul_u32_u24 v2, {CP}, v2
v_lshrrev_b32 v3, 4, v1
v_bfe_u32 v4, v1, 2, 2
v_lshlrev_b32 v5, 1, v3
v_sub_u32 v4, v5, v4
v_lshlrev_b32 v4, 3, v4
v_add3_u32 v10, v2, v4, s13
s_mul_i32 s13, s12, {HP}
s_add_u32 s13, s13, s15
s_add_u32 s13, s13, {L_H}
v_and_b32 v2, 15, v1
v_lshlrev_b32 v4, 5, v2
v_lshl_add_u32 v4, v3, 4, v4
v_add_u32 v11, s13, v4
v_bfe_u32 v4, v1, 1, 2
v_xor_b32 v4, v4, v3
v_lshl_add_u32 v4, v2, 2, v4
v_lshlrev_b32 v4, 4, v4
s_lshl_b32 s13, s{S_W3}, 13
s_add_u32 s13, s13, {L_Y}
v_add_u32 v12, s13, v4""")
    def conv_main(self):
        a = self.a
        ACC = 16; F = 64
        def fa(s, j): return F + 64 * (s % 2) + 4 * j
        def fb(s, p): return F + 64 * (s % 2) + 32 + 4 * p
        def reads(s):
            out = []
            for k in range(8):
                out.append(f"ds_read_b64 v[{fa(s,k)}:{fa(s,k)+1}], v10 offset:{512*(7-k) + 64*s}")
                out.append(f"ds_read_b64 v[{fa(s,k)+2}:{fa(s,k)+3}], v10 offset:{512*(7-k) + 64*s + 8}")
                out.append(f"ds_read_b128 v[{fb(s,k)}:{fb(s,k)+3}], v11 offset:{512*k + 64*s}")
            return out
        for x in reads(0): a(x)
        for s in range(4):
            if s < 3: trip = sorted([(max(j, Q - j), Q, j) for Q in range(8) for j in range(Q + 1)])
            else: trip = [(0, Q, j) for Q in range(8) for j in range(Q + 1)]
            seen = set(); mf = []
            for _, Q, j in trip:
                d = f"v[{ACC+4*Q}:{ACC+4*Q+3}]"
                c = "0" if (s == 0 and Q not in seen) else d
                seen.add(Q)
                mf.append(f"v_mfma_f32_16x16x32_bf16 {d}, v[{fa(s,j)}:{fa(s,j)+3}], v[{fb(s,Q-j)}:{fb(s,Q-j)+3}], {c}")
            if s < 3:
                seq = merge(mf, reads(s + 1))
                if s == 0: seq = merge(seq, self.w13_loads()[8:])
            else:
                seq = []; k = 0
                wr = lambda Q: f"ds_write_b128 v12, v[{ACC+4*Q}:{ACC+4*Q+3}] offset:{1024*Q}"
                at = {12: 0, 15: 1, 18: 2, 21: 3, 24: 4, 29: 5}
                for i, x in enumerate(mf):
                    seq.append(x)
                    if i in at: seq.append(wr(at[i]))
                seq += [wr(6), wr(7)]
            for x in seq: a(x)
            if s == 2: a("s_barrier")

    def conv_epilogue_pre(self):
        a = self.a; MG = self.V_MG; XV = self.V_XV; CU = 64
        self.poll(self.mod_loads(), [MG + 2*i + 1 for i in range(6)], 60, [61, 62, 63], issued=True, sleep=2)
        for ch in range(2):
            a(f"v_mul_f32 v{MG+2*ch}, v{MG+8+2*ch}, v{MG+2*ch}\nv_mul_f32 v{MG+4+2*ch}, v{MG+8+2*ch}, v{MG+4+2*ch}")
        for r in range(2):
            for ch in range(2):
                for e in range(4):
                    a(f"v_fmac_f32 v{XV+2*(4*r+e)+ch}, v{MG+2*ch}, v{CU+8*r+4*ch+e}")
        a(f"""v_bfe_u32 v2, v1, 3, 2
v_xor_b32 v2, v2, v186
v_lshlrev_b32 v2, 4, v2
v_add_u32 v2, {L_Y}, v2
s_mul_i32 s12, s{S_W3}, {224*1024}
s_lshl_b32 s13, s{S_PAIR}, 10
s_add_u32 s12, s12, s13
s_add_u32 s70, s12, {X2}
s_add_u32 s71, s70, {4*224*1024}
v_lshlrev_b32 v3, 4, v1
s_lshl_b32 s12, s{S_W3}, 8
s_add_u32 s12, s12, s{S_PAIR}
s_lshl_b32 s12, s12, 7
s_add_u32 s72, s12, {FLG2}""")
    def conv_epilogue(self):
        a = self.a; AL = self.V_MG + 4; XV = self.V_XV; Y = 64
        for r in range(2):
            for ch in range(2):
                for kh in range(2):
                    b = Y + 16*r + 8*ch + 4*kh
                    a(f"ds_read_b128 v[{b}:{b+3}], v2 offset:{16384*ch + 8192*kh + 4096*r}")
        for r in range(2):
            for ch in range(2):
                for e in range(4):
                    b = Y + 16*r + 8*ch + e
                    a(f"v_add_f32 v{b}, v{b}, v{b+4}\nv_fmac_f32 v{XV+2*(4*r+e)+ch}, v{AL+2*ch}, v{b}")
            for e in range(4):
                i = 4*r + e
                a(f"v_cvt_pk_bf16_f32 v{96+i}, v{XV+2*i}, v{XV+2*i+1}")
            a(f"buffer_store_dwordx4 v[{96+4*r}:{99+4*r}], v3, {WS}, s{70+r} offen sc1")
    def counters_clear(self):
        if self.o["b2"] != "atomic": return
        a = self.a
        sk = self.lab("cc")
        a(f"""s_lshl_b32 s13, s2, 3
s_add_u32 s13, s13, s{S_WAVE}
s_cmp_lg_u32 s13, 4
s_cbranch_scc1 {sk}
v_lshlrev_b32 v9, 8, v1
v_add_u32 v9, {FLG2}, v9
buffer_store_dword v7, v9, {WS}, 0 offen sc1""")
        a.wait(vm=0)
        a.label(sk)
    def arrive2(self):
        a = self.a
        if self.o["b2"] != "atomic":
            self.flag_store(72); return
        a(f"""s_lshl_b32 s72, s{S_W3}, 3
s_add_u32 s72, s72, s{S_XCD}
s_lshl_b32 s72, s72, 8
s_add_u32 s72, s72, {FLG2}
v_mov_b32 v8, 1
v_mov_b32 v7, 0
s_mov_b64 exec, 1
buffer_atomic_add v8, v7, {WS}, s72 offen sc1
s_mov_b64 exec, -1""")
    def flag_store(self, sreg):
        a = self.a
        a(f"v_mov_b32 v8, s{S_NONCE}\nv_mov_b32 v7, 0")
        a(f"s_mov_b64 exec, 1\nbuffer_store_dword v8, v7, {WS}, s{sreg} offen sc1\ns_mov_b64 exec, -1")

    V_WR = 192
    def w13_addr(self):
        a = self.a
        a(f"s_cmp_ge_u32 s{S_WAVE}, 4")
        self.srd_sel(R_A, P_WU, P_WG, 448 * 3584)
        a(f"""v_lshrrev_b32 v248, 3, v1
v_mul_u32_u24 v249, {14*3584}, v248
v_and_b32 v250, 7, v1
v_lshl_add_u32 v249, v250, 4, v249
s_mul_i32 s74, s{S_W3}, {112*3584}
s_lshl_b32 s13, s{S_FC}, 7
s_add_u32 s74, s74, s13
v_mul_u32_u24 v251, 112, v248
s_mul_i32 s73, s{S_W3}, 896
s_add_u32 s73, s73, {MODG + 4*448*8}""")
    def w13_loads(self):
        L = []
        for i in range(14):
            x = f"buffer_load_dwordx4 v[{self.V_WR+4*i}:{self.V_WR+4*i+3}], v249, {RA}, s74 offen offset:{3584*(i%2)}"
            if i % 2 == 1: x += f"\ns_add_u32 s74, s74, {2*3584}"
            L.append(x)
        return L
    V_SV = 16
    def s_loads(self):
        return [f"buffer_load_dwordx4 v[{self.V_SV+4*j}:{self.V_SV+4*j+3}], v251, {WS}, s73 offen offset:{16*j} sc1" for j in range(7)]
    def s_check(self):
        SV = self.V_SV
        self.poll(self.s_loads(), [SV + 2*i + 1 for i in range(14)], 60, list(range(52, 59)), issued=True, sleep=2)
    def w13_stage(self, hook=None):
        a = self.a; SV = self.V_SV
        a(f"""s_lshr_b32 s12, s{S_WAVE}, 2
s_mul_i32 s13, s12, {WM}
s_mul_i32 s14, s{S_W3}, {112*128}
s_add_u32 s13, s13, s14
s_add_u32 s13, s13, {L_W}
s_lshl_b32 s12, s12, 2
v_and_b32 v60, 1, v248
v_lshlrev_b32 v60, 1, v60
v_xor_b32 v60, v60, v250
v_xor_b32 v60, s12, v60
v_mul_u32_u24 v61, {14*128}, v248
v_lshl_add_u32 v60, v60, 4, v61
v_add_u32 v60, s13, v60
v_xor_b32 v61, 32, v60""")
        for i in range(14):
            w = self.V_WR + 4*i; s = SV + 2*i; t = 64 + 8*(i % 2); o = 80 + 4*(i % 2)
            a(f"v_lshrrev_b32 v{s+1}, 16, v{s}")
            for e in range(4):
                a(f"v_dot2_f32_bf16 v{t+2*e}, v{w+e}, v{s+1}, 0")
                a(f"v_dot2_f32_bf16 v{t+2*e+1}, v{w+e}, v{s}, 0")
            for e in range(4):
                a(f"v_cvt_pk_bf16_f32 v{o+e}, v{t+2*e}, v{t+2*e+1}")
            a(f"ds_write_b128 v{60 + (i//2) % 2}, v[{o}:{o+3}] offset:{128*i}")
            if hook: hook(i)

    def barrier2(self):
        a = self.a
        sk = self.lab("nopoll")
        if self.o["b2"] == "atomic":
            lp = self.lab("spin")
            a(f"s_cmp_lg_u32 s{S_WAVE}, 0\ns_cbranch_scc1 {sk}")
            st = a.state()
            a(f"""s_and_b32 s12, s{S_RB}, 3
s_lshl_b32 s12, s12, 11
s_add_u32 s12, s12, {FLG2}
v_and_b32 v62, 7, v1
v_lshl_add_u32 v62, v62, 8, s12
s_mov_b32 s9, {SPIN}""")
            a.label(lp)
            a(f"""buffer_load_dword v63, v62, {WS}, 0 offen sc1
v_cmp_ne_u32 vcc, 28, v63
s_cbranch_vccz {sk}""")
            if self.o["b2sleep"]: a(f"s_sleep {self.o['b2sleep']}")
            a(f"s_sub_u32 s9, s9, 1\ns_cmp_lg_u32 s9, 0\ns_cbranch_scc1 {lp}")
        else:
            a(f"s_cmp_ge_u32 s{S_WAVE}, 4\ns_cbranch_scc1 {sk}")
            st = a.state()
            a(f"""s_and_b32 s12, s{S_RB}, 3
s_lshl_b32 s12, s12, 15
s_add_u32 s12, s12, {FLG2}
v_min_u32 v62, 223, v0
v_lshlrev_b32 v62, 7, v62
s_mov_b64 vcc, -1""")
            self.poll([f"buffer_load_dword v63, v62, {WS}, s12 offen sc1"], [63], 60, [], masked=True, sleep=self.o["b2sleep"])
        a.label(sk); a.set_state(st); a.win = []
        self.barrier()

    def ffn_addr(self):
        a = self.a
        self.srd(R_A, P_WD, 1792 * 896)
        a(f"""v_and_b32 v2, 31, v1
v_lshrrev_b32 v3, 5, v1
; x2 fragments
v_lshlrev_b32 v4, 2, v2
v_lshl_add_u32 v4, v3, 12, v4
s_mul_i32 s12, s{S_RB}, {224*1024}
s_lshl_b32 s13, s{S_WAVE}, 7
s_add_u32 s12, s12, s13
s_add_u32 s12, s12, {X2}
v_add_u32 v4, s12, v4
s_lshr_b32 s13, s{S_SLOT}, 2
s_lshl_b32 s13, s13, 15
s_add_u32 s12, s12, s13
v_lshl_add_u32 v5, v2, 10, s12
v_bfe_u32 v6, v1, 4, 1
v_bfe_u32 v8, v1, 2, 2
v_lshl_add_u32 v10, v3, 3, v8
v_lshlrev_b32 v10, 7, v10
v_mul_u32_u24 v9, {WM}, v6
v_add_u32 v10, v10, v9
v_lshrrev_b32 v8, 1, v8
v_lshl_add_u32 v8, v6, 1, v8
v_lshl_add_u32 v10, v8, 5, v10
v_and_b32 v8, 3, v1
v_lshl_add_u32 v10, v8, 3, v10
s_lshl_b32 s12, s{S_FC}, 11
s_add_u32 s12, s12, {CAUG}
v_lshl_add_u32 v8, v2, 4, s12
s_lshl_b32 s12, s{S_RB}, 3
s_add_u32 s12, s12, s{S_WAVE}
s_lshl_b32 s13, s12, 8
s_add_u32 s13, s13, {STAT2}
v_lshl_add_u32 v9, v2, 3, s13
s_mul_i32 s13, s12, 28
s_add_u32 s13, s13, s{S_FC}
s_lshl_b32 s72, s13, 12
s_add_u32 s72, s72, {ACT}
s_lshl_b32 s12, s{S_RB}, 2
s_add_u32 s12, s12, s{S_W3}
s_mul_i32 s13, s12, 28
s_add_u32 s13, s13, s{S_FC}
s_lshl_b32 s73, s13, 7
s_lshr_b32 s13, s{S_WAVE}, 2
s_mul_i32 s13, s13, {2*F3P}
s_add_u32 s73, s73, s13
s_add_u32 s73, s73, {FLG3}
s_and_b32 s64, s{S_SLOT}, 3
s_lshr_b32 s65, s{S_SLOT}, 2
s_lshl_b32 s12, s64, 1
s_add_u32 s12, s12, s65
s_sub_u32 s13, s12, 7
s_cmp_ge_u32 s12, 7
s_cselect_b32 s69, s13, s12
s_mul_i32 s70, s{S_W3}, 7
s_add_u32 s12, s70, s69
s_lshl_b32 s12, s12, 2
s_lshr_b32 s13, s{S_WAVE}, 2
s_lshl_b32 s13, s13, 1
s_add_u32 s74, s12, s13
s_mul_i32 s12, s74, {16*896}
s_lshl_b32 s13, s65, 7
s_add_u32 s12, s12, s13
v_mul_u32_u24 v15, {4*896}, v3
v_lshl_add_u32 v15, v2, 2, v15
v_add_u32 v15, s12, v15""")
    def step_inc(self, m, unit, already, vreg, sreg=None):
        if m % 2 == 0:
            inc = unit - already
            return f"v_add_u32 v{vreg}, {inc}, v{vreg}" if sreg is None else f"s_add_u32 s{sreg}, s{sreg}, {inc}"
        L = [f"s_mov_b32 s14, {3*unit - already}",
             f"s_cmp_eq_u32 s69, {6 - m//2}",
             f"s_cselect_b32 s14, {(-25*unit - already) & 0xffffffff}, s14"]
        L.append(f"v_add_u32 v{vreg}, s14, v{vreg}" if sreg is None else f"s_add_u32 s{sreg}, s{sreg}, s14")
        return "\n".join(L)
    V_WD = 80
    def wd_loads(self, m):
        L = []
        for i in range(8):
            x = f"buffer_load_dword v{self.V_WD+8*m+i}, v15, {RA}, 0 offen offset:{896*(i%4)}"
            if i == 3: x += f"\nv_add_u32 v15, {8*896}, v15"
            if i == 7 and m < 13: x += "\n" + self.step_inc(m, 16*896, 8*896, 15)
            L.append(x)
        return L
    def x2_loads(self, B, s):
        L = [f"buffer_load_dword v{B+4*s+e}, v4, {WS}, 0 offen offset:{1024*e} sc1" for e in range(4)]
        L[3] += "\nv_add_u32 v4, 8192, v4"
        return L
    def row_scale(self, ST, tmp):
        self.a(f"""s_mov_b32 s12, 0x01000100
s_mov_b32 s13, 0x03020302
v_perm_b32 v4, v{ST}, v{ST}, s12
v_perm_b32 v6, v{ST}, v{ST}, s13
v_and_b32 v14, 0xffff0000, v{ST}
v_rcp_f32 v{tmp}, v14
v_xor_b32 v4, 0x80008000, v4
v_cmp_gt_u32 vcc, 32, v1
v_mov_b32 v5, 0
v_mov_b32 v7, 0
v_mul_f32 v13, {f32(-LOG2E)}, v{tmp}
v_mul_f32 v14, v14, v14
v_cndmask_b32 v4, 0, v4, vcc
v_cndmask_b32 v6, 0, v6, vcc
v_lshlrev_b32 v12, 4, v1""")
    def swiglu(self, g, T, O, tile):
        L = [f"v_mul_f32 v{T+i}, v13, v{g+i}" for i in range(8)]
        for i in range(8): L += [f"v_exp_f32 v{T+i}, v{T+i}", f"v_mul_f32 v{g+i}, v{g+i}, v{g+8+i}"]
        L += [f"v_fma_f32 v{T+i}, v{T+i}, v14, v14" for i in range(8)]
        L += [f"v_rcp_f32 v{T+i}, v{T+i}" for i in range(8)]
        L += [f"v_mul_f32 v{g+i}, v{g+i}, v{T+i}" for i in range(8)]
        L += [f"v_cvt_pk_bf16_f32 v{O+i}, v{g+2*i}, v{g+2*i+1}" for i in range(4)]
        L += [f"buffer_store_dwordx4 v[{O}:{O+3}], v12, {WS}, s72 offen offset:{1024*tile} sc1"]
        return L
    def cnt_add(self, k, vt):
        a = self.a
        a.wait(lgkm=0)
        a(f"""v_mov_b32 v{vt}, {L_CNT + 4*k}
v_mov_b32 v{vt+1}, 1
s_mov_b64 exec, 1
ds_add_u32 v{vt}, v{vt+1}
s_mov_b64 exec, -1""")
    def cnt_wait(self, k, n, vt):
        a = self.a
        lp = self.lab("cw"); ok = self.lab("cok")
        a(f"v_mov_b32 v{vt}, {L_CNT + 4*k}\ns_mov_b32 s9, {SPIN*20}")
        a.wait(lgkm=0)
        a.label(lp)
        a(f"""ds_read_b32 v{vt+1}, v{vt}
v_cmp_ne_u32 vcc, {n}, v{vt+1}
s_cbranch_vccz {ok}
s_sub_u32 s9, s9, 1
s_cmp_lg_u32 s9, 0
s_cbranch_scc1 {lp}""")
        a.label(ok)
    def act_flag(self, stage, vt):
        self.a(f"""v_mov_b32 v{vt}, s{S_NONCE}
v_mov_b32 v{vt+1}, {stage*F3P}
s_mov_b64 exec, 1
buffer_store_dword v{vt}, v{vt+1}, {WS}, s73 offen sc1
s_mov_b64 exec, -1""")

    def gemm1(self):
        a = self.a
        B = 136; ACC = 16; AF = 48; NA = 3; AUG = 72; ST = 248; T = 48; O = 56; NPRE = self.o["npre"]
        a(f"buffer_load_dword v6, v5, {WS}, 0 offen sc1")
        a("v_xor_b32 v11, 32, v10")
        self.group_barrier(False)
        a("s_setprio 2")
        def ard(s):
            b = AF + 8 * (s % NA)
            return [f"ds_read_b64_tr_b16 v[{b+4*t+2*h}:{b+4*t+2*h+1}], v{10+t} offset:{2048*s + 512*h}" for t in range(2) for h in range(2)]
        def augl(p): return [f"buffer_load_dwordx4 v[{AUG+4*t}:{AUG+4*t+3}], v8, {WS}, 0 offen offset:{1024*p + 512*t} sc1" for t in range(2)]
        stl = [f"buffer_load_dwordx2 v[{ST}:{ST+1}], v9, {WS}, 0 offen sc1"]
        wl = [x for m in range(14) for x in self.wd_loads(m)]
        xl = [x for s in range(28) for x in self.x2_loads(B, s)] + augl(0)
        for x in xl[:4*NPRE]: a(x)
        xl = xl[4*NPRE:]
        for p in range(2):
            for s in range(NA - 1):
                for x in ard(s): a(x)
            for s in range(28):
                if p == 0 and s == 1: self.stamp("g1s1")
                if p == 0 and s == self.o["bdelay"]: self.group_barrier(True)
                if p == 0 and s == 27: xl += stl
                b = AF + 8 * (s % NA)
                nxt = ard(s + NA - 1) if s + NA - 1 < 28 else []
                for t in range(2):
                    d = f"v[{ACC+16*t}:{ACC+16*t+15}]"
                    a(f"v_mfma_f32_32x32x16_bf16 {d}, v[{b+4*t}:{b+4*t+3}], v[{B+4*s}:{B+4*s+3}], {'0' if s == 0 else d}")
                    for x in nxt[2*t:2*t+2] + xl[:2]: a(x)
                    xl = xl[2:]
                    if p == 1 and self.o["wd1"] == "p1": a(wl[2*s + t])
                if p == 1 and s == self.o["flag_at"]:
                    a.wait_mark(tok)
                    self.act_flag(0, ST + 2)
            self.stamp("g1p0" if p == 0 else "g1p1")
            tags = [AUG + 2*i + 1 for i in range(4)] + ([ST + 1] if p == 0 else [])
            self.poll(augl(p) + (stl if p == 0 else []), tags, T, [T + 1, T + 2, T + 3], issued=True, sleep=2)
            if p == 0:
                self.row_scale(ST, T)
                a("v_xor_b32 v10, 64, v10\nv_xor_b32 v11, 64, v11")
            else: self.cnt_add(0, ST + 2)
            for i in range(4): a(f"v_mov_b32 v{AUG+2*i+1}, 0")
            for t in range(2):
                d = f"v[{ACC+16*t}:{ACC+16*t+15}]"
                a(f"v_mfma_f32_32x32x16_bf16 {d}, v[{AUG+4*t}:{AUG+4*t+3}], v[4:7], {d}")
            a("s_setprio 1")
            if p == 1:
                self.g2_addr()
                if self.o["early_poll"]:
                    for x in self.g2_flag_loads([8, 9]): a(x)
            if p == 1 and self.o["wdrate"]: a.inject(wl[56:], self.o["wdrate"])
            ep = [self.swiglu(ACC + 16*t, T, O + 4*t, 2*p + t) for t in range(2)]
            for t in range(2):
                for x in ep[t][:-1]: a(x)
            rest, a.inj = a.inj, []
            if p == 0:
                for x in augl(1): a(x)
            for t in range(2): a(ep[t][-1])
            tok = a.mark()
            self.stamp("g1e0" if p == 0 else "g1e1")
        a.wait_mark(tok)
        self.act_flag(1, ST + 2)
        a("s_setprio 0")
        self.stamp("pubAct")
        a(f"v_add_u32 v7, {4*112*1024}, v12")
        if not self.o["early_poll"]:
            for x in self.g2_flag_loads([8, 9]): a(x)
        for x in (rest if self.o["wdrate"] else wl[56:]): a(x)

    G2_ACC = 192; G2_AB = 16; G2_NB = 14
    def g2_addr(self):
        self.a(f"""s_lshl_b32 s12, s{S_XCD}, 2
s_add_u32 s12, s12, s64
s_mul_i32 s12, s12, 28
s_add_u32 s12, s12, s70
s_lshl_b32 s12, s12, 7
s_add_u32 s12, s12, {FLG3}
s_lshr_b32 s13, s{S_WAVE}, 2
s_mul_i32 s13, s13, {F3P}
s_add_u32 s12, s12, s13
v_min_u32 v11, 6, v1
v_lshl_add_u32 v10, v11, 7, s12
v_add_u32 v11, {2*F3P}, v10
s_lshl_b32 s12, s{S_XCD}, 3
s_add_u32 s12, s12, s64
s_mul_i32 s12, s12, 112
s_add_u32 s12, s12, s74
s_lshl_b32 s12, s12, 10
s_add_u32 s75, s12, {ACT}
s_mov_b32 s{S_RB}, 0x05040100
s_mov_b32 s{S_FC}, 0x07060302""")
    def g2_flag_loads(self, regs):
        return [f"buffer_load_dword v{r}, v{r+2}, {WS}, 0 offen sc1" for r in regs]
    def g2_wait(self, regs, issued):
        self.poll(self.g2_flag_loads(regs), regs, 14, [], sleep=self.o["h3sleep"], issued=issued)
    def g2_bl(self, m, gs):
        nb = self.G2_NB // len(gs)
        L = []
        for k, g in enumerate(gs):
            b = self.G2_AB + 4 * (len(gs) * (m % nb) + k)
            L.append(f"buffer_load_dwordx4 v[{b}:{b+3}], v{12 if g == 0 else 7}, {WS}, s71 offen sc1")
        if m < 13: L.append(self.step_inc(m, 1024, 0, None, 71))
        return "\n".join(L)
    def g2_issue(self, gs):
        a = self.a
        a("s_mov_b32 s71, s75")
        for m in range(self.G2_NB // len(gs)): a(self.g2_bl(m, gs))
    def g2_sweep(self, gs):
        a = self.a; WD = self.V_WD; ACC = self.G2_ACC
        nb = self.G2_NB // len(gs); first = gs[0] == 0
        def perms(m):
            o = WD + 8*(m - 1); w = WD + 8*m
            return [f"v_perm_b32 v{o+4*par+k}, v{w+2*k+1}, v{w+2*k}, s{S_RB+par}" for par in range(2) for k in range(4)]
        if first:
            for x in perms(0): a(x)
        for m in range(14):
            o = WD + 8*(m - 1)
            mf = []
            for k, g in enumerate(gs):
                b = self.G2_AB + 4 * (len(gs) * (m % nb) + k)
                for par in range(2):
                    d = f"v[{ACC+32*g+16*par}:{ACC+32*g+16*par+15}]"
                    mf.append(f"v_mfma_f32_32x32x16_bf16 {d}, v[{o+4*par}:{o+4*par+3}], v[{b}:{b+3}], {'0' if m == 0 else d}")
            for x in merge(mf, perms(m + 1) if (first and m < 13) else []): a(x)
            if m + nb < 14: a(self.g2_bl(m + nb, gs))
    def g2_dump(self, g):
        a = self.a
        a(f"s_lshl_b32 s12, s{S_WAVE}, 13\ns_add_u32 s12, s12, {65536*g}\nv_add_u32 v6, s12, v12")
        for G in range(4):
            for par in range(2):
                b = self.G2_ACC + 32*g + 16*par + 4*G
                a(f"ds_write_b128 v6, v[{b}:{b+3}] offset:{G*2048 + par*1024}")
    def g2_gather(self, g, srcs, R):
        for k, src in enumerate(srcs):
            for par in range(2):
                b = R + 8*k + 4*par
                self.a(f"ds_read_b128 v[{b}:{b+3}], v{8+g} offset:{src*8192 + par*1024}")
    def g2_sum(self, R, n):
        while n > 1:
            n //= 2
            for src in range(n):
                for k in range(8): self.a(f"v_add_f32 v{R+8*src+k}, v{R+8*src+k}, v{R+8*(src+n)+k}")
    def g2_out(self, g, R, XR, GB, T):
        a = self.a
        for e in range(4):
            a(f"v_fmac_f32 v{XR+2*e}, v{GB+4*e}, v{R+e}\nv_fmac_f32 v{XR+2*e+1}, v{GB+4*e+2}, v{R+4+e}")
        for e in range(4): a(f"v_cvt_pk_bf16_f32 v{T+e}, v{XR+2*e}, v{XR+2*e+1}")
        a(f"buffer_store_dwordx4 v[{T}:{T+3}], v4, {RB}, s{72+g} offen")
    def gemm2_a(self):
        a = self.a
        self.g2_wait([8, 9], True)
        self.stamp("h3")
        self.g2_issue([0, 1])
        self.g2_sweep([0, 1])
        self.stamp("g2")
        XL = 80; XR = 88; GB = 104; R = 16; R1 = 120; T = 160
        a(f"""s_mul_i32 s12, s{S_XCD}, {224*1024}
s_lshl_b32 s13, s65, 15
s_add_u32 s12, s12, s13
s_lshl_b32 s13, s{S_W3}, 13
s_add_u32 s12, s12, s13
s_lshl_b32 s13, s64, 7
s_add_u32 s12, s12, s13
s_add_u32 s12, s12, {X2}
v_lshlrev_b32 v4, 2, v2
v_lshl_add_u32 v4, v3, 12, v4
v_add_u32 v4, s12, v4
s_lshl_b32 s12, s65, 9
s_lshl_b32 s13, s{S_W3}, 7
s_add_u32 s12, s12, s13
s_add_u32 s12, s12, {MODG + 5*448*8}
v_lshl_add_u32 v5, v3, 6, s12""")
        for g in range(2):
            for e in range(4):
                a(f"buffer_load_dword v{XL+4*g+e}, v4, {WS}, 0 offen offset:{1024*e + 512*g} sc1")
        gbl = [f"buffer_load_dwordx4 v[{GB+4*e}:{GB+4*e+3}], v5, {WS}, 0 offen offset:{16*e} sc1" for e in range(4)]
        for x in gbl: a(x)
        self.cnt_wait(0, 8, 13)
        self.g2_dump(0)
        self.g2_dump(1)
        self.cnt_add(1, 13)
        self.srd(R_B, P_OUT, 2048 * 896)
        a(f"""s_lshl_b32 s12, s{S_XCD}, 3
s_add_u32 s12, s12, s64
s_mul_i32 s12, s12, {32*896}
s_lshl_b32 s13, s65, 7
s_add_u32 s12, s12, s13
s_lshl_b32 s13, s{S_W3}, 5
s_add_u32 s72, s12, s13
s_add_u32 s73, s72, {128*896}
v_mul_u32_u24 v4, 896, v2
v_lshl_add_u32 v4, v3, 4, v4
s_lshl_b32 s12, s{S_W3}, 11
v_add_u32 v8, s12, v12
v_add_u32 v9, 65536, v8""")
        self.poll(gbl, [GB + 2*i + 1 for i in range(8)], T, [T+1, T+2, T+3, T+4], issued=True, sleep=2)
        for i in range(8):
            a(f"v_lshlrev_b32 v{XR+2*i}, 16, v{XL+i}\nv_and_b32 v{XR+2*i+1}, 0xffff0000, v{XL+i}")
        self.cnt_wait(1, 8, 13)
        self.stamp("g2s0")
        self.g2_gather(0, range(8), R)
        self.g2_sum(R, 8)
        self.g2_gather(1, range(4), R1)
        self.g2_out(0, R, XR, GB, T)
        self.g2_sum(R1, 4)
        self.cnt_wait(2, 4, 13)
        self.g2_gather(1, range(4, 8), R)
        self.g2_sum(R, 4)
        for k in range(8): a(f"v_add_f32 v{R+k}, v{R+k}, v{R1+k}")
        self.g2_out(1, R, XR + 8, GB, T + 4)
    def gemm2_b(self):
        a = self.a
        self.g2_wait([8], True)
        self.g2_issue([0])
        self.g2_sweep([0])
        self.stamp("g2s0")
        self.g2_wait([9], True)
        self.stamp("h3")
        a("s_setprio 1")
        self.g2_issue([1])
        self.cnt_wait(0, 8, 13)
        self.g2_dump(0)
        self.cnt_add(1, 13)
        self.g2_sweep([1])
        self.stamp("g2")
        self.g2_dump(1)
        self.cnt_add(2, 13)

    L_VEC = 2 * 448 * 128
    def gemv_dma(self, srd, pitch, sbase, valid):
        a = self.a
        sk = self.lab("nodma")
        a(f"""s_cmp_ge_u32 s68, {valid}
s_cbranch_scc1 {sk}
v_mul_u32_u24 v10, {pitch}, v36
v_lshl_add_u32 v11, v38, 4, v10
v_lshl_add_u32 v10, v37, 4, v10
s_mul_i32 s12, s{S_W3}, {112*pitch}
s_add_u32 s{sbase}, s{sbase}, s12
s_mul_i32 s12, s{S_WAVE}, {112*128}""")
        for i in range(14):
            a(f"s_mov_b32 m0, s12\ns_add_u32 s12, s12, 1024")
            a(f"buffer_load_dwordx4 v{10 + i % 2}, s[{srd}:{srd+3}], s{sbase} offen lds")
            a(f"s_add_u32 s{sbase}, s{sbase}, {8*pitch}")
        a.label(sk)
    def gemv_mma(self):
        a = self.a
        def rd(s):
            b = 64 + 8*s
            return [f"ds_read_b64_tr_b16 v[{b}:{b+1}], v40 offset:{4096*s}",
                    f"ds_read_b64_tr_b16 v[{b+2}:{b+3}], v40 offset:{4096*s + 512}",
                    f"ds_read_b128 v[{b+4}:{b+7}], v41 offset:{64*s}"]
        for s in range(4):
            for x in rd(s): a(x)
        for s in range(14):
            b = 64 + 8*s
            a(f"v_mfma_f32_16x16x32_bf16 v[32:35], v[{b}:{b+3}], v[{b+4}:{b+7}], {'0' if s == 0 else 'v[32:35]'}")
            if s + 4 < 14:
                for x in rd(s + 4): a(x)
    def group_barrier(self, first_group):
        sk = self.lab("gb")
        self.a(f"s_cmp_ge_u32 s{S_WAVE}, 4\n" + ("s_cbranch_scc1" if first_group else "s_cbranch_scc0") + f" {sk}\ns_barrier")
        self.a.label(sk)

    def spare(self):
        a = self.a; LV = self.L_VEC
        self.zero_stamps()
        self.srd(R_A, P_C, 896)
        a(f"""v_lshlrev_b32 v39, 1, v0
buffer_load_ushort v60, v39, {RA}, 0 offen
s_lshl_b32 s67, s{S_XCD}, 2
s_add_u32 s67, s67, s{S_SLOT}
s_sub_u32 s67, s67, 28
s_lshr_b32 s12, s{S_WAVE}, 2
s_lshl_b32 s12, s12, 5
s_add_u32 s68, s67, s12
""")
        self.mod_block()
        a(f"""s_lshl_b32 s69, s64, 7
v_lshrrev_b32 v36, 3, v1
v_and_b32 v37, 2, v36
v_and_b32 v38, 7, v1
v_xor_b32 v37, v37, v38
v_xor_b32 v38, 4, v37
v_lshrrev_b32 v42, 4, v1
v_bfe_u32 v43, v1, 2, 2
v_lshl_add_u32 v40, v42, 3, v43
v_lshlrev_b32 v40, 7, v40
v_lshrrev_b32 v43, 1, v43
v_and_b32 v44, 1, v42
v_lshl_add_u32 v43, v44, 1, v43
v_xor_b32 v43, s{S_W3}, v43
v_lshl_add_u32 v40, v43, 5, v40
v_and_b32 v43, 3, v1
v_lshl_add_u32 v40, v43, 3, v40
s_lshr_b32 s12, s{S_WAVE}, 2
s_mul_i32 s12, s12, {448*128}
v_add_u32 v40, s12, v40
v_and_b32 v43, 1, v1
v_mul_u32_u24 v43, 1088, v43
v_lshl_add_u32 v41, v42, 4, v43
v_add_u32 v41, {LV}, v41
v_add_u32 v39, {LV}, v39""")
        self.srd(R_B, P_WM, 448 * 5376)
        def silu():
            a(f"""v_lshlrev_b32 v60, 16, v60
v_mul_f32 v62, {f32(-LOG2E)}, v60
v_exp_f32 v62, v62
v_add_f32 v62, 1.0, v62
v_rcp_f32 v62, v62
v_mul_f32 v60, v60, v62
v_cvt_pk_bf16_f32 v60, v60, v60
ds_write_b16 v39, v60
ds_write_b16 v39, v60 offset:1088""")
            a.wait(lgkm=0)
        sk = self.lab("spB"); sj = self.lab("spJ")
        a(f"s_cmp_ge_u32 s{S_WAVE}, 4\ns_cbranch_scc1 {sk}")
        st = a.state()
        if self.o["warm"]: a("s_barrier")
        self.gemv_dma(R_B, 5376, 69, 42)
        silu()
        a(f"s_branch {sj}")
        a.label(sk); a.set_state(st)
        self.phase_a_addr()
        self.phase_a()
        a("s_setprio 0")
        a(f"v_mov_b32 v4, {LV + 2304}\nds_write_b32 v4, v3")
        self.stamp("pubA")
        if self.o["warm"]: a("s_barrier")
        silu()
        a("s_barrier")
        self.gemv_dma(R_B, 5376, 69, 42)
        a.label(sj); a.win = []
        a.wait(vm=0)
        self.stamp("chain")
        a("s_barrier")
        a(f"v_mov_b32 v4, {LV + 2304}\nds_read_b32 v8, v4\nv_readfirstlane_b32 s{S_NONCE}, v8")
        skm = self.lab("nomod")
        a(f"s_cmp_ge_u32 s68, 42\ns_cbranch_scc1 {skm}")
        self.gemv_mma()
        a(f"""s_cmp_eq_u32 s65, 1
s_cselect_b32 s12, 1.0, 0
s_cmp_eq_u32 s65, 4
s_cselect_b32 s12, 1.0, s12""")
        for e in range(4):
            self.bf16r(32 + e, 32 + e)
            a(f"v_add_f32 v{32+e}, s12, v{32+e}")
            self.bf16r(48 + 2*e, 32 + e)
            a(f"v_mov_b32 v{49+2*e}, s{S_NONCE}")
        a(f"""v_lshlrev_b32 v45, 5, v42
s_lshl_b32 s12, s64, 9
s_lshl_b32 s13, s{S_W3}, 7
s_add_u32 s12, s12, s13
s_add_u32 s12, s12, {MODG}
s_mov_b32 exec_lo, 0x00010001
s_mov_b32 exec_hi, 0x00010001
buffer_store_dwordx4 v[48:51], v45, {WS}, s12 offen sc1
buffer_store_dwordx4 v[52:55], v45, {WS}, s12 offen offset:16 sc1
s_mov_b64 exec, -1""")
        self.stamp("kgen")
        a.label(skm); a.win = []
        self.group_barrier(True)
        a(f"""s_barrier
s_sub_u32 s68, s{S_SLOT}, 28
s_lshl_b32 s68, s68, 1
s_lshr_b32 s12, s{S_WAVE}, 2
s_add_u32 s68, s68, s12
s_lshr_b32 s70, s{S_XCD}, 1
s_mul_i32 s70, s70, 7
s_add_u32 s70, s70, s68
s_and_b32 s71, s{S_XCD}, 1""")
        self.srd_sel(R_A, P_WU, P_WG, 448 * 3584)
        a("s_lshl_b32 s69, s70, 7")
        self.gemv_dma(R_A, 3584, 69, 7)
        a(f"v_min_u32 v46, 447, v0\nv_lshlrev_b32 v46, 3, v46\nv_add_u32 v46, {MODG + 3*448*8}, v46\ns_mov_b64 vcc, -1")
        loads = [f"buffer_load_dwordx2 v[{56+2*v}:{57+2*v}], v46, {WS}, 0 offen offset:{3584*v} sc1" for v in range(2)]
        self.poll(loads, [57, 59], 47, [], masked=True, sleep=2)
        self.stamp("h1")
        a("ds_write_b16_d16_hi v39, v58\nds_write_b16_d16_hi v39, v56 offset:1088")
        a.wait(vm=0, lgkm=0)
        skc = self.lab("noc")
        a(f"s_barrier\ns_cmp_ge_u32 s68, 7\ns_cbranch_scc1 {skc}")
        self.gemv_mma()
        for e in range(4):
            self.bf16r(47, 32 + e)
            a(f"v_sub_f32 v46, v{32+e}, v47\nv_cvt_pk_bf16_f32 v{48+2*e}, v47, v46\nv_mov_b32 v{49+2*e}, s{S_NONCE}")
        a(f"""v_lshlrev_b32 v45, 6, v42
v_and_b32 v46, 1, v1
v_lshl_add_u32 v45, v46, 3, v45
s_lshl_b32 s12, s70, 11
s_lshl_b32 s13, s71, 8
s_add_u32 s12, s12, s13
s_lshl_b32 s13, s{S_W3}, 9
s_add_u32 s12, s12, s13
s_add_u32 s12, s12, {CAUG}
s_mov_b32 exec_lo, 0x00030003
s_mov_b32 exec_hi, 0x00030003""")
        for e in range(4):
            a(f"buffer_store_dwordx2 v[{48+2*e}:{49+2*e}], v45, {WS}, s12 offen offset:{16*e} sc1")
        a("s_mov_b64 exec, -1")
        self.stamp("pubX2")
        a.label(skc); a.win = []
        a(f"""s_and_b32 s{S_RB}, s{S_XCD}, 1
s_lshl_b32 s{S_RB}, s{S_RB}, 2
s_lshr_b32 s12, s{S_XCD}, 1
s_add_u32 s{S_RB}, s{S_RB}, s12
s_mul_i32 s12, s{S_RB}, {224*1024}
s_mul_i32 s13, s{S_WAVE}, {28*1024}
s_add_u32 s12, s12, s13
s_sub_u32 s14, s{S_SLOT}, 28
s_lshl_b32 s13, s14, 8
s_add_u32 s12, s12, s13
s_add_u32 s12, s12, {X2}
v_lshl_add_u32 v4, v1, 2, s12
s_lshl_b32 s13, s{S_RB}, 2
s_add_u32 s13, s13, s14
s_lshl_b32 s13, s13, 9
s_add_u32 s13, s13, {STAT2}
v_lshl_add_u32 v5, v1, 3, s13
v_lshlrev_b32 v6, 3, v0
v_lshlrev_b32 v10, 3, v1""")
        self.barrier2()
        self.stamp("h2")
        for k in range(28):
            a(f"buffer_load_dword v{64+k}, v4, {WS}, 0 offen offset:{1024*(k%4)} sc1")
            if k % 4 == 3: a("v_add_u32 v4, 4096, v4")
        a("s_mov_b32 s13, 0x3f803f80")
        for k in range(28):
            a(f"v_dot2_f32_bf16 v2, v{64+k}, s13, {'v2' if k else '0'}\nv_dot2_f32_bf16 v3, v{64+k}, v{64+k}, {'v3' if k else '0'}")
        a("ds_write_b64 v6, v[2:3]")
        self.barrier()
        a(f"s_cmp_lg_u32 s{S_WAVE}, 0\ns_cbranch_scc1 L_fin")
        for w in range(8): a(f"ds_read_b64 v[{16+2*w}:{17+2*w}], v10 offset:{512*w}")
        for n in (4, 2, 1):
            for w in range(n):
                a(f"v_add_f32 v{16+2*w}, v{16+2*w}, v{16+2*(w+n)}\nv_add_f32 v{17+2*w}, v{17+2*w}, v{17+2*(w+n)}")
        self.ln_finish(16, 17, 18)
        a(f"""v_cvt_pk_bf16_f32 v16, v16, v17
v_mov_b32 v17, s{S_NONCE}
buffer_store_dwordx2 v[16:17], v5, {WS}, 0 offen sc1""")
        self.stamp("g1s1")

    def finish(self):
        a = self.a
        a.label("L_fin"); a.win = []
        if self.stamps:
            a.wait(vm=0)
            self.stamp("end")
            a(f"""s_lshl_b32 s12, s2, 3
s_add_u32 s12, s12, s{S_WAVE}
s_lshl_b32 s12, s12, 7
s_add_u32 s12, s12, {TS}
v_mov_b32 v2, 0
s_mov_b64 exec, 1""")
            for q in range(5):
                for i in range(4): a(f"v_mov_b32 v{4+4*q+i}, s{S_TS+4*q+i}")
                a(f"buffer_store_dwordx4 v[{4+4*q}:{7+4*q}], v2, {WS}, s12 offen offset:{16*q}")
        if self.probe:
            idx = self.stamp_names.index(self.probe) if self.probe != "none" else None
            if idx is None: a("s_mov_b32 s12, 0")
            else:
                a(f"""s_sub_u32 s12, s{S_TS+idx}, s{S_NONCE}
s_cmp_eq_u32 s{S_TS+idx}, 0
s_cselect_b32 s12, 0, s12
s_max_i32 s12, s12, 0
s_min_u32 s12, s12, 10000
s_mul_i32 s12, s12, 10""")
            a(f"s_add_u32 s12, s12, 8000\ns_mov_b32 s9, 1000000")
            a.label("L_pw")
            a(f"""s_memrealtime s[14:15]
s_sub_u32 s13, s14, s{S_NONCE}
s_sub_u32 s9, s9, 1
s_cmp_eq_u32 s9, 0
s_cbranch_scc1 L_exit
s_cmp_lt_i32 s13, s12
s_cbranch_scc1 L_pw""")
        a.label("L_exit")
        a("s_endpgm")

    def build(self):
        a = self.a
        self.prologue()
        l1 = self.lab("e1"); l2 = self.lab("e2")
        a(f"s_cmp_lt_u32 s{S_WAVE}, 4\ns_cbranch_scc1 {l1}\ns_setprio 2")
        self.phase_a_loads()
        a.label(l1)
        a(f"s_cmp_ge_u32 s{S_SLOT}, 28\ns_cbranch_scc1 L_spare")
        st_spare = a.state()
        self.param_loads(0, 2)
        a(f"s_cmp_lt_u32 s{S_WAVE}, 4\ns_cbranch_scc1 {l2}")
        stA = a.state()
        self.param_loads(2, 6)
        self.zero_stamps()
        self.conv_scalars()
        self.phase_a_addr()
        self.handoff1_addr()
        stc = a.state()
        self.counters_clear()
        a.set_state(stc); a.win = []
        self.phase_a()
        a(f"ds_write_b32 v7, v3 offset:{L_T + 11*256}")
        self.stamp("pubA")
        a("s_setprio 0")
        a("s_branch L_grpB")
        stB = a.state()
        a.label(l2); a.set_state(stA)
        self.code_touch()
        if self.o["warm"]: self.warm_wmod()
        self.zero_stamps()
        self.conv_scalars()
        self.lds_zero()
        for x in self.gather_addrs(): a(x)
        self.w13_addr()
        self.kgen_common()
        self.w13_touch()
        self.srd(R_B, P_WD, 1792 * 896)
        a(f"s_lshl_b32 s14, s{S_PAIR}, 2\ns_add_u32 s14, s14, s{S_W3}")
        self.touch(R_B, 14, 14, 254)
        self.stamp("xarr")
        self.kgen_lo()
        self.kgen_contract_pre()
        self.stamp("chain")
        self.barrier()
        a(f"ds_read_b32 v8, v7 offset:{L_T + 11*256}")
        self.kgen_contract()
        a(f"v_readfirstlane_b32 s{S_NONCE}, v8")
        self.stamp("kgen")
        self.barrier()
        self.expand(0)
        self.conv_pre()
        for x in self.w13_loads()[:8]: a(x)
        a("s_setprio 1")
        self.barrier()
        self.stamp("conv0")
        self.conv_main()
        a("s_setprio 0")
        self.barrier()
        self.stamp("conv1")
        for x in self.s_loads(): a(x)
        a("s_barrier")
        self.s_check()
        self.w13_stage()
        a("s_branch L_join")
        a.label("L_grpB"); a.set_state(stB)
        self.kgen_common()
        self.kgen_hi()
        self.stamp("chain")
        self.barrier()
        for x in self.handoff1_loads(): a(x)
        for x in self.gather_addrs(): a(x)
        self.w13_addr()
        self.stamp("kgen")
        self.barrier()
        self.expand(1)
        self.make_z()
        self.barrier()
        self.stamp("conv0")
        a.inject(self.w13_loads() + self.mod_loads() + self.s_loads(), 4)
        self.x_fetch()
        self.cum_k()
        self.conv_epilogue_pre()
        self.s_check()
        self.stamp("pre")
        self.barrier()
        self.stamp("conv1")
        self.conv_epilogue()
        self.stamp("cepi")
        self.barrier()
        def hook(i):
            if i == self.o['hook']:
                a.wait(vm=0)
                self.arrive2()
                self.stamp("pubX2")
            if i == 13 and self.stamps and "ack2" not in self.o["skip"]:
                a.wait(vm=0)
                self.stamp("ack2")
        self.w13_stage(hook)
        a.label("L_join"); a.win = []
        self.stamp("staged")
        self.ffn_addr()
        if self.o["wd1"] == "pre":
            for x in [x for m in range(7) for x in self.wd_loads(m)]: a(x)
        self.barrier2()
        self.stamp("h2")
        self.gemm1()
        a(f"s_cmp_ge_u32 s{S_WAVE}, 4\ns_cbranch_scc1 L_ffnB")
        st = a.state()
        self.gemm2_a()
        a("s_branch L_fin")
        a.label("L_ffnB"); a.set_state(st)
        self.gemm2_b()
        a("s_branch L_fin")
        a.label("L_spare"); a.set_state(st_spare)
        self.spare()
        self.finish()
        body = a.text()
        return f"""{HEADER}; @launch grid=(256,1,1) block=(512,1,1) lds={LDS_BYTES}
.amdgcn_target "amdgcn-amd-amdhsa--gfx950"
.text
.globl {KNAME}
.p2align 8
.type {KNAME},@function
{KNAME}:
{body}.section .rodata,"a"
.p2align 6
.amdhsa_kernel {KNAME}
  .amdhsa_next_free_vgpr 256
  .amdhsa_next_free_sgpr 102
  .amdhsa_accum_offset 256
  .amdhsa_group_segment_fixed_size 0
  .amdhsa_kernarg_size 144
  .amdhsa_user_sgpr_count 2
  .amdhsa_user_sgpr_kernarg_segment_ptr 1
  .amdhsa_system_sgpr_workgroup_id_x 1
.end_amdhsa_kernel
"""

if __name__ == "__main__":
    out = sys.argv[1]
    probe = sys.argv[sys.argv.index("--probe") + 1] if "--probe" in sys.argv else None
    opts = {}
    for x in sys.argv[2:]:
        if "=" in x:
            k, v = x.split("="); opts[k] = int(v) if v.lstrip("-").isdigit() else v
    g = Gen(stamps="--stamps" in sys.argv or probe is not None, probe=probe, opts=opts)
    open(out, "w").write(g.build())
    if g.stamps: open(out + ".names", "w").write(repr(g.stamp_names))
    print("instructions", g.a.nins, "nop states", g.a.nops, "stamps", g.stamp_names)
```

```python
import sys, struct, math
from asmlib import *

KNAME = "adaLN_cond__ssm_conv_s4__swiglu_ffn__prompt_kernel"
HEADER = open("adaLN_cond__ssm_conv_s4__swiglu_ffn__prompt.s.ref").read().split("; Override launch")[0]

XG, STAT, MODG, FLG2, CAUG, FLG3, X2, ACT, TS = 0x0, 0x400000, 0x410000, 0x420000, 0x440000, 0x450000, 0x500000, 0x700000, 0xF00000
STAT2 = 0x408000
F3P = 32 * 4 * 128
WDF = 0x1000000
FLG2B = 0x480000
XSC = 0x1200000
WS_BYTES = 0x1400000
OOB = 0x7fff0000
S_WAVE, S_XCD, S_SLOT, S_PAIR, S_NONCE, S_W3 = 4, 5, 6, 7, 8, 3
P_U, P_ARE, P_AIM, P_BRE, P_BIM, P_CRE, P_CIM, P_LDT, P_DSK, P_BX, P_WG, P_WU, P_WD, P_C, P_WM, P_OUT, P_DBG, P_WS = range(16, 52, 2)
R_WS, R_A, R_B, R_D = 52, 56, 60, 96
S_RB, S_FC = 66, 67
S_TS = 76
SPIN = 20000
CODE_SHARE = 4
WS = f"s[{R_WS}:{R_WS+3}]"
RA = f"s[{R_A}:{R_A+3}]"
RB = f"s[{R_B}:{R_B+3}]"
RD = f"s[{R_D}:{R_D+3}]"
TP = 73 * 256
L_T = 0
HP = 4576
EP = 528
EW = 54 * EP
CP = 4160
L_E = 2 * TP
L_H = L_E + 4 * EW
L_CT = L_H + 2 * HP
SI = 448 * 64
L_C = 4 * SI
L_Y = 20 * 1024
L_XS = 3 * SI + 12 * 1024
L_V = 4 * SI + 40960
L_AUG = L_V + 2176
LDS_BYTES = 163840
L_F = 4 * SI
L_CNT = LDS_BYTES - 64
assert L_C + 8 * CP <= L_H and L_CT + 64 <= L_CNT

def f32(x): return "0x%08x" % struct.unpack("<I", struct.pack("<f", x))[0]
LOG2E = 1.4426950408889634

class Gen:
    def __init__(self, stamps=False, probe=None, opts=None):
        self.o = dict(b2="flag", b2sleep=0, hook=3, npre=6, h3sleep=2, skip='mid0,mid1,mid2,nfail,h1,cepi,ack2,xarr,pre,iss,x0,exp', bdelay=7, flag_at=8, warm=1, stat_at=23, wdrate=0, wdpre=56, wdtouch=0, spre=0, w13a=8, w13b=8, midbar=1, cyc=0, wd1='p1', wdA=14, g2pre=8, efill=44, wdfs=1, w13p='none', h1late=1, f23=100, krot=1, xtouch=0, g2preB=5, spo='45670123', xrate=2, g2d=5, wdB=0, xt=8, wm=1, w13t=0, w13rate=8, split2=1, pollers=1, b2wait=1, ne=12, spw13=0, wd0=0, abatch=0, aspan=208, outsc='', spsleep=6, modfirst=1, w13rate2=4, w13t_at=8, aw13=0)
        self.o.update(opts or {})
        self.a = Asm(); self.stamps = stamps; self.uid = 0; self.probe = probe
        self.stamp_names = []
    def lab(self, n):
        self.uid += 1
        return f"L_{n}_{self.uid}"
    def srd(self, r, p, nbytes):
        self.a(f"s_mov_b32 s{r}, s{p}\ns_mov_b32 s{r+1}, s{p+1}\ns_mov_b32 s{r+2}, {nbytes}\ns_mov_b32 s{r+3}, 0x00020000")
    def srd_sel(self, r, p1, p0, nbytes):
        self.a(f"s_cselect_b32 s{r}, s{p1}, s{p0}\ns_cselect_b32 s{r+1}, s{p1+1}, s{p0+1}\ns_mov_b32 s{r+2}, {nbytes}\ns_mov_b32 s{r+3}, 0x00020000")
    def stamp(self, name):
        if not self.stamps: return
        if name in self.o["skip"].split(","): return
        if self.o.get("only") and name not in self.o["only"].split(","): return
        a = self.a
        if name not in self.stamp_names: self.stamp_names.append(name)
        idx = self.stamp_names.index(name)
        assert idx < 20, self.stamp_names
        a.wait(lgkm=0)
        a("s_memtime s[14:15]" if self.o["cyc"] else "s_memrealtime s[14:15]")
        a(f"s_mov_b32 s{S_TS + idx}, s14")
    def barrier(self):
        self.a.wait(lgkm=0)
        self.a("s_barrier")
    def poll(self, loads, tags, dst, tmp, issued=False, masked=False, sleep=0):
        a = self.a
        ok = self.lab("ok"); lp = self.lab("spin"); out = self.lab("out")
        if issued:
            self.tagcheck(dst, tags, tmp)
            a(f"v_cmp_ne_u32 vcc, 0, v{dst}\ns_cbranch_vccz {ok}")
        st = a.state()
        a(f"s_mov_b32 s9, {SPIN}")
        a.label(lp)
        if masked: a("s_mov_b64 exec, vcc")
        for x in loads: a(x)
        self.tagcheck(dst, tags, tmp)
        a(f"v_cmp_ne_u32 vcc, 0, v{dst}\ns_cbranch_vccz {out}")
        if sleep: a(f"s_sleep {sleep}")
        a(f"s_sub_u32 s9, s9, 1\ns_cmp_lg_u32 s9, 0\ns_cbranch_scc1 {lp}")
        a.label(out)
        if masked: a("s_mov_b64 exec, -1")
        a.label(ok)
        if issued: a.set_state(st)
    def tagcheck(self, dst, tags, tmp):
        a = self.a; parts = []
        n = (len(tags) + 1) // 2
        for i in range(0, len(tags) - 1, 2):
            o = dst if n == 1 else tmp[i//2]
            a(f"v_bitop3_b32 v{o}, v{tags[i]}, v{tags[i+1]}, s{S_NONCE} bitop3:0x7e"); parts.append(o)
        if len(tags) % 2:
            o = dst if n == 1 else tmp[len(tags)//2]
            a(f"v_xor_b32 v{o}, s{S_NONCE}, v{tags[-1]}"); parts.append(o)
        while len(parts) > 1:
            if len(parts) >= 3:
                o = dst if len(parts) == 3 else parts[0]
                a(f"v_or3_b32 v{o}, v{parts[0]}, v{parts[1]}, v{parts[2]}"); parts = parts[3:] + [o]
            else:
                a(f"v_or_b32 v{dst}, v{parts[0]}, v{parts[1]}"); parts = [dst]
    def bf16r(self, d, s):
        self.a(f"v_cvt_pk_bf16_f32 v{d}, v{s}, v{s}\nv_and_b32 v{d}, 0xffff0000, v{d}")

    def prologue(self):
        a = self.a
        a(f"""s_cmp_ge_u32 s2, 256
s_cbranch_scc1 L_exit
s_load_dwordx4 s[48:51], s[0:1], 128
s_load_dwordx16 s[16:31], s[0:1], 0
s_load_dwordx16 s[32:47], s[0:1], 64
s_memrealtime s[10:11]
v_lshrrev_b32 v2, 6, v0
v_and_b32 v1, 63, v0
v_readfirstlane_b32 s{S_WAVE}, v2
s_and_b32 s{S_XCD}, s2, 7
s_lshr_b32 s{S_SLOT}, s2, 3
s_mul_i32 s{S_PAIR}, s{S_XCD}, 28
s_add_u32 s{S_PAIR}, s{S_PAIR}, s{S_SLOT}
s_and_b32 s{S_W3}, s{S_WAVE}, 3
v_and_b32 v186, 255, v0
; row-statistics address: lanes 0-27 row 2w, lanes 32-59 row 2w+1
v_and_b32 v3, 31, v0
v_lshrrev_b32 v4, 5, v186
v_mul_u32_u24 v8, 896, v4
v_lshl_add_u32 v8, v3, 4, v8
v_mov_b32 v6, {OOB}
v_cmp_gt_u32 vcc, 28, v3
s_mul_i32 s12, s2, {8*896}
v_cndmask_b32 v8, v6, v8, vcc
v_and_b32 v5, 3, v0
v_mul_u32_u24 v9, 1792, v5
v_and_b32 v2, 0xfc, v0
v_add3_u32 v9, v9, v2, s12
v_mov_b32 v7, 0
s_lshl_b32 s13, s{S_PAIR}, 10
v_lshl_add_u32 v10, v186, 2, s13
s_mov_b32 s{R_A+2}, {2048*896}
s_mov_b32 s{R_A+3}, 0x00020000
s_mov_b32 s{R_WS+2}, {WS_BYTES}
s_mov_b32 s{R_WS+3}, 0x00020000
; publish addresses
v_lshlrev_b32 v5, 4, v5
v_lshl_add_u32 v5, v2, 5, v5
v_cmp_gt_u32 vcc, 128, v186
v_add_u32 v56, 0x4000, v5
v_add_u32 v57, 0x6000, v5
v_cndmask_b32 v57, v6, v57, vcc
v_add_u32 v6, 0x2000, v5
v_lshlrev_b32 v4, 3, v4
s_lshr_b32 s70, s2, 1
s_mul_i32 s70, s70, 28672
s_and_b32 s13, s2, 1
s_lshl_b32 s13, s13, 6
s_add_u32 s70, s70, s13
s_lshl_b32 s71, s2, 6
s_add_u32 s71, s71, {STAT}
s_and_b32 s{S_RB}, s{S_XCD}, 1
s_lshl_b32 s{S_RB}, s{S_RB}, 2
s_and_b32 s13, s{S_SLOT}, 3
s_add_u32 s{S_RB}, s{S_RB}, s13
s_lshr_b32 s{S_FC}, s{S_XCD}, 1
s_mul_i32 s{S_FC}, s{S_FC}, 7
s_lshr_b32 s13, s{S_SLOT}, 2
s_add_u32 s{S_FC}, s{S_FC}, s13
s_lshl_b32 s72, s{S_PAIR}, 2
s_or_b32 s13, s2, s{S_WAVE}
""")
        assert XG == 0
        self.zero_stamps()
        a.wait(lgkm=0)
        if self.stamps:
            self.stamp_names = ["start"]
            a(f"s_mov_b32 s{S_TS}, s10")
        nn = self.lab("nononce")
        a(f"""s_cmp_lg_u32 s13, 0
s_cbranch_scc1 {nn}
s_or_b32 s11, s10, 1
s_atomic_swap s11, s[{P_DBG}:{P_DBG+1}], 0
s_atomic_swap s11, s[{P_DBG}:{P_DBG+1}], 128""")
        a.label(nn)

    def phase_a_loads(self):
        a = self.a
        a(f"s_mov_b32 s{R_A}, s{P_U}\ns_mov_b32 s{R_A+1}, s{P_U+1}")
        a(f"buffer_load_dwordx4 v[12:15], v8, {RA}, s12 offen")
        a(f"buffer_load_dwordx4 v[16:19], v8, {RA}, s12 offen offset:448")
        for k in range(4):
            a(f"buffer_load_dword v{20+4*k}, v9, {RA}, 0 offen offset:{256*k}")
            a(f"buffer_load_dword v{22+4*k}, v9, {RA}, 0 offen offset:{256*k+896}")
    def nonce_sample(self):
        self.a(f"s_load_dword s{S_NONCE}, s[{P_DBG}:{P_DBG+1}], 0")
    def get_nonce(self):
        a = self.a
        ok = self.lab("nonce_ok"); lp = self.lab("nonce_poll")
        a(f"s_cmp_lg_u32 s{S_NONCE}, 0")
        st = a.state()
        a(f"s_cbranch_scc1 {ok}\ns_mov_b32 s9, {SPIN}")
        self.stamp("nfail")
        self.srd(R_D, P_DBG, 256)
        a.label(lp)
        a(f"""buffer_load_dword v8, v7, {RD}, 0 offen offset:128 sc1
v_readfirstlane_b32 s{S_NONCE}, v8
s_sub_u32 s9, s9, 1
s_cmp_eq_u32 s9, 0
s_cbranch_scc1 {ok}
s_cmp_eq_u32 s{S_NONCE}, 0
s_cbranch_scc1 {lp}""")
        a.label(ok)
        a.set_state(st); a.win = []
        a("s_nop 1")

    def phase_a_stats(self):
        a = self.a
        a("s_mov_b32 s13, 0x3f803f80")
        a(f"v_dot2_f32_bf16 v58, v12, s13, 0\nv_dot2_f32_bf16 v59, v12, v12, 0")
        self.stamp("x0")
        for r in range(13, 20):
            a(f"v_dot2_f32_bf16 v58, v{r}, s13, v58\nv_dot2_f32_bf16 v59, v{r}, v{r}, v59")
        for sh in (1, 2, 4, 8):
            a(f"v_add_f32_dpp v58, v58, v58 row_shr:{sh} row_mask:0xf bank_mask:0xf bound_ctrl:0")
            a(f"v_add_f32_dpp v59, v59, v59 row_shr:{sh} row_mask:0xf bank_mask:0xf bound_ctrl:0")
        a("v_add_f32_dpp v58, v58, v58 row_bcast:15 row_mask:0xa bank_mask:0xf")
        a("v_add_f32_dpp v59, v59, v59 row_bcast:15 row_mask:0xa bank_mask:0xf")
        a.wait(lgkm=0)
        self.nonce_sample()
        self.ln_finish(58, 59, 14)
        a("v_cvt_pk_bf16_f32 v58, v58, v59")
    def phase_a_publish(self):
        a = self.a
        self.get_nonce()
        for k, ad in enumerate((5, 6, 56, 57)):
            a(f"v_mov_b32 v{21+4*k}, s{S_NONCE}\nv_mov_b32 v{23+4*k}, s{S_NONCE}")
            a(f"buffer_store_dwordx4 v[{20+4*k}:{23+4*k}], v{ad}, {WS}, s70 offen sc1")
        a(f"""v_mov_b32 v59, s{S_NONCE}
s_mov_b32 exec_lo, 0x80000000
s_mov_b32 exec_hi, 0x80000000
buffer_store_dwordx2 v[58:59], v4, {WS}, s71 offen sc1
s_mov_b64 exec, -1""")

    def ln_finish(self, vs, vq, t):
        a = self.a
        a(f"""v_mul_f32 v{vs}, {f32(1/448)}, v{vs}
v_mul_f32 v{vq}, {f32(1/448)}, v{vq}
v_fma_f32 v{vq}, -v{vs}, v{vs}, v{vq}
v_max_f32 v{vq}, 0, v{vq}""")
        self.bf16r(vq, vq)
        a(f"v_add_f32 v{vq}, {f32(1e-5)}, v{vq}")
        self.bf16r(vq, vq)
        a(f"v_sqrt_f32 v{vq}, v{vq}")

    V_PAR = 36
    V_GA = 44
    def zero_stamps(self):
        if self.stamps:
            for i in range(1, 20): self.a(f"s_mov_b32 s{S_TS+i}, 0")
    def param_loads(self, n0, n1):
        for i, p in list(enumerate((P_ARE, P_AIM, P_BRE, P_BIM, P_CRE, P_CIM)))[n0:n1]:
            self.a(f"global_load_dword v{self.V_PAR+i}, v10, s[{p}:{p+1}]")
    def conv_scalars(self):
        self.a(f"s_load_dword s64, s[{P_LDT}:{P_LDT+1}], s72\ns_load_dword s65, s[{P_DSK}:{P_DSK+1}], s72")
    def code_touch(self):
        a = self.a
        pc = self.lab("pc")
        a("s_getpc_b64 s[12:13]")
        a.label(pc)
        a(f"""s_lshl_b32 s14, s{S_SLOT}, 2
s_add_u32 s14, s14, s{S_W3}
s_mul_i32 s14, s14, {CODE_SHARE}
v_min_u32 v42, {CODE_SHARE-1}, v1
v_add_u32 v42, s14, v42
v_lshlrev_b32 v42, 7, v42
v_min_u32 v42, L_lagtab+4096-{pc}, v42
v_mov_b32 v43, s13
v_add_co_u32 v42, vcc, s12, v42
v_addc_co_u32 v43, vcc, 0, v43, vcc
global_load_dword v55, v[42:43], off""")
    def lds_zero(self):
        self.a(f"""v_mov_b32 v60, 0
v_mov_b32 v61, 0
v_lshlrev_b32 v11, 3, v1
v_add_u32 v11, {L_H}, v11
ds_write_b64 v11, v[60:61]
ds_write_b64 v11, v[60:61] offset:{HP}
ds_write_b64 v7, v[60:61] offset:{L_T + 9*256}
ds_write_b64 v7, v[60:61] offset:{L_T + TP + 9*256}
v_mov_b32 v11, {L_CNT}
ds_write_b64 v11, v[60:61]
ds_write_b64 v11, v[60:61] offset:8
ds_write_b64 v11, v[60:61] offset:16""")
    def gather_addr(self):
        a = self.a
        pc = self.lab("pc")
        a("s_getpc_b64 s[12:13]")
        a.label(pc)
        a(f"""s_add_u32 s12, s12, L_lagtab-{pc}
s_addc_u32 s13, s13, 0
v_lshlrev_b32 v178, 4, v186
v_mov_b32 v179, s13
v_add_co_u32 v178, vcc, s12, v178
v_addc_co_u32 v179, vcc, 0, v179, vcc""")
    def gather_loads(self):
        return ["global_load_dwordx4 v[172:175], v[178:179], off", "global_load_dwordx2 v[176:177], v[178:179], off offset:16"]
    def gather_unpack(self):
        return [f"v_and_b32 v{self.V_GA+m}, 0xffff, v{172+m//2}" if m % 2 == 0 else f"v_lshrrev_b32 v{self.V_GA+m}, 16, v{172+m//2}" for m in range(11)]
    def lag_table(self):
        vals = []
        for u in range(2048 + 16):
            l = 2047 - u
            if l < 0: vals.append(9 * 256); continue
            b = struct.unpack("<I", struct.pack("<f", float(l)))[0]
            b = (b + 0x7fff + ((b >> 16) & 1)) & 0xffff0000
            lb = int(struct.unpack("<f", struct.pack("<I", b))[0])
            vals.append(((lb >> 8) << 11) | ((lb & 7) << 8) | (lb & 0xf8))
        out = ".p2align 7\n.type L_lagtab,@object\nL_lagtab:\n"
        for i in range(0, len(vals), 16): out += ".short " + ", ".join(str(v) for v in vals[i:i+16]) + "\n"
        return out + f".size L_lagtab, {2*len(vals)}\n"
    def touch(self, srd, share_lines, index_sreg, vt, vd):
        self.a(f"""s_mul_i32 s13, s{index_sreg}, {share_lines*128}
v_min_u32 v{vt}, {share_lines-1}, v1
v_lshl_add_u32 v{vt}, v{vt}, 7, s13
buffer_load_dword v{vd}, v{vt}, s[{srd}:{srd+3}], 0 offen""")
    def mod_block(self, sv=65, sb=64):
        self.a(f"""s_add_u32 s14, s68, 22
s_sub_u32 s15, s68, 10
s_cmp_lt_u32 s68, 10
s_cselect_b32 s14, s14, s15
s_cmp_ge_u32 s68, 32
s_cselect_b32 s14, s68, s14
s_mul_i32 s12, s14, 37
s_lshr_b32 s12, s12, 8
s_mul_i32 s13, s12, 7
s_sub_u32 s13, s14, s13
s_lshl_b32 s12, s12, 2
s_lshr_b32 s12, 0x534210, s12
s_and_b32 s{sv}, s12, 15
s_mul_i32 s{sb}, s{sv}, 7
s_add_u32 s{sb}, s{sb}, s13""")
    def warm_wmod(self):
        a = self.a
        self.srd(R_B, P_WM, 448 * 5376)
        a(f"s_lshl_b32 s68, s{S_XCD}, 2\ns_add_u32 s68, s68, s{S_W3}")
        self.mod_block(73, 74)
        a("s_add_u32 s68, s68, 32")
        self.mod_block(73, 75)
        a(f"""s_cmp_lt_u32 s68, 42
s_cselect_b32 s75, s75, s74
s_lshl_b32 s13, s{S_SLOT}, 4
v_and_b32 v254, 15, v1
v_add_u32 v254, s13, v254
v_mul_u32_u24 v254, 5376, v254
v_mov_b32 v255, s74
v_mov_b32 v11, s75
v_cmp_gt_u32 vcc, 16, v1
v_cndmask_b32 v255, v11, v255, vcc
v_lshl_add_u32 v254, v255, 7, v254""")
        return f"buffer_load_dword v255, v254, {RB}, 0 offen"
    def w13_touch(self, srd=R_D):
        a = self.a
        a(f"s_bitcmp1_b32 s{S_W3}, 1")
        self.srd_sel(srd, P_WU, P_WG, 448 * 3584)
        a(f"""s_lshl_b32 s13, s{S_SLOT}, 1
s_and_b32 s14, s{S_W3}, 1
s_add_u32 s13, s13, s14
s_mul_i32 s13, s13, {8*3584}
s_lshr_b32 s14, s{S_XCD}, 1
s_mul_i32 s14, s14, 896
s_add_u32 s13, s13, s14
v_lshrrev_b32 v252, 3, v1
v_mul_u32_u24 v252, 3584, v252
v_and_b32 v253, 7, v1
v_min_u32 v253, 6, v253
v_lshl_add_u32 v252, v253, 7, v252
v_add_u32 v252, s13, v252""")
        return f"buffer_load_dword v253, v252, s[{srd}:{srd+3}], 0 offen"
    def wd_touch(self, half, vt):
        a = self.a
        self.srd(R_B, P_WD, 1792 * 896)
        a(f"""s_mul_i32 s12, s{S_XCD}, 7
s_lshr_b32 s12, s12, 1
s_add_u32 s12, s12, s{S_SLOT}
s_sub_u32 s13, s12, 28
s_cmp_ge_u32 s12, 28
s_cselect_b32 s12, s13, s12
s_lshl_b32 s12, s12, 3
s_lshl_b32 s13, s{S_W3}, 1
s_add_u32 s12, s12, s13
s_add_u32 s12, s12, {half}""")
        self.touch(R_B, 56, 12, vt, 14 if half == 0 else 5)

    def cmul(self, d, x, r, t):
        return [f"v_pk_mul_f32 v[{t}:{t+1}], v[{x}:{x+1}], v[{r}:{r+1}] op_sel_hi:[1,0]",
                f"v_pk_fma_f32 v[{d}:{d+1}], v[{x}:{x+1}], v[{r}:{r+1}], v[{t}:{t+1}] op_sel:[1,1,0] op_sel_hi:[0,1,1] neg_lo:[0,1,0]"]

    def kgen_common(self):
        a = self.a; P = self.V_PAR
        a(f"""s_lshl_b32 s12, s64, 16
s_and_b32 s13, s64, 0xffff0000
s_cmp_lt_u32 s{S_W3}, 2
s_cselect_b32 s64, s12, s13
s_lshl_b32 s12, s65, 16
s_and_b32 s13, s65, 0xffff0000
s_cmp_lt_u32 s{S_W3}, 2
s_cselect_b32 s65, s12, s13
s_bitcmp1_b32 s{S_WAVE}, 0
s_cselect_b32 s65, 0, s65
s_mul_i32 s68, s{S_W3}, {EW}
s_add_u32 s68, s68, {L_E}""")
        lh = struct.unpack("<f", struct.pack("<f", LOG2E))[0]
        a(f"""v_mov_b32 v2, {f32(lh)}
v_mul_f32 v3, s64, v2
v_fma_f32 v11, s64, v2, -v3
v_mov_b32 v2, {f32(LOG2E - lh)}
v_fma_f32 v11, s64, v2, v11
v_exp_f32 v3, v3
v_mul_f32 v11, {f32(math.log(2))}, v11
v_fma_f32 v3, v3, v11, v3""")
        self.bf16r(2, 3)
        a(f"v_lshl_add_u32 v10, v1, 3, s68")
        for k in range(2):
            u = 80 + 6*k
            for i in range(2):
                a(f"v_lshlrev_b32 v{u+i}, 16, v{P+i}" if k == 0 else f"v_and_b32 v{u+i}, 0xffff0000, v{P+i}")
            a(f"""v_mul_f32 v{u}, v2, v{u}
v_mul_f32 v{u+1}, v2, v{u+1}
v_mul_f32 v{u}, {f32(LOG2E)}, v{u}
v_mul_f32 v{u+1}, {f32(1/(2*math.pi))}, v{u+1}""")
    def rho(self, L, R, sg):
        a = self.a
        for k in range(2):
            u = 80 + 6*k; t = 92 + 2*k
            a(f"v_mul_f32 v{t}, {f32(L)}, v{u}\nv_mul_f32 v{t+1}, {f32(L)}, v{u+1}\nv_fract_f32 v{t+1}, v{t+1}")
        for k in range(2):
            t = 92 + 2*k
            a(f"v_exp_f32 v{t}, v{t}\nv_cos_f32 v{R[k]}, v{t+1}\nv_sin_f32 v{R[k]+1}, v{t+1}")
        for k in range(2):
            t = 92 + 2*k
            a(f"v_mul_f32 v{R[k]}, v{t}, v{R[k]}\nv_mul_f32 v{R[k]+1}, {sg}v{t}, v{R[k]+1}")
    def chain_runner(self):
        outs = [96, 98, 100, 102]; st = {"i": 0, "pend": None}; seq = []
        T = [92, 94]
        def put(row, src):
            o = outs[st["i"] % 4]; st["i"] += 1
            return [f"v_cvt_pk_bf16_f32 v{o}, v{src[0]}, v{src[0]+1}", f"v_cvt_pk_bf16_f32 v{o+1}, v{src[1]}, v{src[1]+1}",
                    f"ds_write_b64 v10, v[{o}:{o+1}] offset:{row*EP}"]
        def first(row, src): st["pend"] = put(row, src)
        def chain(dst, src, rho, row):
            m0 = self.cmul(dst[0], src[0], rho[0], T[0]); m1 = self.cmul(dst[1], src[1], rho[1], T[1])
            p = st["pend"]
            seq.extend([m0[0], m1[0], p[0], m0[1], m1[1], p[1], p[2]])
            st["pend"] = put(row, dst)
        def done():
            seq.extend(st["pend"]); return seq
        return first, chain, done
    def kgen_lo(self):
        a = self.a
        R8 = [72, 74]; pp = [[80, 82], [84, 86]]
        self.rho(8, R8, "-")
        a(f"v_mov_b32 v102, 0x3f80\nv_mov_b32 v103, 0x3f80\nds_write_b64 v10, v[102:103] offset:{22*EP}")
        first, chain, done = self.chain_runner()
        first(23, R8); cur = R8
        for c in range(2, 32):
            chain(pp[c % 2], cur, R8, 22 + c); cur = pp[c % 2]
        for s in done(): a(s)
    def kgen_hi(self):
        a = self.a; P = self.V_PAR
        W = [64, 66]; R1 = [68, 70]; R256 = [76, 78]; pp = [[80, 82], [84, 86]]
        for k in range(2):
            u = 80 + 6*k
            for i in range(2, 6):
                a(f"v_lshlrev_b32 v{u+i}, 16, v{P+i}" if k == 0 else f"v_and_b32 v{u+i}, 0xffff0000, v{P+i}")
            a(f"""v_mul_f32 v{u+2}, v2, v{u+2}
v_mul_f32 v{u+3}, v2, v{u+3}
v_mul_f32 v{W[k]}, v{u+4}, v{u+2}
v_mul_f32 v{W[k]+1}, v{u+4}, v{u+3}
v_fma_f32 v{W[k]}, -v{u+5}, v{u+3}, v{W[k]}
v_fma_f32 v{W[k]+1}, v{u+5}, v{u+2}, v{W[k]+1}""")
        self.rho(1, R1, "")
        self.rho(256, R256, "")
    def kgen_hi_chain(self):
        a = self.a
        W = [64, 66]; R1 = [68, 70]; R256 = [76, 78]; pp = [[80, 82], [84, 86]]
        first, chain, done = self.chain_runner()
        keep = {0: W, 2: [104, 106], 4: [108, 110], 6: [112, 114]}
        first(0, W); cur = W
        for j in range(1, 8):
            nxt = keep.get(j, pp[(j // 2) % 2])
            chain(nxt, cur, R1, j); cur = nxt
        A0 = [116, 118]; A4 = [120, 122]; B0 = [124, 126]; B4 = [128, 130]
        for dst, src, row in ((A0, keep[0], 8), (A4, keep[4], 12), (pp[0], keep[2], 9), (pp[1], keep[6], 13),
                              (B0, A0, 10), (B4, A4, 14), (A0, B0, 11), (A4, B4, 15),
                              (B0, A0, 16), (A0, B0, 17), (B0, A0, 18), (A0, B0, 20), (B0, A0, 21)):
            chain(dst, src, R256, row)
        for s in done(): a(s)

    def kgen_contract(self, first, fill, late):
        a = self.a
        ACC = 64; F = 96
        def rd(s):
            b = F + 8 * (s % 7)
            return [f"ds_read_b128 v[{b}:{b+3}], v10 offset:{32*s}", f"ds_read_b128 v[{b+4}:{b+7}], v10 offset:{22*EP + 32*s}"]
        for s in range(7):
            for x in rd(s): a(x)
        for x in first: a(x)
        for s in range(16):
            b = F + 8 * (s % 7)
            a(f"v_mfma_f32_32x32x16_bf16 v[{ACC}:{ACC+15}], v[{b}:{b+3}], v[{b+4}:{b+7}], v[{ACC}:{ACC+15}]")
            if s + 7 < 16:
                for x in rd(s + 7): a(x)
            if s == self.o["w13t_at"]: a(late)
        for x in fill: a(x)
        for i, row in enumerate((0, 1, 2, 3, 8, 10, 16, 24)):
            a(f"ds_write_b32 v11, v{ACC+i} offset:{L_T + row*256}")
        for i, row in enumerate((32, 40, 48)):
            a(f"ds_write_b32 v12, v{ACC+8+i} offset:{L_T + row*256}")
    def kgen_contract_pre(self):
        a = self.a; ACC = 64
        a(f"""v_and_b32 v2, 31, v1
v_mul_u32_u24 v10, {EP}, v2
v_lshrrev_b32 v3, 5, v1
v_lshl_add_u32 v10, v3, 4, v10
v_add_u32 v10, s68, v10
s_lshr_b32 s12, s{S_W3}, 1
s_mul_i32 s12, s12, {TP}
s_and_b32 s13, s{S_W3}, 1
s_lshl_b32 s13, s13, 2
s_add_u32 s12, s12, s13
v_lshl_add_u32 v2, v2, 3, s12
v_mul_u32_u24 v12, {24*256}, v3
v_add_u32 v12, v12, v2
v_lshl_add_u32 v11, v3, 10, v2
v_mov_b32 v3, s65
v_cmp_eq_u32 vcc, 0, v1""")
        for i in range(1, 16): a(f"v_mov_b32 v{ACC+i}, 0")
        a(f"v_cndmask_b32 v{ACC}, v{ACC+1}, v3, vcc")

    def expand(self, ch):
        a = self.a; G = 64; O = 96
        for m in range(11):
            a(f"ds_read_b64 v[{G+2*m}:{G+2*m+1}], v{self.V_GA+m} offset:{L_T + ch*TP}")
        a(f"""v_lshlrev_b32 v10, 4, v186
v_add_u32 v10, {L_C + ch*4*CP}, v10
v_lshrrev_b32 v11, 1, v0
v_mul_u32_u24 v11, {CP}, v11
v_and_b32 v12, 1, v0
v_lshl_add_u32 v11, v12, 4, v11
v_add_u32 v11, {L_C + 4096}, v11
v_mov_b32 v60, 0
v_mov_b32 v61, 0
v_mov_b32 v62, 0
v_mov_b32 v63, 0
v_cmp_gt_u32 vcc, 16, v0
s_and_saveexec_b64 s[12:13], vcc
ds_write_b128 v11, v[60:63]
s_mov_b64 exec, s[12:13]""")
        for m in range(11):
            a(f"v_add_f32 v{G+2*m}, v{G+2*m}, v{G+2*m+1}")
        for c in range(4):
            o = O + 4*c
            for k in range(4):
                m = c + 2*k
                a(f"v_cvt_pk_bf16_f32 v{o+k}, v{G+2*m}, v{G+2*(m+1)}")
            a(f"ds_write_b128 v10, v[{o}:{o+3}] offset:{c*CP}")

    V_XG = 152
    V_SG = 160
    V_MG = 168
    def handoff1_loads(self):
        L = [f"buffer_load_dwordx4 v[{self.V_XG+4*k}:{self.V_XG+4*k+3}], v{180+k}, {WS}, 0 offen sc1" for k in range(2)]
        L += [f"buffer_load_dwordx4 v[{self.V_SG+4*k}:{self.V_SG+4*k+3}], v{182+k}, {WS}, 0 offen sc1" for k in range(2)]
        return L
    def handoff1_addr(self):
        self.a(f"""v_lshrrev_b32 v180, 3, v0
v_mul_u32_u24 v180, 28672, v180
v_and_b32 v181, 7, v0
v_lshl_add_u32 v180, v181, 4, v180
s_lshl_b32 s13, s{S_PAIR}, 7
v_add_u32 v180, s13, v180
v_add_u32 v181, {64*28672}, v180
v_lshlrev_b32 v182, 4, v0
v_add_u32 v182, {STAT}, v182
v_add_u32 v183, 8192, v182""")
    def wdf_loads(self, srd):
        a = self.a
        self.srd(srd, P_WD, 1792 * 896)
        a(f"""s_lshl_b32 s12, s{S_PAIR}, 2
s_add_u32 s12, s12, s{S_W3}
s_mul_i32 s13, s12, 9363
s_lshr_b32 s13, s13, 16
s_mul_i32 s13, s13, {16*896 - 7*128}
s_lshl_b32 s14, s12, 7
s_add_u32 s13, s13, s14
s_lshl_b32 s14, s12, 11
s_add_u32 s14, s14, {WDF}
s_cmp_lt_u32 s12, 784
s_cselect_b32 s14, s14, {OOB}
v_and_b32 v189, 31, v1
v_lshrrev_b32 v190, 5, v1
v_mul_u32_u24 v190, {4*896}, v190
v_lshl_add_u32 v189, v189, 2, v190
v_add_u32 v189, s13, v189
v_add_u32 v190, {8*896}, v189
v_lshl_add_u32 v191, v1, 4, s14""")
        return [f"buffer_load_dword v{136+k}, v{189 + k//4}, s[{srd}:{srd+3}], 0 offen offset:{896*(k%4)}" for k in range(8)]
    def wdf_stores(self):
        a = self.a
        a("s_mov_b32 s12, 0x05040100\ns_mov_b32 s13, 0x07060302")
        for par in range(2):
            o = 144 + 4*par
            for k in range(4): a(f"v_perm_b32 v{o+k}, v{136+2*k+1}, v{136+2*k}, s{12+par}")
            a(f"buffer_store_dwordx4 v[{o}:{o+3}], v191, {WS}, 0 offen offset:{1024*par} sc1")
    def mod_addr(self):
        self.a(f"""s_lshl_b32 s13, s{S_PAIR}, 4
s_add_u32 s13, s13, {MODG}
v_mov_b32 v184, s13
v_add_u32 v185, {2*448*8}, v184
v_add_u32 v187, {4*448*8}, v184""")
    def mod_loads(self):
        MG = self.V_MG
        return [f"buffer_load_dwordx4 v[{MG}:{MG+3}], v184, {WS}, 0 offen sc1",
                f"buffer_load_dwordx4 v[{MG+4}:{MG+7}], v184, {WS}, 0 offen offset:{448*8} sc1",
                f"buffer_load_dwordx4 v[{MG+8}:{MG+11}], v185, {WS}, 0 offen sc1",
                f"buffer_load_dwordx4 v[{MG-4}:{MG-1}], v187, {WS}, 0 offen sc1"]

    V_XV = 120
    def make_z(self, after=()):
        a = self.a
        tags = [self.V_XG + 2*i + 1 for i in range(8)]
        self.poll(self.handoff1_loads(), tags, 60, list(range(64, 74)), issued=True, masked=True)
        self.stamp("h1")
        for x in after: a(x)
        MS = 64; H = 80
        for i in range(4):
            g = self.V_SG + 2*i
            a(f"v_and_b32 v{MS+2*i+1}, 0xffff0000, v{g}\nv_lshlrev_b32 v{MS+2*i}, 16, v{g}\nv_rcp_f32 v{MS+2*i+1}, v{MS+2*i+1}")
        for i in range(4):
            g = self.V_XG + 2*i
            a(f"v_lshlrev_b32 v{H+2*i}, 16, v{g}\nv_and_b32 v{H+2*i+1}, 0xffff0000, v{g}")
        for i in range(8): a(f"v_sub_f32 v{H+i}, v{H+i}, v{MS+2*(i//2)}")
        for i in range(8): a(f"v_mul_f32 v{H+i}, v{H+i}, v{MS+2*(i//2)+1}")
        a(f"v_lshlrev_b32 v61, 2, v0\nv_add_u32 v61, {L_H}, v61\nv_lshlrev_b32 v62, 3, v0\nv_add_u32 v62, {L_XS}, v62")
        for k in range(2):
            for ch in range(2):
                o = 64 + 2*k + ch; b = H + 4*k + ch
                a(f"v_cvt_pk_bf16_f32 v{o}, v{b}, v{b+2}")
                a(f"ds_write_b32 v61, v{o} offset:{ch*HP + 480 + 2048*k}")
        for k in range(2):
            g = self.V_XG + 4*k
            a(f"v_mov_b32 v{g+1}, v{g+2}\nds_write_b64 v62, v[{g}:{g+1}] offset:{4096*k}")
    def x_fetch(self):
        a = self.a; XV = self.V_XV; g = self.V_XG
        a(f"v_lshlrev_b32 v11, 4, v186\nv_add_u32 v11, {L_XS}, v11")
        for r in range(2): a(f"ds_read_b128 v[{g+4*r}:{g+4*r+3}], v11 offset:{4096*r}")
        for i in range(8):
            a(f"v_lshlrev_b32 v{XV+2*i}, 16, v{g+i}\nv_and_b32 v{XV+2*i+1}, 0xffff0000, v{g+i}")

    def cum_k(self):
        a = self.a
        OW = 108; S = 48; CU = 64; T = 80; P = 44
        a(f"""v_lshlrev_b32 v10, 3, v1
v_sub_u32 v10, {L_C + 2*(2044 - 1792)}, v10
s_lshl_b32 s12, s{S_W3}, 9
v_subrev_u32 v11, s12, v10""")
        for r in range(2):
            for ch in range(2):
                a(f"ds_read_b64 v[{OW+4*r+2*ch}:{OW+4*r+2*ch+1}], v11 offset:{ch*4*CP + 512*(7-4*r)}")
        for k in range(4):
            o = OW + 2*k; c = CU + 4*k
            a(f"""v_and_b32 v{c}, 0xffff0000, v{o+1}
v_lshlrev_b32 v{c+1}, 16, v{o+1}
v_and_b32 v{c+2}, 0xffff0000, v{o}
v_lshlrev_b32 v{c+3}, 16, v{o}
v_add_f32 v{c+1}, v{c}, v{c+1}
v_add_f32 v{c+2}, v{c+1}, v{c+2}
v_add_f32 v{c+3}, v{c+2}, v{c+3}
v_mov_b32 v{S+k}, v{c+3}""")
        for mod in [f"row_shr:{sh} row_mask:0xf bank_mask:0xf bound_ctrl:0" for sh in (1, 2, 4, 8)] + \
                   ["row_bcast:15 row_mask:0xa bank_mask:0xf", "row_bcast:31 row_mask:0xc bank_mask:0xf"]:
            for k in range(4): a(f"v_add_f32_dpp v{S+k}, v{S+k}, v{S+k} {mod}")
        rest, a.inj = a.inj, []
        a(f"""s_lshl_b32 s12, s{S_W3}, 4
v_mov_b32 v11, {L_CT}
v_add_u32 v10, s12, v11
s_mov_b32 exec_lo, 0
s_mov_b32 exec_hi, 0x80000000
ds_write_b128 v10, v[{S}:{S+3}]
s_mov_b64 exec, -1""")
        self.cnt_add(1, 60)
        self.stamp("mid0")
        if not self.o["modfirst"]:
            for x in rest: a(x)
            rest = []
        if self.o["wdfs"] == 1: self.wdf_stores()
        for x in self.mod_loads(): a(x)
        self.tok_mod = a.mark()
        self.cnt_wait(1, 4, 60)
        a.inject(rest, self.o["w13rate2"])
        for w in range(4): a(f"ds_read_b128 v[{T+4*w}:{T+4*w+3}], v11 offset:{16*w}")
        for q in range(3):
            a(f"s_cmp_gt_u32 s{S_W3}, {q}\ns_cselect_b32 s{13+q}, 1.0, 0")
        for k in range(4): a(f"v_sub_f32 v{S+k}, v{S+k}, v{CU+4*k+3}")
        for w in range(3):
            for k in range(4): a(f"v_fmac_f32 v{S+k}, s{13+w}, v{T+4*w+k}")
        for w in range(4):
            for ch in range(2): a(f"v_add_f32 v{S+2+ch}, v{S+2+ch}, v{T+4*w+ch}")
        for k in range(4):
            for e in range(4): a(f"v_add_f32 v{CU+4*k+e}, v{S+k}, v{CU+4*k+e}")

    def conv_pre(self):
        a = self.a
        a(f"""s_lshr_b32 s12, s{S_W3}, 1
s_and_b32 s14, s{S_W3}, 1
s_lshl_b32 s15, s14, 8
s_mul_i32 s13, s12, {4*CP}
s_add_u32 s13, s13, s15
s_add_u32 s13, s13, {L_C + 2*(1804 - 1792)}
v_and_b32 v2, 3, v1
v_sub_u32 v2, 3, v2
v_mul_u32_u24 v2, {CP}, v2
v_lshrrev_b32 v3, 4, v1
v_bfe_u32 v4, v1, 2, 2
v_lshlrev_b32 v5, 1, v3
v_sub_u32 v4, v5, v4
v_lshlrev_b32 v4, 3, v4
v_add3_u32 v10, v2, v4, s13
s_mul_i32 s13, s12, {HP}
s_add_u32 s13, s13, s15
s_add_u32 s13, s13, {L_H}
v_and_b32 v2, 15, v1
v_lshlrev_b32 v4, 5, v2
v_lshl_add_u32 v4, v3, 4, v4
v_add_u32 v11, s13, v4
v_bfe_u32 v4, v1, 1, 2
v_xor_b32 v4, v4, v3
v_lshl_add_u32 v4, v2, 2, v4
v_lshlrev_b32 v4, 4, v4
s_mul_i32 s13, s{S_W3}, {SI}
s_add_u32 s13, s13, {L_Y}
v_add_u32 v12, s13, v4""")
    def conv_main(self):
        a = self.a
        ACC = 16; F = 64
        def fa(s, j): return F + 64 * (s % 2) + 4 * j
        def fb(s, p): return F + 64 * (s % 2) + 32 + 4 * p
        def reads(s):
            out = []
            for k in range(8):
                out.append(f"ds_read_b64 v[{fa(s,k)}:{fa(s,k)+1}], v10 offset:{512*(7-k) + 64*s}")
                out.append(f"ds_read_b64 v[{fa(s,k)+2}:{fa(s,k)+3}], v10 offset:{512*(7-k) + 64*s + 8}")
                out.append(f"ds_read_b128 v[{fb(s,k)}:{fb(s,k)+3}], v11 offset:{512*k + 64*s}")
            return out
        for x in reads(0): a(x)
        for s in range(4):
            if s < 3: trip = sorted([(max(j, Q - j), Q, j) for Q in range(8) for j in range(Q + 1)])
            else: trip = [(0, Q, j) for Q in range(8) for j in range(Q + 1)]
            seen = set(); mf = []
            for _, Q, j in trip:
                d = f"v[{ACC+4*Q}:{ACC+4*Q+3}]"
                c = "0" if (s == 0 and Q not in seen) else d
                seen.add(Q)
                mf.append(f"v_mfma_f32_16x16x32_bf16 {d}, v[{fa(s,j)}:{fa(s,j)+3}], v[{fb(s,Q-j)}:{fb(s,Q-j)+3}], {c}")
            if s < 3:
                seq = merge(mf, reads(s + 1))
            else:
                seq = []; k = 0
                wr = lambda Q: f"ds_write_b128 v12, v[{ACC+4*Q}:{ACC+4*Q+3}] offset:{1024*Q}"
                at = {12: 0, 15: 1, 18: 2, 21: 3, 24: 4, 29: 5}
                for i, x in enumerate(mf):
                    seq.append(x)
                    if i in at: seq.append(wr(at[i]))
                seq += [wr(6), wr(7)]
            for x in seq: a(x)

    def conv_epilogue_pre(self):
        a = self.a; MG = self.V_MG; XV = self.V_XV; CU = 64
        a(f"""v_bfe_u32 v2, v1, 3, 2
v_xor_b32 v2, v2, v186
v_lshlrev_b32 v2, 4, v2
v_add_u32 v2, {L_Y}, v2
v_add_u32 v4, {2*SI}, v2
s_mul_i32 s12, s{S_W3}, {224*1024}
s_lshl_b32 s13, s{S_PAIR}, 10
s_add_u32 s12, s12, s13
s_add_u32 s70, s12, {X2}
s_add_u32 s71, s70, {4*224*1024}
v_lshlrev_b32 v3, 4, v1
v_add_u32 v5, {XSC - X2}, v3
s_lshl_b32 s12, s{S_W3}, 8
s_add_u32 s12, s12, s{S_PAIR}
s_lshl_b32 s12, s12, 7
s_add_u32 s72, s12, {FLG2}""")
        a.flush_inject()
        self.stamp("mid2")
        self.poll(self.mod_loads(), [MG + 2*i + 1 for i in range(-2, 6)], 60, [61, 62, 63, 59], issued=True, sleep=2)
        for ch in range(2):
            a(f"v_mul_f32 v{MG+2*ch}, v{MG+8+2*ch}, v{MG+2*ch}\nv_mul_f32 v{MG+4+2*ch}, v{MG+8+2*ch}, v{MG+4+2*ch}")
        for r in range(2):
            for ch in range(2):
                for e in range(4):
                    a(f"v_fmac_f32 v{XV+2*(4*r+e)+ch}, v{MG+2*ch}, v{CU+8*r+4*ch+e}")
    def conv_epilogue(self):
        a = self.a; AL = self.V_MG + 4; SC = self.V_MG - 4; XV = self.V_XV; Y = 64
        for r in range(2):
            for ch in range(2):
                for kh in range(2):
                    b = Y + 16*r + 8*ch + 4*kh
                    a(f"ds_read_b128 v[{b}:{b+3}], v{2+2*ch} offset:{SI*kh + 4096*r}")
        for r in range(2):
            for ch in range(2):
                for e in range(4):
                    b = Y + 16*r + 8*ch + e; x = XV + 2*(4*r+e) + ch
                    a(f"v_add_f32 v{b}, v{b}, v{b+4}\nv_fmac_f32 v{x}, v{AL+2*ch}, v{b}\nv_mul_f32 v{b}, v{SC+2*ch}, v{x}")
            for e in range(4):
                a(f"v_cvt_pk_bf16_f32 v{104+4*r+e}, v{Y+16*r+e}, v{Y+16*r+8+e}")
            a(f"buffer_store_dwordx4 v[{104+4*r}:{107+4*r}], v5, {WS}, s{70+r} offen sc1")
        for r in range(2):
            for e in range(4):
                i = 4*r + e
                a(f"v_cvt_pk_bf16_f32 v{96+i}, v{XV+2*i}, v{XV+2*i+1}")
            a(f"buffer_store_dwordx4 v[{96+4*r}:{99+4*r}], v3, {WS}, s{70+r} offen sc1")
    def counters_clear(self):
        if self.o["b2"] != "atomic": return
        a = self.a
        sk = self.lab("cc")
        a(f"""s_lshl_b32 s13, s2, 3
s_add_u32 s13, s13, s{S_WAVE}
s_cmp_lg_u32 s13, 4
s_cbranch_scc1 {sk}
v_lshlrev_b32 v9, 8, v1
v_add_u32 v9, {FLG2}, v9
buffer_store_dword v7, v9, {WS}, 0 offen sc1""")
        a.wait(vm=0)
        a.label(sk)
    def arrive2(self):
        a = self.a
        if self.o["b2"] != "atomic":
            self.flag_store(72); return
        a(f"""s_lshl_b32 s72, s{S_W3}, 3
s_add_u32 s72, s72, s{S_XCD}
s_lshl_b32 s72, s72, 8
s_add_u32 s72, s72, {FLG2}
v_mov_b32 v8, 1
v_mov_b32 v7, 0
s_mov_b64 exec, 1
buffer_atomic_add v8, v7, {WS}, s72 offen sc1
s_mov_b64 exec, -1""")
    def flag_store(self, sreg):
        self.a(f"s_atomic_swap s{S_NONCE}, s[{P_WS}:{P_WS+1}], s{sreg}")

    def w13_addr(self):
        a = self.a
        a(f"s_bitcmp1_b32 s{S_W3}, 0")
        self.srd_sel(R_A, P_WU, P_WG, 448 * 3584)
        a(f"""v_lshrrev_b32 v249, 2, v1
v_mul_u32_u24 v249, 3584, v249
s_and_b32 s13, s{S_W3}, 1
s_lshl_b32 s13, s13, 1
v_and_b32 v250, 3, v1
v_xor_b32 v250, s13, v250
v_lshl_add_u32 v249, v250, 4, v249
s_lshl_b32 s13, s{S_FC}, 7
s_and_b32 s14, s{S_W3}, 2
s_lshl_b32 s14, s14, 5
s_add_u32 s13, s13, s14
v_add_u32 v249, s13, v249
s_and_b32 s74, s{S_SLOT}, {28 if self.o["krot"] else 0}
s_mul_i32 s75, s{S_W3}, {SI}""")
    def w13_dma(self, n0, n, rot):
        first = f"s_and_b32 s73, s{S_SLOT}, 3\ns_mul_i32 s73, s73, {rot}\ns_add_u32 s73, s73, {n0}\n"
        L = []
        for j in range(n):
            x = f"""s_add_u32 s68, s73, s74
s_sub_u32 s69, s68, 28
s_min_u32 s68, s68, s69
s_mul_i32 s68, s68, {16*3584}
s_lshl_b32 s69, s73, 10
s_add_u32 m0, s69, s75
s_add_u32 s73, s73, 1
buffer_load_dwordx4 v249, {RA}, s68 offen lds
s_cmp_eq_u32 s73, {n0 + n}
s_cselect_b32 s73, {n0}, s73"""
            L.append((first if j == 0 else "") + x)
        return L

    def vec_loads(self):
        return [f"buffer_load_dwordx4 v[{64+4*v}:{67+4*v}], v62, {WS}, 0 offen offset:{3584*v} sc1" for v in range(2)]
    def vec_issue(self):
        a = self.a
        a(f"""v_min_u32 v63, 223, v0
v_lshlrev_b32 v62, 4, v63
v_add_u32 v62, {MODG + 3*448*8}, v62""")
        for x in self.vec_loads(): a(x)
    def vec_store(self):
        a = self.a
        self.poll(self.vec_loads(), [65, 67, 69, 71], 60, [72, 73], issued=True, sleep=2)
        a(f"""s_lshl_b32 s12, s74, 3
v_subrev_u32 v63, s12, v63
v_add_u32 v61, 224, v63
v_min_u32 v63, v63, v61
v_lshlrev_b32 v63, 2, v63
v_add_u32 v63, {L_V}, v63
s_mov_b32 s13, 0x07060302
v_perm_b32 v64, v66, v64, s13
v_perm_b32 v68, v70, v68, s13
ds_write_b32 v63, v68
ds_write_b32 v63, v64 offset:1088""")
    def fold_consts(self):
        a = self.a
        a(f"""v_lshrrev_b32 v16, 4, v1
v_bfe_u32 v17, v1, 2, 2
v_lshl_add_u32 v17, v16, 3, v17
v_lshlrev_b32 v17, 6, v17
v_and_b32 v18, 3, v1
v_lshl_add_u32 v17, v18, 3, v17
s_and_b32 s12, s{S_W3}, 2
s_mul_i32 s12, s12, {SI}
s_and_b32 s13, s{S_W3}, 1
s_lshl_b32 s13, s13, 5
s_add_u32 s12, s12, s13
v_add_u32 v17, s12, v17
v_xor_b32 v18, 32, v17
v_and_b32 v20, 1, v1
v_mul_u32_u24 v19, 1088, v20
v_lshl_add_u32 v19, v16, 4, v19
v_add_u32 v19, {L_V}, v19""")
        F = 80
        def rd(s):
            b = F + 12 * (s % 3)
            return [f"ds_read_b128 v[{b}:{b+3}], v19 offset:{64*s}"] + \
                   [f"ds_read_b64_tr_b16 v[{b+4+4*M+2*h}:{b+5+4*M+2*h}], v{17+M} offset:{SI*M + 2048*s + 256*h}" for M in range(2) for h in range(2)]
        for x in rd(0) + rd(1): a(x)
        for s in range(14):
            b = F + 12 * (s % 3)
            if s + 2 < 14:
                for x in rd(s + 2): a(x)
            for M in range(2):
                d = f"v[{24+4*M}:{27+4*M}]"
                a(f"v_mfma_f32_16x16x32_bf16 {d}, v[{b+4+4*M}:{b+7+4*M}], v[{b}:{b+3}], {'0' if s == 0 else d}")
        a(f"""v_lshlrev_b32 v21, 5, v16
v_lshl_add_u32 v21, v20, 2, v21
s_lshl_b32 s12, s{S_W3}, 8
s_add_u32 s12, s12, {L_AUG}
v_add_u32 v21, s12, v21""")
        for k in range(8):
            self.bf16r(32 + k, 24 + k)
        for k in range(8):
            a(f"v_sub_f32 v{24+k}, v{24+k}, v{32+k}\nv_cvt_pk_bf16_f32 v{24+k}, v{32+k}, v{24+k}")
        for k in range(0, 8, 2):
            o = 32*(k // 4) + 2*(k % 4)
            a(f"ds_write2_b32 v21, v{24+k}, v{25+k} offset0:{o} offset1:{o + 2}")
        a.wait(lgkm=0)

    def barrier2(self, base=FLG2, pollers=0, sleep=None):
        a = self.a
        sk = self.lab("nopoll")
        a(f"s_cmp_ge_u32 s{S_WAVE}, 4\ns_cbranch_scc{1 - pollers} {sk}")
        st = a.state()
        a(f"""s_and_b32 s12, s{S_RB}, 3
s_lshl_b32 s12, s12, 15
s_add_u32 s12, s12, {base}
v_and_b32 v62, 255, v0
v_min_u32 v62, 223, v62
v_lshl_add_u32 v62, v62, 7, s12
s_mov_b64 vcc, -1""")
        self.poll([f"buffer_load_dword v63, v62, {WS}, 0 offen sc1"], [63], 60, [], masked=True, sleep=self.o["b2sleep"] if sleep is None else sleep)
        a.label(sk); a.set_state(st); a.win = []
        a("s_barrier")

    def ffn_addr(self):
        a = self.a
        a(f"""v_and_b32 v2, 31, v1
v_lshrrev_b32 v3, 5, v1
; x2 fragments
v_lshlrev_b32 v4, 2, v2
v_lshl_add_u32 v4, v3, 12, v4
s_mul_i32 s12, s{S_RB}, {224*1024}
s_lshl_b32 s13, s{S_WAVE}, 7
s_add_u32 s12, s12, s13
s_and_b32 s38, s{S_SLOT}, {28 if self.o["krot"] else 0}
s_lshl_b32 s13, s38, 13
s_add_u32 s12, s12, s13
s_add_u32 s12, s12, {XSC}
v_add_u32 v4, s12, v4
v_bfe_u32 v6, v1, 4, 1
v_bfe_u32 v8, v1, 2, 2
v_lshl_add_u32 v10, v3, 3, v8
v_lshlrev_b32 v10, 6, v10
v_mul_u32_u24 v9, {SI + 32}, v6
v_and_b32 v8, 3, v1
v_lshl_add_u32 v10, v8, 3, v10
v_add_u32 v10, v10, v9
; folding constants, row statistics, activation stores and flags
v_lshlrev_b32 v8, 3, v2
v_add_u32 v8, {L_AUG}, v8
s_lshl_b32 s12, s{S_RB}, 3
s_add_u32 s12, s12, s{S_WAVE}
s_lshl_b32 s13, s12, 8
s_add_u32 s13, s13, {STAT2}
v_lshl_add_u32 v9, v2, 3, s13
s_mul_i32 s13, s12, 28
s_add_u32 s13, s13, s{S_FC}
s_lshl_b32 s72, s13, 12
s_add_u32 s72, s72, {ACT}
s_lshl_b32 s12, s{S_RB}, 2
s_add_u32 s12, s12, s{S_W3}
s_lshl_b32 s12, s12, 2
s_lshr_b32 s13, s{S_XCD}, 1
s_add_u32 s12, s12, s13
s_lshl_b32 s73, s12, 7
s_and_b32 s13, s{S_SLOT}, 28
s_add_u32 s73, s73, s13
s_lshr_b32 s13, s{S_WAVE}, 2
s_mul_i32 s13, s13, {2*F3P}
s_add_u32 s73, s73, s13
s_add_u32 s73, s73, {FLG3}
; second GEMM: row block = xcd id, token groups j and 4+j, column block db
s_and_b32 s64, s{S_SLOT}, 3
s_lshr_b32 s65, s{S_SLOT}, 2
s_lshl_b32 s12, s64, 1
s_add_u32 s12, s12, s65
s_sub_u32 s13, s12, 7
s_cmp_ge_u32 s12, 7
s_cselect_b32 s69, s13, s12
s_mul_i32 s70, s{S_W3}, 7
s_add_u32 s12, s70, s69
s_lshl_b32 s12, s12, 2
s_lshr_b32 s13, s{S_WAVE}, 2
s_lshl_b32 s13, s13, 1
s_xor_b32 s13, s13, 2
s_add_u32 s74, s12, s13
s_mul_i32 s12, s74, 7
s_add_u32 s12, s12, s65
s_lshl_b32 s12, s12, 11
s_add_u32 s34, s12, {WDF}
s_cmp_lt_u32 s{S_WAVE}, 4
s_cselect_b32 s13, {2*7*2048}, 0
s_sub_u32 s37, s34, s13
s_mul_i32 s35, s{S_W3}, {self.N1*2048}
s_add_u32 s35, s35, {L_F}
s_mul_i32 s36, s{S_W3}, {self.N2*2048}
v_lshlrev_b32 v15, 4, v1
v_xor_b32 v11, 32, v10
v_add_u32 v12, {2*SI}, v10
v_xor_b32 v13, 32, v12""")
    def step_inc(self, m, unit, already, vreg, sreg=None):
        if m % 2 == 0:
            inc = unit - already
            return f"v_add_u32 v{vreg}, {inc}, v{vreg}" if sreg is None else f"s_add_u32 s{sreg}, s{sreg}, {inc}"
        L = [f"s_mov_b32 s14, {3*unit - already}",
             f"s_cmp_eq_u32 s69, {6 - m//2}",
             f"s_cselect_b32 s14, {(-25*unit - already) & 0xffffffff}, s14"]
        L.append(f"v_add_u32 v{vreg}, s14, v{vreg}" if sreg is None else f"s_add_u32 s{sreg}, s{sreg}, s14")
        return "\n".join(L)
    V_WD = 80
    WU = 7 * 2048
    def wd_loads(self, m):
        L = [f"buffer_load_dwordx4 v[{self.V_WD+8*m+4*h}:{self.V_WD+8*m+4*h+3}], v15, {WS}, s34 offen offset:{1024*h} sc1" for h in range(2)]
        if m < 13: L[1] += "\n" + self.step_inc(m, self.WU, 0, None, 34)
        return L
    N1 = 5
    N2 = 7
    def wd_slot(self, m):
        return (35, 2048*m) if m < self.N1 else (36, 2048*(m - self.N1))
    def wd_dma(self, m):
        base, off = self.wd_slot(m)
        return [f"s_add_u32 m0, s{base}, {off}\nbuffer_load_dwordx4 v15, {WS}, s37 offen sc1 lds",
                f"buffer_load_dwordx4 v15, {WS}, s37 offen offset:1024 sc1 lds\n" + self.step_inc(m, self.WU, 0, None, 37)]
    def wd_lds_reads(self):
        L = ["v_add_u32 v10, s35, v15\nv_add_u32 v11, s36, v15"]
        for m in range(self.N1 + self.N2):
            base, off = self.wd_slot(m)
            for h in range(2):
                r = self.V_WD + 8*m + 4*h
                L.append(f"ds_read_b128 v[{r}:{r+3}], v{10 + base - 35} offset:{off + 1024*h}")
        return L
    def x2_loads(self, B, s):
        L = [f"buffer_load_dword v{B+4*s+e}, v4, {WS}, 0 offen offset:{1024*e} sc1" for e in range(4)]
        if s % 4 == 3 and s < 27 and self.o["krot"]:
            L[3] += f"\ns_mov_b32 s14, 8192\ns_cmp_eq_u32 s38, {27 - s}\ns_cselect_b32 s14, {(-27*8192) & 0xffffffff}, s14\nv_add_u32 v4, s14, v4"
        else: L[3] += "\nv_add_u32 v4, 8192, v4"
        return L
    def row_scale(self, tmp):
        self.a(f"""s_mov_b32 s12, 0x01000100
s_mov_b32 s13, 0x03020302
v_and_b32 v9, 0xffff0000, v6
v_perm_b32 v4, v6, v6, s12
v_rcp_f32 v{tmp}, v9
v_perm_b32 v5, v6, v6, s13
v_xor_b32 v4, 0x80008000, v4
v_cmp_gt_u32 vcc, 32, v1
v_mov_b32 v6, 0
v_mov_b32 v7, 0
v_mul_f32 v8, {f32(-LOG2E)}, v{tmp}
v_mul_f32 v9, v9, v9
v_cndmask_b32 v4, 0, v4, vcc
v_cndmask_b32 v5, 0, v5, vcc""")
    def swiglu(self, g, T, O, tile):
        L = [f"v_mul_f32 v{T+i}, v8, v{g+i}" for i in range(8)]
        for i in range(8): L += [f"v_exp_f32 v{T+i}, v{T+i}", f"v_mul_f32 v{g+i}, v{g+i}, v{g+8+i}"]
        L += [f"v_fma_f32 v{T+i}, v{T+i}, v9, v9" for i in range(8)]
        L += [f"v_rcp_f32 v{T+i}, v{T+i}" for i in range(8)]
        L += [f"v_mul_f32 v{g+i}, v{g+i}, v{T+i}" for i in range(8)]
        L += [f"v_cvt_pk_bf16_f32 v{O+i}, v{g+2*i}, v{g+2*i+1}" for i in range(4)]
        L += [f"buffer_store_dwordx4 v[{O}:{O+3}], v15, {WS}, s72 offen offset:{1024*tile} sc1"]
        return L
    def cnt_add(self, k, vt, drained=False):
        a = self.a
        a(f"""v_mov_b32 v{vt}, {L_CNT + 4*k}
v_mov_b32 v{vt+1}, 1
s_mov_b64 exec, 1
ds_add_u32 v{vt}, v{vt+1}
s_mov_b64 exec, -1""")
    def cnt_wait(self, k, n, vt, group_step=False, ge=False):
        a = self.a
        lp = self.lab("cw"); ok = self.lab("cok")
        a(f"v_mov_b32 v{vt}, {L_CNT + 4*k}\ns_mov_b32 s9, {SPIN*20}")
        if group_step: a(f"s_and_b32 s12, s{S_WAVE}, 4\nv_add_u32 v{vt}, s12, v{vt}")
        a.wait(lgkm=0)
        a.label(lp)
        a(f"""ds_read_b32 v{vt+1}, v{vt}
v_cmp_gt_u32 vcc, {n}, v{vt+1}
s_cbranch_vccz {ok}
s_sub_u32 s9, s9, 1
s_cmp_lg_u32 s9, 0
s_cbranch_scc1 {lp}""")
        a.label(ok)
    def act_flag(self, p):
        if p: self.a(f"s_add_u32 s39, s73, {F3P}")
        self.flag_store(39 if p else 73)

    G1_B = 80; G1_ACC = 16; G1_AF = 192; G1_AUG = 240
    def g1_side_loads(self):
        AUG = self.G1_AUG
        augl = [f"ds_read_b64 v[{AUG+2*t}:{AUG+2*t+1}], v8 offset:{256*t}" for t in range(4)]
        return augl, [f"buffer_load_dwordx2 v[6:7], v9, {WS}, 0 offen sc1"]
    def g1_fold(self, tiles):
        ACC = self.G1_ACC; AUG = self.G1_AUG
        for t in tiles:
            d = f"v[{ACC+16*t}:{ACC+16*t+15}]"
            self.a(f"v_mfma_f32_32x32x16_bf16 {d}, v[{AUG+2*t}:{AUG+2*t+3}], v[4:7], {d}")
    def g1_check(self, T):
        a = self.a; AUG = self.G1_AUG
        augl, stl = self.g1_side_loads()
        self.poll(stl, [7], T, [], issued=True, sleep=2)
        self.row_scale(T)
        a(f"v_mov_b32 v{AUG+8}, 0\nv_mov_b32 v{AUG+9}, 0")
    def gemm1_a(self):
        a = self.a
        B = self.G1_B; ACC = self.G1_ACC; AF = self.G1_AF; NA = 3
        def ard(s):
            b = AF + 16 * (s % NA)
            return [f"ds_read_b64_tr_b16 v[{b+4*t+2*h}:{b+4*t+2*h+1}], v{10+t} offset:{1024*s + 256*h}" for t in range(4) for h in range(2)]
        augl, stl = self.g1_side_loads()
        xl = [x for s in range(28) for x in self.x2_loads(B, s)]
        a("s_setprio 2")
        n0 = 4 * self.o["npre"]
        for x in xl[:n0]: a(x)
        xl = xl[n0:]
        for x in ard(0) + ard(1)[:4]: a(x)
        for s in range(28):
            if s == 1: self.stamp("g1s1")
            if s == self.o["bdelay"]: a("s_barrier")
            if s == self.o["stat_at"]: xl += stl
            if s == 26: xl += augl
            b = AF + 16 * (s % NA)
            nxt = (ard(s + 1)[4:] if s + 1 < 28 else []) + (ard(s + 2)[:4] if s + 2 < 28 else [])
            for t in range(4):
                d = f"v[{ACC+16*t}:{ACC+16*t+15}]"
                a(f"v_mfma_f32_32x32x16_bf16 {d}, v[{b+4*t}:{b+4*t+3}], v[{B+4*s}:{B+4*s+3}], {'0' if s == 0 else d}")
                k = self.o["xrate"]
                for x in nxt[2*t:2*t+2] + xl[:k]: a(x)
                xl = xl[k:]
        assert not xl
        self.stamp("g1p0")
        self.cnt_add(3, AF + 10)
        self.g1_check(AF)
        self.g1_fold(range(4))
        self.g2_addr()
        ep = [self.swiglu(ACC + 16*t, AF, AF + 8 + 4*t, t) for t in range(4)]
        wl = [x for m in range(14) for x in self.wd_loads(m)]
        n0 = self.o["wd0"]; n1 = self.o["wdA"]
        for x in wl[:n0]: a(x)
        if self.o["abatch"]:
            for x in merge([x for t in (2, 3, 0, 1) for x in ep[t][:-1]], wl[n0:], 0, self.o["aspan"]): a(x)
            for t in (2, 3, 0, 1): a(ep[t][-1])
            tok01 = a.mark()
        else:
            for x in merge(ep[2][:-1] + ep[3][:-1], wl[n0:n1]) + [ep[2][-1], ep[3][-1]]: a(x)
            tok23 = a.mark()
            self.stamp("g1e0")
            second = merge(ep[0][:-1] + ep[1][:-1], wl[n1:])
            cut = len(second) * self.o["f23"] // 100
            for x in second[:cut]: a(x)
            a.wait_mark(tok23)
            self.act_flag(1)
            for x in second[cut:] + [ep[0][-1], ep[1][-1]]: a(x)
            tok01 = a.mark()
        self.stamp("g1e1")
        a(f"s_setprio 0\nv_add_u32 v7, {4*112*1024}, v15")
        for m in range(self.N1): a(self.step_inc(m, self.WU, 0, None, 37))
        self.cnt_wait(3, 8, 13)
        for m in range(self.N1, self.N1 + self.N2):
            for x in self.wd_dma(m): a(x)
            if m == self.N1 + 1:
                a.wait_mark(tok01)
                self.stamp("pubAct")
                if self.o["abatch"]: self.act_flag(1)
                self.act_flag(0)
                for x in self.g2_flag_loads([0]): a(x)
        tok = a.mark()
        a.wait(lgkm=0)
        self.g2_wait([0], True)
        self.stamp("h3a")
        self.g2_issue([0])
        a.wait_mark(tok)
        self.cnt_add(3, 13)
        self.g2_sweep([0])
        self.stamp("g2s0")
        self.cnt_wait(0, 8, 13)
        self.g2_dump(0)
        self.cnt_add(4, 13)
        self.final_loads()
        self.g2_wait([1], False)
        self.stamp("h3")
        a("s_setprio 3")
        self.g2_issue([1])
        self.g2_sweep([1])
        self.stamp("g2")
    def gemm1_b(self):
        a = self.a
        B = self.G1_B; ACC = self.G1_ACC; AF = self.G1_AF; NA = 3; T = AF + 24; O = AF + 32
        def ard(g):
            p, s = divmod(g, 28); b = AF + 8 * (g % NA)
            return [f"ds_read_b64_tr_b16 v[{b+4*t+2*h}:{b+4*t+2*h+1}], v{10+2*p+t} offset:{1024*s + 256*h}" for t in range(2) for h in range(2)]
        augl, stl = self.g1_side_loads()
        self.fold_consts()
        self.g2_addr()
        a("s_barrier")
        for x in [x for s in range(28) for x in self.x2_loads(B, s)] + augl + stl: a(x)
        for m in range(self.N1):
            for x in self.wd_dma(m): a(x)
        a("s_setprio 1")
        self.stamp("g1s1")
        for x in ard(0) + ard(1): a(x)
        ep = [self.swiglu(ACC + 16*t, T, O + 4*t, t) for t in range(4)]
        for p in range(2):
            fill = ep[0][:-1] + ep[1][:-1] if p else []
            nf = len(fill); k = 0
            for s in range(28):
                g = 28*p + s; b = AF + 8 * (g % NA)
                nxt = ard(g + 2) if g + 2 < 56 else []
                for t in range(2):
                    d = f"v[{ACC+32*p+16*t}:{ACC+32*p+16*t+15}]"
                    a(f"v_mfma_f32_32x32x16_bf16 {d}, v[{b+4*t}:{b+4*t+3}], v[{B+4*s}:{B+4*s+3}], {'0' if s == 0 else d}")
                    for x in nxt[2*t:2*t+2]: a(x)
                    i = 2*s + t
                    if i >= 4:
                        tgt = min(nf, (i - 3) * nf // self.o["efill"])
                        for x in fill[k:tgt]: a(x)
                        k = tgt
                if p == 0 and s == 20: self.g1_check(T)
                if p == 1 and s == 0: self.cnt_add(3, T, drained=True)
            self.g1_fold([2*p, 2*p + 1])
        self.stamp("g1p0")
        a(ep[0][-1]); a(ep[1][-1])
        tok01 = a.mark()
        self.cnt_add(0, T)
        for x in self.g2_flag_loads([0]): a(x)
        for x in ep[2][:-1] + ep[3][:-1] + [ep[2][-1], ep[3][-1]]: a(x)
        tok23 = a.mark()
        self.stamp("g1e1")
        a(f"""v_add_u32 v7, {4*112*1024}, v15
s_cmp_eq_u32 s69, 0
s_cselect_b32 s12, 7, 0
s_sub_u32 s12, s12, 1
s_mul_i32 s12, s12, {4*self.WU}
s_add_u32 s34, s34, s12""")
        self.cnt_wait(3, 12, 13)
        a.wait_mark(tok01)
        rd = self.wd_lds_reads()
        for x in rd[:13]: a(x)
        self.act_flag(0)
        for x in rd[13:]: a(x)
        self.cnt_add(0, 13)
        self.g2_wait([0], True)
        a("s_mov_b32 s71, s75")
        P = self.o["g2preB"]
        for m in range(P): a(self.g2_bl(m, [0]))
        a.wait_mark(tok23)
        self.stamp("pubAct")
        self.act_flag(1)
        a("s_setprio 0")
        pend = [self.g2_bl(m, [0]) for m in range(P, 12)] + self.wd_loads(12) + [self.g2_bl(12, [0])] + self.wd_loads(13) + [self.g2_bl(13, [0])]
        for x in pend[:4]: a(x)
        pend = pend[4:]
        for x in self.g2_flag_loads([1]): a(x)
        ACC2 = self.G2_ACC; issued1 = 0
        for u in range(28):
            g, m = divmod(u, 14)
            o = self.V_WD + 8*m; b = self.G2_AB + 4*m
            for par in range(2):
                d = f"v[{ACC2+32*g+16*par}:{ACC2+32*g+16*par+15}]"
                a(f"v_mfma_f32_32x32x16_bf16 {d}, v[{o+4*par}:{o+4*par+3}], v[{b}:{b+3}], {'0' if m == 0 else d}")
            if pend:
                for x in pend[:2]: a(x)
                pend = pend[2:]
                if not pend:
                    a.wait(lgkm=0)
                    self.g2_wait([1], True)
                    self.stamp("h3a")
                    a("s_mov_b32 s71, s75")
            else:
                n = 0
                while issued1 < 14 and issued1 <= u and n < 2:
                    a(self.g2_bl(issued1, [1])); issued1 += 1; n += 1
            if u == 16:
                self.cnt_wait(0, 8, 13)
                self.g2_dump(0)
                self.cnt_add(4, 13)
                self.final_loads()
        assert issued1 == 14
        self.stamp("g2")

    G2_ACC = 192; G2_AB = 16; G2_NB = 14
    def g2_addr(self):
        self.a(f"""s_lshl_b32 s12, s{S_XCD}, 2
s_add_u32 s12, s12, s64
s_lshl_b32 s12, s12, 2
s_add_u32 s12, s12, s{S_W3}
s_lshl_b32 s12, s12, 7
s_add_u32 s12, s12, {FLG3}
s_lshr_b32 s13, s{S_WAVE}, 2
s_xor_b32 s13, s13, 1
s_mul_i32 s13, s13, {F3P}
s_add_u32 s32, s12, s13
s_add_u32 s33, s32, {2*F3P}
s_lshl_b32 s12, s{S_XCD}, 3
s_add_u32 s12, s12, s64
s_mul_i32 s12, s12, 112
s_add_u32 s12, s12, s74
s_lshl_b32 s12, s12, 10
s_add_u32 s75, s12, {ACT}""")
    def g2_flag_loads(self, which, at=None):
        return [f"s_load_dwordx8 s[{16+8*k}:{23+8*k}], s[{P_WS}:{P_WS+1}], s{32+k if at is None else at} glc" for k in which]
    def g2_wait(self, which, issued, at=None):
        a = self.a
        lp = self.lab("fw"); ck = self.lab("fc"); ok = self.lab("fok")
        a(f"s_mov_b32 s9, {SPIN}")
        if issued: a(f"s_branch {ck}")
        a.label(lp)
        sm = set(a.sm); a.sm = set()
        for x in self.g2_flag_loads(which, at): a(x)
        a.wait(lgkm=0)
        a.label(ck)
        regs = [16 + 8*k + i for k in which for i in range(7)]
        for r in regs: a(f"s_xor_b32 s{r}, s{r}, s{S_NONCE}")
        for r in regs[1:]: a(f"s_or_b32 s{regs[0]}, s{regs[0]}, s{r}")
        a(f"""s_cbranch_scc0 {ok}
s_sub_u32 s9, s9, 1
s_cmp_lg_u32 s9, 0
s_cbranch_scc1 {lp}""")
        a.label(ok)
    def g2_bl(self, m, gs):
        nb = self.G2_NB // len(gs)
        L = []
        for k, g in enumerate(gs):
            b = self.G2_AB + 4 * (len(gs) * (m % nb) + k)
            L.append(f"buffer_load_dwordx4 v[{b}:{b+3}], v{15 if g == 0 else 7}, {WS}, s71 offen sc1")
        if m < 13: L.append(self.step_inc(m, 1024, 0, None, 71))
        return "\n".join(L)
    def g2_issue(self, gs, pre=None):
        a = self.a
        a("s_mov_b32 s71, s75")
        for m in range(pre or self.o["g2pre"]): a(self.g2_bl(m, gs))
    def g2_sweep(self, gs, pre=None):
        a = self.a; WD = self.V_WD; ACC = self.G2_ACC
        nb = self.G2_NB // len(gs); nxt = pre or self.o["g2pre"]
        for m in range(14):
            o = WD + 8*m
            for k, g in enumerate(gs):
                b = self.G2_AB + 4 * (len(gs) * (m % nb) + k)
                for par in range(2):
                    d = f"v[{ACC+32*g+16*par}:{ACC+32*g+16*par+15}]"
                    a(f"v_mfma_f32_32x32x16_bf16 {d}, v[{o+4*par}:{o+4*par+3}], v[{b}:{b+3}], {'0' if m == 0 else d}")
            if nxt < 14: a(self.g2_bl(nxt, gs)); nxt += 1
    def g2_dump(self, g):
        a = self.a
        a(f"s_lshl_b32 s12, s{S_WAVE}, 13\ns_add_u32 s12, s12, {65536*g}\nv_add_u32 v6, s12, v15")
        for G in range(4):
            for par in range(2):
                b = self.G2_ACC + 32*g + 16*par + 4*G
                a(f"ds_write_b128 v6, v[{b}:{b+3}] offset:{G*2048 + par*1024}")
    def g2_gather(self, g, srcs, R):
        for k, src in enumerate(srcs):
            for par in range(2):
                b = R + 8*k + 4*par
                self.a(f"ds_read_b128 v[{b}:{b+3}], v{8+g} offset:{src*8192 + par*1024}")
    def g2_sum(self, R, n):
        while n > 1:
            n //= 2
            for src in range(n):
                for k in range(8): self.a(f"v_add_f32 v{R+8*src+k}, v{R+8*src+k}, v{R+8*(src+n)+k}")
    def g2_out(self, g, R, XR, GB, T):
        a = self.a
        for e in range(4):
            a(f"v_fmac_f32 v{XR+2*e}, v{GB+4*e}, v{R+e}\nv_fmac_f32 v{XR+2*e+1}, v{GB+4*e+2}, v{R+4+e}")
        for e in range(4): a(f"v_cvt_pk_bf16_f32 v{T+e}, v{XR+2*e}, v{XR+2*e+1}")
        a(f"buffer_store_dwordx4 v[{T}:{T+3}], v4, {RB}, s{72+g} offen {self.o['outsc']}")
    F_XL = 192; F_XR = 88; F_GB = 196
    def final_loads(self):
        a = self.a
        XL = self.F_XL; GB = self.F_GB
        a(f"""s_mul_i32 s12, s{S_XCD}, {224*1024}
s_lshl_b32 s13, s65, 15
s_add_u32 s12, s12, s13
s_lshl_b32 s13, s{S_W3}, 13
s_add_u32 s12, s12, s13
s_lshl_b32 s13, s64, 7
s_add_u32 s12, s12, s13
s_lshr_b32 s13, s{S_WAVE}, 2
s_lshl_b32 s13, s13, 9
s_add_u32 s12, s12, s13
s_add_u32 s12, s12, {X2}
v_lshlrev_b32 v4, 2, v2
v_lshl_add_u32 v4, v3, 12, v4
v_add_u32 v4, s12, v4
s_lshl_b32 s12, s65, 9
s_lshl_b32 s13, s{S_W3}, 7
s_add_u32 s12, s12, s13
s_add_u32 s12, s12, {MODG + 5*448*8}
v_lshl_add_u32 v5, v3, 6, s12""")
        for e in range(4):
            a(f"buffer_load_dword v{XL+e}, v4, {WS}, 0 offen offset:{1024*e} sc1")
        self.gbl = [f"buffer_load_dwordx4 v[{GB+4*e}:{GB+4*e+3}], v5, {WS}, 0 offen offset:{16*e} sc1" for e in range(4)]
        for x in self.gbl: a(x)
        self.srd(R_B, P_OUT, 2048 * 896)
        a(f"""s_lshl_b32 s12, s{S_XCD}, 3
s_add_u32 s12, s12, s64
s_mul_i32 s12, s12, {32*896}
s_lshl_b32 s13, s65, 7
s_add_u32 s12, s12, s13
s_lshl_b32 s13, s{S_W3}, 5
s_add_u32 s72, s12, s13
s_add_u32 s73, s72, {128*896}
v_mul_u32_u24 v4, 896, v2
v_lshl_add_u32 v4, v3, 4, v4
s_lshl_b32 s12, s{S_W3}, 11
v_add_u32 v8, s12, v15
s_cmp_ge_u32 s{S_WAVE}, 4
s_cselect_b32 s72, s73, s72
s_cselect_b32 s12, 65536, 0
v_add_u32 v8, s12, v8""")
    def gemm2_final(self):
        a = self.a
        XL = self.F_XL; XR = self.F_XR; GB = self.F_GB; R = 16; T = 160
        self.g2_dump(1)
        self.cnt_add(5, 13)
        self.poll(self.gbl, [GB + 2*i + 1 for i in range(8)], T, [T+1, T+2, T+3, T+4], issued=True, sleep=2)
        for i in range(4):
            a(f"v_lshlrev_b32 v{XR+2*i}, 16, v{XL+i}\nv_and_b32 v{XR+2*i+1}, 0xffff0000, v{XL+i}")
        self.cnt_wait(4, 8, 13, group_step=True)
        self.stamp("fin")
        self.g2_gather(0, range(8), R)
        self.g2_sum(R, 8)
        self.g2_out(0, R, XR, GB, T)

    L_VEC = 2 * 448 * 128
    def gemv_dma(self, srd, pitch, sbase, valid):
        a = self.a
        sk = self.lab("nodma")
        a(f"""s_cmp_ge_u32 s68, {valid}
s_cbranch_scc1 {sk}
v_mul_u32_u24 v10, {pitch}, v36
v_lshl_add_u32 v11, v38, 4, v10
v_lshl_add_u32 v10, v37, 4, v10
s_mul_i32 s12, s{S_W3}, {112*pitch}
s_add_u32 s{sbase}, s{sbase}, s12
s_mul_i32 s12, s{S_WAVE}, {112*128}""")
        for i in range(14):
            a(f"s_mov_b32 m0, s12\ns_add_u32 s12, s12, 1024")
            a(f"buffer_load_dwordx4 v{10 + i % 2}, s[{srd}:{srd+3}], s{sbase} offen lds")
            a(f"s_add_u32 s{sbase}, s{sbase}, {8*pitch}")
        a.label(sk)
    def gemv_mma(self):
        a = self.a
        def rd(s):
            b = 64 + 8*s
            return [f"ds_read_b64_tr_b16 v[{b}:{b+1}], v40 offset:{4096*s}",
                    f"ds_read_b64_tr_b16 v[{b+2}:{b+3}], v40 offset:{4096*s + 512}",
                    f"ds_read_b128 v[{b+4}:{b+7}], v41 offset:{64*s}"]
        for s in range(4):
            for x in rd(s): a(x)
        for s in range(14):
            b = 64 + 8*s
            a(f"v_mfma_f32_16x16x32_bf16 v[32:35], v[{b}:{b+3}], v[{b+4}:{b+7}], {'0' if s == 0 else 'v[32:35]'}")
            if s + 4 < 14:
                for x in rd(s + 4): a(x)
    def group_barrier(self, first_group):
        sk = self.lab("gb")
        self.a(f"s_cmp_ge_u32 s{S_WAVE}, 4\n" + ("s_cbranch_scc1" if first_group else "s_cbranch_scc0") + f" {sk}\ns_barrier")
        self.a.label(sk)

    def spare(self):
        a = self.a; LV = self.L_VEC
        self.srd(R_A, P_C, 896)
        a(f"""v_lshlrev_b32 v39, 1, v0
buffer_load_ushort v60, v39, {RA}, 0 offen
s_lshl_b32 s67, s{S_XCD}, 2
s_add_u32 s67, s67, s{S_SLOT}
s_sub_u32 s67, s67, 28
s_lshr_b32 s12, s{S_WAVE}, 2
s_lshl_b32 s12, s12, 5
s_add_u32 s68, s67, s12
""")
        self.mod_block()
        a(f"""s_lshl_b32 s69, s64, 7
; copy addresses: row = lane>>3, source chunk = (lane&7) ^ swizzle(row)
v_lshrrev_b32 v36, 3, v1
v_and_b32 v37, 2, v36
v_and_b32 v38, 7, v1
v_xor_b32 v37, v37, v38
v_xor_b32 v38, 4, v37
v_lshrrev_b32 v42, 4, v1
v_bfe_u32 v43, v1, 2, 2
v_lshl_add_u32 v40, v42, 3, v43
v_lshlrev_b32 v40, 7, v40
v_lshrrev_b32 v43, 1, v43
v_and_b32 v44, 1, v42
v_lshl_add_u32 v43, v44, 1, v43
v_xor_b32 v43, s{S_W3}, v43
v_lshl_add_u32 v40, v43, 5, v40
v_and_b32 v43, 3, v1
v_lshl_add_u32 v40, v43, 3, v40
s_lshr_b32 s12, s{S_WAVE}, 2
s_mul_i32 s12, s12, {448*128}
v_add_u32 v40, s12, v40
v_and_b32 v43, 1, v1
v_mul_u32_u24 v43, 1088, v43
v_lshl_add_u32 v41, v42, 4, v43
v_add_u32 v41, {LV}, v41
v_add_u32 v39, {LV}, v39""")
        self.srd(R_B, P_WM, 448 * 5376)
        def silu():
            a(f"""v_lshlrev_b32 v60, 16, v60
v_mul_f32 v62, {f32(-LOG2E)}, v60
v_exp_f32 v62, v62
v_add_f32 v62, 1.0, v62
v_rcp_f32 v62, v62
v_mul_f32 v60, v60, v62
v_cvt_pk_bf16_f32 v60, v60, v60
ds_write_b16 v39, v60
ds_write_b16 v39, v60 offset:1088""")
            a.wait(lgkm=0)
        sk = self.lab("spB"); sj = self.lab("spJ")
        a(f"s_cmp_ge_u32 s{S_WAVE}, 4\ns_cbranch_scc1 {sk}")
        st = a.state()
        if self.o["warm"]: a("s_barrier")
        self.gemv_dma(R_B, 5376, 69, 42)
        silu()
        a(f"s_branch {sj}")
        a.label(sk); a.set_state(st)
        a("s_setprio 2")
        self.phase_a_stats()
        self.phase_a_publish()
        a("s_setprio 0")
        a(f"v_mov_b32 v2, {LV + 2304}\nds_write_b32 v2, v59")
        self.stamp("pubA")
        if self.o["warm"]: a("s_barrier")
        silu()
        a("s_barrier")
        self.gemv_dma(R_B, 5376, 69, 42)
        a.label(sj); a.win = []
        a.wait(vm=0)
        self.stamp("chain")
        a("s_barrier")
        a(f"v_mov_b32 v4, {LV + 2304}\nds_read_b32 v8, v4\nv_readfirstlane_b32 s{S_NONCE}, v8")
        skm = self.lab("nomod")
        a(f"s_cmp_ge_u32 s68, 42\ns_cbranch_scc1 {skm}")
        self.gemv_mma()
        a(f"""s_cmp_eq_u32 s65, 1
s_cselect_b32 s12, 1.0, 0
s_cmp_eq_u32 s65, 4
s_cselect_b32 s12, 1.0, s12""")
        for e in range(4):
            self.bf16r(32 + e, 32 + e)
            a(f"v_add_f32 v{32+e}, s12, v{32+e}")
            self.bf16r(48 + 2*e, 32 + e)
            a(f"v_mov_b32 v{49+2*e}, s{S_NONCE}")
        a(f"""v_lshlrev_b32 v45, 5, v42
s_lshl_b32 s12, s64, 9
s_lshl_b32 s13, s{S_W3}, 7
s_add_u32 s12, s12, s13
s_add_u32 s12, s12, {MODG}
s_mov_b32 exec_lo, 0x00010001
s_mov_b32 exec_hi, 0x00010001
buffer_store_dwordx4 v[48:51], v45, {WS}, s12 offen sc1
buffer_store_dwordx4 v[52:55], v45, {WS}, s12 offen offset:16 sc1
s_mov_b64 exec, -1""")
        self.stamp("kgen")
        a.label(skm); a.win = []
        self.group_barrier(True)
        if self.o["spw13"]:
            assert self.o["ne"] == 12 and self.o["krot"]
            a(f"""s_sub_u32 s12, s{S_SLOT}, 25
s_add_u32 s12, s12, s{S_WAVE}
s_sub_u32 s13, s12, 7
s_min_u32 s12, s12, s13
s_mul_i32 s12, s12, {64*3584}
s_lshr_b32 s13, s{S_XCD}, 1
s_mul_i32 s13, s13, 7
s_add_u32 s13, s13, s{S_WAVE}
s_lshl_b32 s13, s13, 7
s_add_u32 s12, s12, s13
s_cmp_lt_u32 s{S_WAVE}, 7
s_cselect_b32 s12, s12, {OOB}
v_mul_u32_u24 v4, 3584, v1
v_add_u32 v4, s12, v4""")
            for k, p in enumerate((P_WG, P_WU)):
                self.srd(R_A, p, 448 * 3584)
                a(f"buffer_load_dword v{20+k}, v4, {RA}, 0 offen")
            a.wait(vm=0)
            self.stamp("conv0")
        a(f"""s_and_b32 s{S_RB}, s{S_XCD}, 1
s_lshl_b32 s{S_RB}, s{S_RB}, 2
s_lshr_b32 s12, s{S_XCD}, 1
s_add_u32 s{S_RB}, s{S_RB}, s12
s_mul_i32 s12, s{S_RB}, {224*1024}
s_mul_i32 s13, s{S_WAVE}, {28*1024}
s_add_u32 s12, s12, s13
s_sub_u32 s14, s{S_SLOT}, 28
s_lshl_b32 s13, s14, 8
s_add_u32 s12, s12, s13
s_add_u32 s12, s12, {X2}
v_lshl_add_u32 v4, v1, 2, s12
s_lshl_b32 s13, s{S_RB}, 2
s_add_u32 s13, s13, s14
s_lshl_b32 s13, s13, 9
s_add_u32 s13, s13, {STAT2}
v_lshl_add_u32 v5, v1, 3, s13
v_lshlrev_b32 v6, 3, v0
v_lshlrev_b32 v10, 3, v1
""")
        a.wait(lgkm=0)
        self.barrier2(FLG2B if self.o["split2"] else FLG2, sleep=self.o["spsleep"])
        self.stamp("h2")
        for k in range(28):
            a(f"buffer_load_dword v{64+k}, v4, {WS}, 0 offen offset:{1024*(k%4)} sc1")
            if k % 4 == 3: a("v_add_u32 v4, 4096, v4")
        a("s_mov_b32 s13, 0x3f803f80")
        for k in range(28):
            a(f"v_dot2_f32_bf16 v2, v{64+k}, s13, {'v2' if k else '0'}\nv_dot2_f32_bf16 v3, v{64+k}, v{64+k}, {'v3' if k else '0'}")
        a("ds_write_b64 v6, v[2:3]")
        self.barrier()
        sk0 = self.lab("st0")
        a(f"s_cmp_lg_u32 s{S_WAVE}, 7\ns_cbranch_scc1 {sk0}")
        for w in range(8): a(f"ds_read_b64 v[{16+2*w}:{17+2*w}], v10 offset:{512*w}")
        for n in (4, 2, 1):
            for w in range(n):
                a(f"v_add_f32 v{16+2*w}, v{16+2*w}, v{16+2*(w+n)}\nv_add_f32 v{17+2*w}, v{17+2*w}, v{17+2*(w+n)}")
        self.ln_finish(16, 17, 18)
        a(f"""v_cvt_pk_bf16_f32 v16, v16, v17
v_mov_b32 v17, s{S_NONCE}
buffer_store_dwordx2 v[16:17], v5, {WS}, 0 offen sc1""")
        self.stamp("g1s1")
        a("s_barrier\ns_branch L_fin")
        a.label(sk0); a.win = []; a.vm = []
        a(f"""s_sub_u32 s14, s{S_SLOT}, 28
s_mul_i32 s13, s14, 7
s_add_u32 s13, s13, s{S_WAVE}
s_mul_i32 s13, s13, {4*self.WU}
s_add_u32 s13, s13, {WDF}
v_min_u32 v99, 55, v1
v_lshl_add_u32 v99, v99, 7, s13
s_barrier""")
        order = [int(c) for c in self.o["spo"]]
        for i, k in enumerate(order):
            a(f"v_add_u32 v98, {56*128*k}, v99\nbuffer_load_dword v{100+i}, v98, {WS}, 0 offen sc1")
            a.wait(vm=0)

    def finish(self):
        a = self.a
        a.label("L_fin"); a.win = []
        if self.stamps and self.probe != "none":
            a.wait(vm=0)
            self.stamp("end")
            a(f"""s_lshl_b32 s12, s2, 3
s_add_u32 s12, s12, s{S_WAVE}
s_lshl_b32 s12, s12, 7
s_add_u32 s12, s12, {TS}
v_mov_b32 v2, 0
s_mov_b64 exec, 1""")
            for q in range(5):
                for i in range(4): a(f"v_mov_b32 v{4+4*q+i}, s{S_TS+4*q+i}")
                a(f"buffer_store_dwordx4 v[{4+4*q}:{7+4*q}], v2, {WS}, s12 offen offset:{16*q}")
        if self.probe:
            idx = self.stamp_names.index(self.probe) if self.probe != "none" else None
            if idx is None: a("s_mov_b32 s12, 0")
            else:
                a(f"""s_sub_u32 s12, s{S_TS+idx}, s{S_NONCE}
s_cmp_eq_u32 s{S_TS+idx}, 0
s_cselect_b32 s12, 0, s12
s_max_i32 s12, s12, 0
s_min_u32 s12, s12, 10000
s_mul_i32 s12, s12, 10""")
            a(f"s_add_u32 s12, s12, 8000\ns_mov_b32 s9, 1000000")
            a.label("L_pw")
            a(f"""s_memrealtime s[14:15]
s_sub_u32 s13, s14, s{S_NONCE}
s_sub_u32 s9, s9, 1
s_cmp_eq_u32 s9, 0
s_cbranch_scc1 L_exit
s_cmp_lt_i32 s13, s12
s_cbranch_scc1 L_pw""")
        a.label("L_exit")
        a("s_endpgm")

    def build(self):
        a = self.a
        self.prologue()
        l0 = self.lab("e0"); l1 = self.lab("e1"); l2 = self.lab("e2"); l3 = self.lab("e3")
        a(f"s_cmp_ge_u32 s{S_SLOT}, 28\ns_cbranch_scc1 {l0}")
        self.param_loads(0, 2)
        self.conv_scalars()
        a.label(l0)
        vmA = list(a.vm)
        a(f"s_cmp_lt_u32 s{S_WAVE}, 4\ns_cbranch_scc1 {l1}")
        self.phase_a_loads()
        a.label(l1)
        a(f"s_mov_b32 s{R_WS}, s{P_WS}\ns_mov_b32 s{R_WS+1}, s{P_WS+1}")
        a(f"s_cmp_ge_u32 s{S_SLOT}, 28\ns_cbranch_scc1 L_spare")
        st_spare = a.state()
        a(f"s_cmp_lt_u32 s{S_WAVE}, 4\ns_cbranch_scc1 {l3}")
        self.param_loads(2, 6)
        self.code_touch()
        a.label(l3); a.win = []
        self.handoff1_addr()
        self.gather_addr()
        a(f"s_cmp_lt_u32 s{S_WAVE}, 4\ns_cbranch_scc1 {l2}")
        stA = a.state(); stA = (vmA,) + stA[1:]
        touches = ([self.warm_wmod()] if self.o["wm"] else []) + (self.wdf_loads(R_A) if self.o["wdfs"] == 2 else [])
        if self.o["w13p"] == "pub": touches.append(self.w13_touch(R_A))
        a("s_setprio 2")
        self.phase_a_stats()
        self.phase_a_publish()
        for x in touches: a(x)
        a(f"ds_write_b32 v7, v59 offset:{L_T + 11*256}")
        self.stamp("pubA")
        a("s_branch L_grpB")
        stB = a.state()
        a.label(l2); a.set_state(stA)
        self.lds_zero()
        self.kgen_common()
        self.stamp("x0")
        self.kgen_lo()
        self.stamp("xarr")
        for x in self.gather_loads(): a(x)
        self.kgen_contract_pre()
        w13t = self.w13_touch() if self.o["w13p"] in ("con", "h1") else ""
        self.stamp("chain")
        self.barrier()
        a(f"ds_read_b32 v8, v7 offset:{L_T + 11*256}")
        hl = self.handoff1_loads(); late = self.o["h1late"]
        self.kgen_contract([] if late else hl, self.gather_unpack(), "\n".join((hl if late else []) + ([w13t] if self.o["w13p"] == "con" else [])))
        a(f"v_readfirstlane_b32 s{S_NONCE}, v8")
        self.stamp("kgen")
        self.barrier()
        self.expand(0)
        self.stamp("exp")
        self.make_z([w13t] if self.o["w13p"] == "h1" else [])
        self.conv_pre()
        self.w13_addr()
        a("s_setprio 1")
        self.barrier()
        self.stamp("conv0")
        self.conv_main()
        self.stamp("pre")
        a("s_setprio 0")
        self.barrier()
        self.stamp("conv1")
        self.cnt_wait(2, 4, 60)
        self.vec_issue()
        for x in self.w13_dma(self.o['ne'], 28 - self.o['ne'], (28 - self.o['ne']) // 4): a(x)
        self.vec_store()
        a.wait(lgkm=0)
        a("s_branch L_join")
        a.label("L_grpB"); a.set_state(stB)
        self.kgen_common()
        self.kgen_hi()
        self.kgen_hi_chain()
        for x in self.gather_loads(): a(x)
        a("s_setprio 0")
        self.stamp("chain")
        self.barrier()
        if not self.o["h1late"]:
            for x in self.handoff1_loads(): a(x)
        for x in self.gather_unpack(): a(x)
        self.w13_addr()
        self.mod_addr()
        if self.o["wdfs"] == 2: self.wdf_stores()
        else: wdfl = self.wdf_loads(R_B)
        if self.o["h1late"]:
            for x in self.handoff1_loads(): a(x)
        self.stamp("kgen")
        self.barrier()
        self.expand(1)
        self.stamp("exp")
        self.make_z()
        self.barrier()
        self.stamp("conv0")
        if self.o["wdfs"] != 2:
            for x in wdfl: a(x)
        a.inject(self.w13_dma(0, self.o['ne'], self.o['ne'] // 4), self.o["w13rate"])
        self.x_fetch()
        self.cum_k()
        self.conv_epilogue_pre()
        a.wait_mark(self.tok_mod)
        self.stamp("pre")
        self.barrier()
        self.stamp("conv1")
        a("s_setprio 1")
        self.conv_epilogue()
        a("s_setprio 0")
        self.stamp("cepi")
        self.cnt_add(2, 60)
        a("s_mov_b32 s39, s72")
        assert all(not d for d in a.vm)
        a.label("L_join"); a.win = []
        a("s_nop 1")
        self.ffn_addr()
        sk = self.lab("arr")
        a(f"s_cmp_lt_u32 s{S_WAVE}, 4\ns_cbranch_scc1 {sk}")
        if self.o["split2"]:
            a.wait(vm=2)
            self.stamp("pubX2")
            self.flag_store(39)
            a(f"s_add_u32 s40, s39, {FLG2B - FLG2}")
            a.wait(vm=0)
            self.flag_store(40)
        else:
            a.wait(vm=0)
            self.stamp("pubX2")
            self.flag_store(39)
        if self.o["b2wait"]: a.wait(lgkm=0)
        a.label(sk)
        a.wait(vm=0)
        self.barrier2(pollers=self.o["pollers"])
        self.stamp("h2")
        a(f"s_cmp_ge_u32 s{S_WAVE}, 4\ns_cbranch_scc1 L_ffnB")
        st = a.state()
        self.gemm1_a()
        assert not a.vm
        a("s_branch L_ffnJ")
        a.label("L_ffnB"); a.set_state(st)
        self.gemm1_b()
        a.label("L_ffnJ")
        self.gemm2_final()
        a("s_branch L_fin")
        a.label("L_spare"); a.set_state(st_spare)
        self.spare()
        self.finish()
        body = a.text()
        return f"""{HEADER}; @launch grid=(256,1,1) block=(512,1,1) lds={LDS_BYTES}
.amdgcn_target "amdgcn-amd-amdhsa--gfx950"
.text
.globl {KNAME}
.p2align 12
.p2align 8
.type {KNAME},@function
{KNAME}:
{body}{self.lag_table()}.section .rodata,"a"
.p2align 6
.amdhsa_kernel {KNAME}
  .amdhsa_next_free_vgpr 256
  .amdhsa_next_free_sgpr 102
  .amdhsa_accum_offset 256
  .amdhsa_group_segment_fixed_size 0
  .amdhsa_kernarg_size 144
  .amdhsa_user_sgpr_count 2
  .amdhsa_user_sgpr_kernarg_segment_ptr 1
  .amdhsa_system_sgpr_workgroup_id_x 1
.end_amdhsa_kernel
"""

if __name__ == "__main__":
    out = sys.argv[1]
    probe = sys.argv[sys.argv.index("--probe") + 1] if "--probe" in sys.argv else None
    opts = {}
    for x in sys.argv[2:]:
        if "=" in x:
            k, v = x.split("="); opts[k] = int(v) if v.lstrip("-").isdigit() and k != "spo" else v
    g = Gen(stamps="--stamps" in sys.argv or probe is not None, probe=probe, opts=opts)
    open(out, "w").write(g.build())
    if g.stamps: open(out + ".names", "w").write(repr(g.stamp_names))
    print("instructions", g.a.nins, "nop states", g.a.nops, "stamps", g.stamp_names)
```

```python
import sys, struct, math
from asmlib import *

KNAME = "adaLN_cond__ssm_conv_s4__swiglu_ffn__prompt_kernel"
HEADER = open("adaLN_cond__ssm_conv_s4__swiglu_ffn__prompt.s.ref").read().split("; Override launch")[0]

XG, STAT, MODG, FLG2, CAUG, FLG3, X2, ACT, TS = 0x0, 0x400000, 0x410000, 0x420000, 0x440000, 0x450000, 0x500000, 0x700000, 0xF00000
STAT2 = 0x408000
F3P = 32 * 4 * 128
WDF = 0x1000000
FLG2B = 0x480000
XSC = 0x1200000
WS_BYTES = 0x1400000
OOB = 0x7fff0000
S_WAVE, S_XCD, S_SLOT, S_PAIR, S_NONCE, S_W3 = 4, 5, 6, 7, 8, 3
P_U, P_ARE, P_AIM, P_BRE, P_BIM, P_CRE, P_CIM, P_LDT, P_DSK, P_BX, P_WG, P_WU, P_WD, P_C, P_WM, P_OUT, P_DBG, P_WS = range(16, 52, 2)
R_WS, R_A, R_B, R_D = 52, 56, 60, 96
S_RB, S_FC = 66, 67
S_TS = 76
SPIN = 20000
CODE_SHARE = 4
WS = f"s[{R_WS}:{R_WS+3}]"
RA = f"s[{R_A}:{R_A+3}]"
RB = f"s[{R_B}:{R_B+3}]"
RD = f"s[{R_D}:{R_D+3}]"
TP = 73 * 256
L_T = 0
HP = 4576
EP = 528
EW = 54 * EP
CP = 4160
L_E = 2 * TP
L_H = L_E + 4 * EW
L_CT = L_H + 2 * HP
SI = 448 * 64
L_C = 4 * SI
L_Y = 20 * 1024
L_XS = 3 * SI + 12 * 1024
L_V = 4 * SI + 40960
L_AUG = L_V + 2176
LDS_BYTES = 163840
L_F = 4 * SI
L_CNT = LDS_BYTES - 64
assert L_C + 8 * CP <= L_H and L_CT + 64 <= L_CNT

def f32(x): return "0x%08x" % struct.unpack("<I", struct.pack("<f", x))[0]
LOG2E = 1.4426950408889634

class Gen:
    def __init__(self, stamps=False, probe=None, opts=None):
        self.o = dict(b2="flag", b2sleep=0, hook=3, npre=6, h3sleep=2, skip='mid0,mid1,mid2,nfail,h1,cepi,ack2,xarr,pre,iss,x0,exp', bdelay=7, flag_at=8, warm=1, stat_at=23, wdrate=0, wdpre=56, wdtouch=0, spre=0, w13a=8, w13b=8, midbar=1, cyc=0, wd1='p1', wdA=14, g2pre=8, efill=44, wdfs=1, w13p='none', h1late=1, f23=100, krot=1, xtouch=0, g2preB=5, spo='45670123', xrate=2, g2d=5, wdB=0, xt=8, wm=1, w13t=0, w13rate=8, split2=1, pollers=1, b2wait=1, ne=12, spw13=0, wd0=0, abatch=0, aspan=208, outsc='sc1', bflag=5, spsleep=6, modfirst=1, w13rate2=4, w13t_at=8, aw13=0)
        self.o.update(opts or {})
        self.a = Asm(); self.stamps = stamps; self.uid = 0; self.probe = probe
        self.stamp_names = []
    def lab(self, n):
        self.uid += 1
        return f"L_{n}_{self.uid}"
    def srd(self, r, p, nbytes):
        self.a(f"s_mov_b32 s{r}, s{p}\ns_mov_b32 s{r+1}, s{p+1}\ns_mov_b32 s{r+2}, {nbytes}\ns_mov_b32 s{r+3}, 0x00020000")
    def srd_sel(self, r, p1, p0, nbytes):
        self.a(f"s_cselect_b32 s{r}, s{p1}, s{p0}\ns_cselect_b32 s{r+1}, s{p1+1}, s{p0+1}\ns_mov_b32 s{r+2}, {nbytes}\ns_mov_b32 s{r+3}, 0x00020000")
    def stamp(self, name):
        if not self.stamps: return
        if name in self.o["skip"].split(","): return
        if self.o.get("only") and name not in self.o["only"].split(","): return
        a = self.a
        if name not in self.stamp_names: self.stamp_names.append(name)
        idx = self.stamp_names.index(name)
        assert idx < 20, self.stamp_names
        a.wait(lgkm=0)
        a("s_memtime s[14:15]" if self.o["cyc"] else "s_memrealtime s[14:15]")
        a(f"s_mov_b32 s{S_TS + idx}, s14")
    def barrier(self):
        self.a.wait(lgkm=0)
        self.a("s_barrier")
    def poll(self, loads, tags, dst, tmp, issued=False, masked=False, sleep=0):
        a = self.a
        ok = self.lab("ok"); lp = self.lab("spin"); out = self.lab("out")
        if issued:
            self.tagcheck(dst, tags, tmp)
            a(f"v_cmp_ne_u32 vcc, 0, v{dst}\ns_cbranch_vccz {ok}")
        st = a.state()
        a(f"s_mov_b32 s9, {SPIN}")
        a.label(lp)
        if masked: a("s_mov_b64 exec, vcc")
        for x in loads: a(x)
        self.tagcheck(dst, tags, tmp)
        a(f"v_cmp_ne_u32 vcc, 0, v{dst}\ns_cbranch_vccz {out}")
        if sleep: a(f"s_sleep {sleep}")
        a(f"s_sub_u32 s9, s9, 1\ns_cmp_lg_u32 s9, 0\ns_cbranch_scc1 {lp}")
        a.label(out)
        if masked: a("s_mov_b64 exec, -1")
        a.label(ok)
        if issued: a.set_state(st)
    def tagcheck(self, dst, tags, tmp):
        a = self.a; parts = []
        n = (len(tags) + 1) // 2
        for i in range(0, len(tags) - 1, 2):
            o = dst if n == 1 else tmp[i//2]
            a(f"v_bitop3_b32 v{o}, v{tags[i]}, v{tags[i+1]}, s{S_NONCE} bitop3:0x7e"); parts.append(o)
        if len(tags) % 2:
            o = dst if n == 1 else tmp[len(tags)//2]
            a(f"v_xor_b32 v{o}, s{S_NONCE}, v{tags[-1]}"); parts.append(o)
        while len(parts) > 1:
            if len(parts) >= 3:
                o = dst if len(parts) == 3 else parts[0]
                a(f"v_or3_b32 v{o}, v{parts[0]}, v{parts[1]}, v{parts[2]}"); parts = parts[3:] + [o]
            else:
                a(f"v_or_b32 v{dst}, v{parts[0]}, v{parts[1]}"); parts = [dst]
    def bf16r(self, d, s):
        self.a(f"v_cvt_pk_bf16_f32 v{d}, v{s}, v{s}\nv_and_b32 v{d}, 0xffff0000, v{d}")

    def prologue(self):
        a = self.a
        a(f"""s_cmp_ge_u32 s2, 256
s_cbranch_scc1 L_exit
s_load_dwordx4 s[48:51], s[0:1], 128
s_load_dwordx16 s[16:31], s[0:1], 0
s_load_dwordx16 s[32:47], s[0:1], 64
s_memrealtime s[10:11]
v_lshrrev_b32 v2, 6, v0
v_and_b32 v1, 63, v0
v_readfirstlane_b32 s{S_WAVE}, v2
s_and_b32 s{S_XCD}, s2, 7
s_lshr_b32 s{S_SLOT}, s2, 3
s_mul_i32 s{S_PAIR}, s{S_XCD}, 28
s_add_u32 s{S_PAIR}, s{S_PAIR}, s{S_SLOT}
s_and_b32 s{S_W3}, s{S_WAVE}, 3
v_and_b32 v186, 255, v0
; row-statistics address: lanes 0-27 row 2w, lanes 32-59 row 2w+1
v_and_b32 v3, 31, v0
v_lshrrev_b32 v4, 5, v186
v_mul_u32_u24 v8, 896, v4
v_lshl_add_u32 v8, v3, 4, v8
v_mov_b32 v6, {OOB}
v_cmp_gt_u32 vcc, 28, v3
s_mul_i32 s12, s2, {8*896}
v_cndmask_b32 v8, v6, v8, vcc
v_and_b32 v5, 3, v0
v_mul_u32_u24 v9, 1792, v5
v_and_b32 v2, 0xfc, v0
v_add3_u32 v9, v9, v2, s12
v_mov_b32 v7, 0
s_lshl_b32 s13, s{S_PAIR}, 10
v_lshl_add_u32 v10, v186, 2, s13
s_mov_b32 s{R_A+2}, {2048*896}
s_mov_b32 s{R_A+3}, 0x00020000
s_mov_b32 s{R_WS+2}, {WS_BYTES}
s_mov_b32 s{R_WS+3}, 0x00020000
; publish addresses
v_lshlrev_b32 v5, 4, v5
v_lshl_add_u32 v5, v2, 5, v5
v_cmp_gt_u32 vcc, 128, v186
v_add_u32 v56, 0x4000, v5
v_add_u32 v57, 0x6000, v5
v_cndmask_b32 v57, v6, v57, vcc
v_add_u32 v6, 0x2000, v5
v_lshlrev_b32 v4, 3, v4
s_lshr_b32 s70, s2, 1
s_mul_i32 s70, s70, 28672
s_and_b32 s13, s2, 1
s_lshl_b32 s13, s13, 6
s_add_u32 s70, s70, s13
s_lshl_b32 s71, s2, 6
s_add_u32 s71, s71, {STAT}
s_and_b32 s{S_RB}, s{S_XCD}, 1
s_lshl_b32 s{S_RB}, s{S_RB}, 2
s_and_b32 s13, s{S_SLOT}, 3
s_add_u32 s{S_RB}, s{S_RB}, s13
s_lshr_b32 s{S_FC}, s{S_XCD}, 1
s_mul_i32 s{S_FC}, s{S_FC}, 7
s_lshr_b32 s13, s{S_SLOT}, 2
s_add_u32 s{S_FC}, s{S_FC}, s13
s_lshl_b32 s72, s{S_PAIR}, 2
s_or_b32 s13, s2, s{S_WAVE}
""")
        assert XG == 0
        self.zero_stamps()
        a.wait(lgkm=0)
        if self.stamps:
            self.stamp_names = ["start"]
            a(f"s_mov_b32 s{S_TS}, s10")
        nn = self.lab("nononce")
        a(f"""s_cmp_lg_u32 s13, 0
s_cbranch_scc1 {nn}
s_or_b32 s11, s10, 1
s_atomic_swap s11, s[{P_DBG}:{P_DBG+1}], 0
s_atomic_swap s11, s[{P_DBG}:{P_DBG+1}], 128""")
        a.label(nn)

    def phase_a_loads(self):
        a = self.a
        a(f"s_mov_b32 s{R_A}, s{P_U}\ns_mov_b32 s{R_A+1}, s{P_U+1}")
        a(f"buffer_load_dwordx4 v[12:15], v8, {RA}, s12 offen")
        a(f"buffer_load_dwordx4 v[16:19], v8, {RA}, s12 offen offset:448")
        for k in range(4):
            a(f"buffer_load_dword v{20+4*k}, v9, {RA}, 0 offen offset:{256*k}")
            a(f"buffer_load_dword v{22+4*k}, v9, {RA}, 0 offen offset:{256*k+896}")
    def nonce_sample(self):
        self.a(f"s_load_dword s{S_NONCE}, s[{P_DBG}:{P_DBG+1}], 0")
    def get_nonce(self):
        a = self.a
        ok = self.lab("nonce_ok"); lp = self.lab("nonce_poll")
        a(f"s_cmp_lg_u32 s{S_NONCE}, 0")
        st = a.state()
        a(f"s_cbranch_scc1 {ok}\ns_mov_b32 s9, {SPIN}")
        self.stamp("nfail")
        self.srd(R_D, P_DBG, 256)
        a.label(lp)
        a(f"""buffer_load_dword v8, v7, {RD}, 0 offen offset:128 sc1
v_readfirstlane_b32 s{S_NONCE}, v8
s_sub_u32 s9, s9, 1
s_cmp_eq_u32 s9, 0
s_cbranch_scc1 {ok}
s_cmp_eq_u32 s{S_NONCE}, 0
s_cbranch_scc1 {lp}""")
        a.label(ok)
        a.set_state(st); a.win = []
        a("s_nop 1")

    def phase_a_stats(self):
        a = self.a
        a("s_mov_b32 s13, 0x3f803f80")
        a(f"v_dot2_f32_bf16 v58, v12, s13, 0\nv_dot2_f32_bf16 v59, v12, v12, 0")
        self.stamp("x0")
        for r in range(13, 20):
            a(f"v_dot2_f32_bf16 v58, v{r}, s13, v58\nv_dot2_f32_bf16 v59, v{r}, v{r}, v59")
        for sh in (1, 2, 4, 8):
            a(f"v_add_f32_dpp v58, v58, v58 row_shr:{sh} row_mask:0xf bank_mask:0xf bound_ctrl:0")
            a(f"v_add_f32_dpp v59, v59, v59 row_shr:{sh} row_mask:0xf bank_mask:0xf bound_ctrl:0")
        a("v_add_f32_dpp v58, v58, v58 row_bcast:15 row_mask:0xa bank_mask:0xf")
        a("v_add_f32_dpp v59, v59, v59 row_bcast:15 row_mask:0xa bank_mask:0xf")
        a.wait(lgkm=0)
        self.nonce_sample()
        self.ln_finish(58, 59, 14)
        a("v_cvt_pk_bf16_f32 v58, v58, v59")
    def phase_a_publish(self):
        a = self.a
        self.get_nonce()
        for k, ad in enumerate((5, 6, 56, 57)):
            a(f"v_mov_b32 v{21+4*k}, s{S_NONCE}\nv_mov_b32 v{23+4*k}, s{S_NONCE}")
            a(f"buffer_store_dwordx4 v[{20+4*k}:{23+4*k}], v{ad}, {WS}, s70 offen sc1")
        a(f"""v_mov_b32 v59, s{S_NONCE}
s_mov_b32 exec_lo, 0x80000000
s_mov_b32 exec_hi, 0x80000000
buffer_store_dwordx2 v[58:59], v4, {WS}, s71 offen sc1
s_mov_b64 exec, -1""")

    def ln_finish(self, vs, vq, t):
        a = self.a
        a(f"""v_mul_f32 v{vs}, {f32(1/448)}, v{vs}
v_mul_f32 v{vq}, {f32(1/448)}, v{vq}
v_fma_f32 v{vq}, -v{vs}, v{vs}, v{vq}
v_max_f32 v{vq}, 0, v{vq}""")
        self.bf16r(vq, vq)
        a(f"v_add_f32 v{vq}, {f32(1e-5)}, v{vq}")
        self.bf16r(vq, vq)
        a(f"v_sqrt_f32 v{vq}, v{vq}")

    V_PAR = 36
    V_GA = 44
    def zero_stamps(self):
        if self.stamps:
            for i in range(1, 20): self.a(f"s_mov_b32 s{S_TS+i}, 0")
    def param_loads(self, n0, n1):
        for i, p in list(enumerate((P_ARE, P_AIM, P_BRE, P_BIM, P_CRE, P_CIM)))[n0:n1]:
            self.a(f"global_load_dword v{self.V_PAR+i}, v10, s[{p}:{p+1}]")
    def conv_scalars(self):
        self.a(f"s_load_dword s64, s[{P_LDT}:{P_LDT+1}], s72\ns_load_dword s65, s[{P_DSK}:{P_DSK+1}], s72")
    def code_touch(self):
        a = self.a
        pc = self.lab("pc")
        a("s_getpc_b64 s[12:13]")
        a.label(pc)
        a(f"""s_lshl_b32 s14, s{S_SLOT}, 2
s_add_u32 s14, s14, s{S_W3}
s_mul_i32 s14, s14, {CODE_SHARE}
v_min_u32 v42, {CODE_SHARE-1}, v1
v_add_u32 v42, s14, v42
v_lshlrev_b32 v42, 7, v42
v_min_u32 v42, L_lagtab+4096-{pc}, v42
v_mov_b32 v43, s13
v_add_co_u32 v42, vcc, s12, v42
v_addc_co_u32 v43, vcc, 0, v43, vcc
global_load_dword v55, v[42:43], off""")
    def lds_zero(self):
        self.a(f"""v_mov_b32 v60, 0
v_mov_b32 v61, 0
v_lshlrev_b32 v11, 3, v1
v_add_u32 v11, {L_H}, v11
ds_write_b64 v11, v[60:61]
ds_write_b64 v11, v[60:61] offset:{HP}
ds_write_b64 v7, v[60:61] offset:{L_T + 9*256}
ds_write_b64 v7, v[60:61] offset:{L_T + TP + 9*256}
v_mov_b32 v11, {L_CNT}
ds_write_b64 v11, v[60:61]
ds_write_b64 v11, v[60:61] offset:8
ds_write_b64 v11, v[60:61] offset:16""")
    def gather_addr(self):
        a = self.a
        pc = self.lab("pc")
        a("s_getpc_b64 s[12:13]")
        a.label(pc)
        a(f"""s_add_u32 s12, s12, L_lagtab-{pc}
s_addc_u32 s13, s13, 0
v_lshlrev_b32 v178, 4, v186
v_mov_b32 v179, s13
v_add_co_u32 v178, vcc, s12, v178
v_addc_co_u32 v179, vcc, 0, v179, vcc""")
    def gather_loads(self):
        return ["global_load_dwordx4 v[172:175], v[178:179], off", "global_load_dwordx2 v[176:177], v[178:179], off offset:16"]
    def gather_unpack(self):
        return [f"v_and_b32 v{self.V_GA+m}, 0xffff, v{172+m//2}" if m % 2 == 0 else f"v_lshrrev_b32 v{self.V_GA+m}, 16, v{172+m//2}" for m in range(11)]
    def lag_table(self):
        vals = []
        for u in range(2048 + 16):
            l = 2047 - u
            if l < 0: vals.append(9 * 256); continue
            b = struct.unpack("<I", struct.pack("<f", float(l)))[0]
            b = (b + 0x7fff + ((b >> 16) & 1)) & 0xffff0000
            lb = int(struct.unpack("<f", struct.pack("<I", b))[0])
            vals.append(((lb >> 8) << 11) | ((lb & 7) << 8) | (lb & 0xf8))
        out = ".p2align 7\n.type L_lagtab,@object\nL_lagtab:\n"
        for i in range(0, len(vals), 16): out += ".short " + ", ".join(str(v) for v in vals[i:i+16]) + "\n"
        return out + f".size L_lagtab, {2*len(vals)}\n"
    def touch(self, srd, share_lines, index_sreg, vt, vd):
        self.a(f"""s_mul_i32 s13, s{index_sreg}, {share_lines*128}
v_min_u32 v{vt}, {share_lines-1}, v1
v_lshl_add_u32 v{vt}, v{vt}, 7, s13
buffer_load_dword v{vd}, v{vt}, s[{srd}:{srd+3}], 0 offen""")
    def mod_block(self, sv=65, sb=64):
        self.a(f"""s_add_u32 s14, s68, 22
s_sub_u32 s15, s68, 10
s_cmp_lt_u32 s68, 10
s_cselect_b32 s14, s14, s15
s_cmp_ge_u32 s68, 32
s_cselect_b32 s14, s68, s14
s_mul_i32 s12, s14, 37
s_lshr_b32 s12, s12, 8
s_mul_i32 s13, s12, 7
s_sub_u32 s13, s14, s13
s_lshl_b32 s12, s12, 2
s_lshr_b32 s12, 0x534210, s12
s_and_b32 s{sv}, s12, 15
s_mul_i32 s{sb}, s{sv}, 7
s_add_u32 s{sb}, s{sb}, s13""")
    def warm_wmod(self):
        a = self.a
        self.srd(R_B, P_WM, 448 * 5376)
        a(f"s_lshl_b32 s68, s{S_XCD}, 2\ns_add_u32 s68, s68, s{S_W3}")
        self.mod_block(73, 74)
        a("s_add_u32 s68, s68, 32")
        self.mod_block(73, 75)
        a(f"""s_cmp_lt_u32 s68, 42
s_cselect_b32 s75, s75, s74
s_lshl_b32 s13, s{S_SLOT}, 4
v_and_b32 v254, 15, v1
v_add_u32 v254, s13, v254
v_mul_u32_u24 v254, 5376, v254
v_mov_b32 v255, s74
v_mov_b32 v11, s75
v_cmp_gt_u32 vcc, 16, v1
v_cndmask_b32 v255, v11, v255, vcc
v_lshl_add_u32 v254, v255, 7, v254""")
        return f"buffer_load_dword v255, v254, {RB}, 0 offen"
    def w13_touch(self, srd=R_D):
        a = self.a
        a(f"s_bitcmp1_b32 s{S_W3}, 1")
        self.srd_sel(srd, P_WU, P_WG, 448 * 3584)
        a(f"""s_lshl_b32 s13, s{S_SLOT}, 1
s_and_b32 s14, s{S_W3}, 1
s_add_u32 s13, s13, s14
s_mul_i32 s13, s13, {8*3584}
s_lshr_b32 s14, s{S_XCD}, 1
s_mul_i32 s14, s14, 896
s_add_u32 s13, s13, s14
v_lshrrev_b32 v252, 3, v1
v_mul_u32_u24 v252, 3584, v252
v_and_b32 v253, 7, v1
v_min_u32 v253, 6, v253
v_lshl_add_u32 v252, v253, 7, v252
v_add_u32 v252, s13, v252""")
        return f"buffer_load_dword v253, v252, s[{srd}:{srd+3}], 0 offen"
    def wd_touch(self, half, vt):
        a = self.a
        self.srd(R_B, P_WD, 1792 * 896)
        a(f"""s_mul_i32 s12, s{S_XCD}, 7
s_lshr_b32 s12, s12, 1
s_add_u32 s12, s12, s{S_SLOT}
s_sub_u32 s13, s12, 28
s_cmp_ge_u32 s12, 28
s_cselect_b32 s12, s13, s12
s_lshl_b32 s12, s12, 3
s_lshl_b32 s13, s{S_W3}, 1
s_add_u32 s12, s12, s13
s_add_u32 s12, s12, {half}""")
        self.touch(R_B, 56, 12, vt, 14 if half == 0 else 5)

    def cmul(self, d, x, r, t):
        return [f"v_pk_mul_f32 v[{t}:{t+1}], v[{x}:{x+1}], v[{r}:{r+1}] op_sel_hi:[1,0]",
                f"v_pk_fma_f32 v[{d}:{d+1}], v[{x}:{x+1}], v[{r}:{r+1}], v[{t}:{t+1}] op_sel:[1,1,0] op_sel_hi:[0,1,1] neg_lo:[0,1,0]"]

    def kgen_common(self):
        a = self.a; P = self.V_PAR
        a(f"""s_lshl_b32 s12, s64, 16
s_and_b32 s13, s64, 0xffff0000
s_cmp_lt_u32 s{S_W3}, 2
s_cselect_b32 s64, s12, s13
s_lshl_b32 s12, s65, 16
s_and_b32 s13, s65, 0xffff0000
s_cmp_lt_u32 s{S_W3}, 2
s_cselect_b32 s65, s12, s13
s_bitcmp1_b32 s{S_WAVE}, 0
s_cselect_b32 s65, 0, s65
s_mul_i32 s68, s{S_W3}, {EW}
s_add_u32 s68, s68, {L_E}""")
        lh = struct.unpack("<f", struct.pack("<f", LOG2E))[0]
        a(f"""v_mov_b32 v2, {f32(lh)}
v_mul_f32 v3, s64, v2
v_fma_f32 v11, s64, v2, -v3
v_mov_b32 v2, {f32(LOG2E - lh)}
v_fma_f32 v11, s64, v2, v11
v_exp_f32 v3, v3
v_mul_f32 v11, {f32(math.log(2))}, v11
v_fma_f32 v3, v3, v11, v3""")
        self.bf16r(2, 3)
        a(f"v_lshl_add_u32 v10, v1, 3, s68")
        for k in range(2):
            u = 80 + 6*k
            for i in range(2):
                a(f"v_lshlrev_b32 v{u+i}, 16, v{P+i}" if k == 0 else f"v_and_b32 v{u+i}, 0xffff0000, v{P+i}")
            a(f"""v_mul_f32 v{u}, v2, v{u}
v_mul_f32 v{u+1}, v2, v{u+1}
v_mul_f32 v{u}, {f32(LOG2E)}, v{u}
v_mul_f32 v{u+1}, {f32(1/(2*math.pi))}, v{u+1}""")
    def rho(self, L, R, sg):
        a = self.a
        for k in range(2):
            u = 80 + 6*k; t = 92 + 2*k
            a(f"v_mul_f32 v{t}, {f32(L)}, v{u}\nv_mul_f32 v{t+1}, {f32(L)}, v{u+1}\nv_fract_f32 v{t+1}, v{t+1}")
        for k in range(2):
            t = 92 + 2*k
            a(f"v_exp_f32 v{t}, v{t}\nv_cos_f32 v{R[k]}, v{t+1}\nv_sin_f32 v{R[k]+1}, v{t+1}")
        for k in range(2):
            t = 92 + 2*k
            a(f"v_mul_f32 v{R[k]}, v{t}, v{R[k]}\nv_mul_f32 v{R[k]+1}, {sg}v{t}, v{R[k]+1}")
    def chain_runner(self):
        outs = [96, 98, 100, 102]; st = {"i": 0, "pend": None}; seq = []
        T = [92, 94]
        def put(row, src):
            o = outs[st["i"] % 4]; st["i"] += 1
            return [f"v_cvt_pk_bf16_f32 v{o}, v{src[0]}, v{src[0]+1}", f"v_cvt_pk_bf16_f32 v{o+1}, v{src[1]}, v{src[1]+1}",
                    f"ds_write_b64 v10, v[{o}:{o+1}] offset:{row*EP}"]
        def first(row, src): st["pend"] = put(row, src)
        def chain(dst, src, rho, row):
            m0 = self.cmul(dst[0], src[0], rho[0], T[0]); m1 = self.cmul(dst[1], src[1], rho[1], T[1])
            p = st["pend"]
            seq.extend([m0[0], m1[0], p[0], m0[1], m1[1], p[1], p[2]])
            st["pend"] = put(row, dst)
        def done():
            seq.extend(st["pend"]); return seq
        return first, chain, done
    def kgen_lo(self):
        a = self.a
        R8 = [72, 74]; pp = [[80, 82], [84, 86]]
        self.rho(8, R8, "-")
        a(f"v_mov_b32 v102, 0x3f80\nv_mov_b32 v103, 0x3f80\nds_write_b64 v10, v[102:103] offset:{22*EP}")
        first, chain, done = self.chain_runner()
        first(23, R8); cur = R8
        for c in range(2, 32):
            chain(pp[c % 2], cur, R8, 22 + c); cur = pp[c % 2]
        for s in done(): a(s)
    def kgen_hi(self):
        a = self.a; P = self.V_PAR
        W = [64, 66]; R1 = [68, 70]; R256 = [76, 78]; pp = [[80, 82], [84, 86]]
        for k in range(2):
            u = 80 + 6*k
            for i in range(2, 6):
                a(f"v_lshlrev_b32 v{u+i}, 16, v{P+i}" if k == 0 else f"v_and_b32 v{u+i}, 0xffff0000, v{P+i}")
            a(f"""v_mul_f32 v{u+2}, v2, v{u+2}
v_mul_f32 v{u+3}, v2, v{u+3}
v_mul_f32 v{W[k]}, v{u+4}, v{u+2}
v_mul_f32 v{W[k]+1}, v{u+4}, v{u+3}
v_fma_f32 v{W[k]}, -v{u+5}, v{u+3}, v{W[k]}
v_fma_f32 v{W[k]+1}, v{u+5}, v{u+2}, v{W[k]+1}""")
        self.rho(1, R1, "")
        self.rho(256, R256, "")
    def kgen_hi_chain(self):
        a = self.a
        W = [64, 66]; R1 = [68, 70]; R256 = [76, 78]; pp = [[80, 82], [84, 86]]
        first, chain, done = self.chain_runner()
        keep = {0: W, 2: [104, 106], 4: [108, 110], 6: [112, 114]}
        first(0, W); cur = W
        for j in range(1, 8):
            nxt = keep.get(j, pp[(j // 2) % 2])
            chain(nxt, cur, R1, j); cur = nxt
        A0 = [116, 118]; A4 = [120, 122]; B0 = [124, 126]; B4 = [128, 130]
        for dst, src, row in ((A0, keep[0], 8), (A4, keep[4], 12), (pp[0], keep[2], 9), (pp[1], keep[6], 13),
                              (B0, A0, 10), (B4, A4, 14), (A0, B0, 11), (A4, B4, 15),
                              (B0, A0, 16), (A0, B0, 17), (B0, A0, 18), (A0, B0, 20), (B0, A0, 21)):
            chain(dst, src, R256, row)
        for s in done(): a(s)

    def kgen_contract(self, first, fill, late):
        a = self.a
        ACC = 64; F = 96
        def rd(s):
            b = F + 8 * (s % 7)
            return [f"ds_read_b128 v[{b}:{b+3}], v10 offset:{32*s}", f"ds_read_b128 v[{b+4}:{b+7}], v10 offset:{22*EP + 32*s}"]
        for s in range(7):
            for x in rd(s): a(x)
        for x in first: a(x)
        for s in range(16):
            b = F + 8 * (s % 7)
            a(f"v_mfma_f32_32x32x16_bf16 v[{ACC}:{ACC+15}], v[{b}:{b+3}], v[{b+4}:{b+7}], v[{ACC}:{ACC+15}]")
            if s + 7 < 16:
                for x in rd(s + 7): a(x)
            if s == self.o["w13t_at"]: a(late)
        for x in fill: a(x)
        for i, row in enumerate((0, 1, 2, 3, 8, 10, 16, 24)):
            a(f"ds_write_b32 v11, v{ACC+i} offset:{L_T + row*256}")
        for i, row in enumerate((32, 40, 48)):
            a(f"ds_write_b32 v12, v{ACC+8+i} offset:{L_T + row*256}")
    def kgen_contract_pre(self):
        a = self.a; ACC = 64
        a(f"""v_and_b32 v2, 31, v1
v_mul_u32_u24 v10, {EP}, v2
v_lshrrev_b32 v3, 5, v1
v_lshl_add_u32 v10, v3, 4, v10
v_add_u32 v10, s68, v10
s_lshr_b32 s12, s{S_W3}, 1
s_mul_i32 s12, s12, {TP}
s_and_b32 s13, s{S_W3}, 1
s_lshl_b32 s13, s13, 2
s_add_u32 s12, s12, s13
v_lshl_add_u32 v2, v2, 3, s12
v_mul_u32_u24 v12, {24*256}, v3
v_add_u32 v12, v12, v2
v_lshl_add_u32 v11, v3, 10, v2
v_mov_b32 v3, s65
v_cmp_eq_u32 vcc, 0, v1""")
        for i in range(1, 16): a(f"v_mov_b32 v{ACC+i}, 0")
        a(f"v_cndmask_b32 v{ACC}, v{ACC+1}, v3, vcc")

    def expand(self, ch):
        a = self.a; G = 64; O = 96
        for m in range(11):
            a(f"ds_read_b64 v[{G+2*m}:{G+2*m+1}], v{self.V_GA+m} offset:{L_T + ch*TP}")
        a(f"""v_lshlrev_b32 v10, 4, v186
v_add_u32 v10, {L_C + ch*4*CP}, v10
v_lshrrev_b32 v11, 1, v0
v_mul_u32_u24 v11, {CP}, v11
v_and_b32 v12, 1, v0
v_lshl_add_u32 v11, v12, 4, v11
v_add_u32 v11, {L_C + 4096}, v11
v_mov_b32 v60, 0
v_mov_b32 v61, 0
v_mov_b32 v62, 0
v_mov_b32 v63, 0
v_cmp_gt_u32 vcc, 16, v0
s_and_saveexec_b64 s[12:13], vcc
ds_write_b128 v11, v[60:63]
s_mov_b64 exec, s[12:13]""")
        for m in range(11):
            a(f"v_add_f32 v{G+2*m}, v{G+2*m}, v{G+2*m+1}")
        for c in range(4):
            o = O + 4*c
            for k in range(4):
                m = c + 2*k
                a(f"v_cvt_pk_bf16_f32 v{o+k}, v{G+2*m}, v{G+2*(m+1)}")
            a(f"ds_write_b128 v10, v[{o}:{o+3}] offset:{c*CP}")

    V_XG = 152
    V_SG = 160
    V_MG = 168
    def handoff1_loads(self):
        L = [f"buffer_load_dwordx4 v[{self.V_XG+4*k}:{self.V_XG+4*k+3}], v{180+k}, {WS}, 0 offen sc1" for k in range(2)]
        L += [f"buffer_load_dwordx4 v[{self.V_SG+4*k}:{self.V_SG+4*k+3}], v{182+k}, {WS}, 0 offen sc1" for k in range(2)]
        return L
    def handoff1_addr(self):
        self.a(f"""v_lshrrev_b32 v180, 3, v0
v_mul_u32_u24 v180, 28672, v180
v_and_b32 v181, 7, v0
v_lshl_add_u32 v180, v181, 4, v180
s_lshl_b32 s13, s{S_PAIR}, 7
v_add_u32 v180, s13, v180
v_add_u32 v181, {64*28672}, v180
v_lshlrev_b32 v182, 4, v0
v_add_u32 v182, {STAT}, v182
v_add_u32 v183, 8192, v182""")
    def wdf_loads(self, srd):
        a = self.a
        self.srd(srd, P_WD, 1792 * 896)
        a(f"""s_lshl_b32 s12, s{S_PAIR}, 2
s_add_u32 s12, s12, s{S_W3}
s_mul_i32 s13, s12, 9363
s_lshr_b32 s13, s13, 16
s_mul_i32 s13, s13, {16*896 - 7*128}
s_lshl_b32 s14, s12, 7
s_add_u32 s13, s13, s14
s_lshl_b32 s14, s12, 11
s_add_u32 s14, s14, {WDF}
s_cmp_lt_u32 s12, 784
s_cselect_b32 s14, s14, {OOB}
v_and_b32 v189, 31, v1
v_lshrrev_b32 v190, 5, v1
v_mul_u32_u24 v190, {4*896}, v190
v_lshl_add_u32 v189, v189, 2, v190
v_add_u32 v189, s13, v189
v_add_u32 v190, {8*896}, v189
v_lshl_add_u32 v191, v1, 4, s14""")
        return [f"buffer_load_dword v{136+k}, v{189 + k//4}, s[{srd}:{srd+3}], 0 offen offset:{896*(k%4)}" for k in range(8)]
    def wdf_stores(self):
        a = self.a
        a("s_mov_b32 s12, 0x05040100\ns_mov_b32 s13, 0x07060302")
        for par in range(2):
            o = 144 + 4*par
            for k in range(4): a(f"v_perm_b32 v{o+k}, v{136+2*k+1}, v{136+2*k}, s{12+par}")
            a(f"buffer_store_dwordx4 v[{o}:{o+3}], v191, {WS}, 0 offen offset:{1024*par} sc1")
    def mod_addr(self):
        self.a(f"""s_lshl_b32 s13, s{S_PAIR}, 4
s_add_u32 s13, s13, {MODG}
v_mov_b32 v184, s13
v_add_u32 v185, {2*448*8}, v184
v_add_u32 v187, {4*448*8}, v184""")
    def mod_loads(self):
        MG = self.V_MG
        return [f"buffer_load_dwordx4 v[{MG}:{MG+3}], v184, {WS}, 0 offen sc1",
                f"buffer_load_dwordx4 v[{MG+4}:{MG+7}], v184, {WS}, 0 offen offset:{448*8} sc1",
                f"buffer_load_dwordx4 v[{MG+8}:{MG+11}], v185, {WS}, 0 offen sc1",
                f"buffer_load_dwordx4 v[{MG-4}:{MG-1}], v187, {WS}, 0 offen sc1"]

    V_XV = 120
    def make_z(self, after=()):
        a = self.a
        tags = [self.V_XG + 2*i + 1 for i in range(8)]
        self.poll(self.handoff1_loads(), tags, 60, list(range(64, 74)), issued=True, masked=True)
        self.stamp("h1")
        for x in after: a(x)
        MS = 64; H = 80
        for i in range(4):
            g = self.V_SG + 2*i
            a(f"v_and_b32 v{MS+2*i+1}, 0xffff0000, v{g}\nv_lshlrev_b32 v{MS+2*i}, 16, v{g}\nv_rcp_f32 v{MS+2*i+1}, v{MS+2*i+1}")
        for i in range(4):
            g = self.V_XG + 2*i
            a(f"v_lshlrev_b32 v{H+2*i}, 16, v{g}\nv_and_b32 v{H+2*i+1}, 0xffff0000, v{g}")
        for i in range(8): a(f"v_sub_f32 v{H+i}, v{H+i}, v{MS+2*(i//2)}")
        for i in range(8): a(f"v_mul_f32 v{H+i}, v{H+i}, v{MS+2*(i//2)+1}")
        a(f"v_lshlrev_b32 v61, 2, v0\nv_add_u32 v61, {L_H}, v61\nv_lshlrev_b32 v62, 3, v0\nv_add_u32 v62, {L_XS}, v62")
        for k in range(2):
            for ch in range(2):
                o = 64 + 2*k + ch; b = H + 4*k + ch
                a(f"v_cvt_pk_bf16_f32 v{o}, v{b}, v{b+2}")
                a(f"ds_write_b32 v61, v{o} offset:{ch*HP + 480 + 2048*k}")
        for k in range(2):
            g = self.V_XG + 4*k
            a(f"v_mov_b32 v{g+1}, v{g+2}\nds_write_b64 v62, v[{g}:{g+1}] offset:{4096*k}")
    def x_fetch(self):
        a = self.a; XV = self.V_XV; g = self.V_XG
        a(f"v_lshlrev_b32 v11, 4, v186\nv_add_u32 v11, {L_XS}, v11")
        for r in range(2): a(f"ds_read_b128 v[{g+4*r}:{g+4*r+3}], v11 offset:{4096*r}")
        for i in range(8):
            a(f"v_lshlrev_b32 v{XV+2*i}, 16, v{g+i}\nv_and_b32 v{XV+2*i+1}, 0xffff0000, v{g+i}")

    def cum_k(self):
        a = self.a
        OW = 108; S = 48; CU = 64; T = 80; P = 44
        a(f"""v_lshlrev_b32 v10, 3, v1
v_sub_u32 v10, {L_C + 2*(2044 - 1792)}, v10
s_lshl_b32 s12, s{S_W3}, 9
v_subrev_u32 v11, s12, v10""")
        for r in range(2):
            for ch in range(2):
                a(f"ds_read_b64 v[{OW+4*r+2*ch}:{OW+4*r+2*ch+1}], v11 offset:{ch*4*CP + 512*(7-4*r)}")
        for k in range(4):
            o = OW + 2*k; c = CU + 4*k
            a(f"""v_and_b32 v{c}, 0xffff0000, v{o+1}
v_lshlrev_b32 v{c+1}, 16, v{o+1}
v_and_b32 v{c+2}, 0xffff0000, v{o}
v_lshlrev_b32 v{c+3}, 16, v{o}
v_add_f32 v{c+1}, v{c}, v{c+1}
v_add_f32 v{c+2}, v{c+1}, v{c+2}
v_add_f32 v{c+3}, v{c+2}, v{c+3}
v_mov_b32 v{S+k}, v{c+3}""")
        for mod in [f"row_shr:{sh} row_mask:0xf bank_mask:0xf bound_ctrl:0" for sh in (1, 2, 4, 8)] + \
                   ["row_bcast:15 row_mask:0xa bank_mask:0xf", "row_bcast:31 row_mask:0xc bank_mask:0xf"]:
            for k in range(4): a(f"v_add_f32_dpp v{S+k}, v{S+k}, v{S+k} {mod}")
        rest, a.inj = a.inj, []
        a(f"""s_lshl_b32 s12, s{S_W3}, 4
v_mov_b32 v11, {L_CT}
v_add_u32 v10, s12, v11
s_mov_b32 exec_lo, 0
s_mov_b32 exec_hi, 0x80000000
ds_write_b128 v10, v[{S}:{S+3}]
s_mov_b64 exec, -1""")
        self.cnt_add(1, 60)
        self.stamp("mid0")
        if not self.o["modfirst"]:
            for x in rest: a(x)
            rest = []
        if self.o["wdfs"] == 1: self.wdf_stores()
        for x in self.mod_loads(): a(x)
        self.tok_mod = a.mark()
        self.cnt_wait(1, 4, 60)
        a.inject(rest, self.o["w13rate2"])
        for w in range(4): a(f"ds_read_b128 v[{T+4*w}:{T+4*w+3}], v11 offset:{16*w}")
        for q in range(3):
            a(f"s_cmp_gt_u32 s{S_W3}, {q}\ns_cselect_b32 s{13+q}, 1.0, 0")
        for k in range(4): a(f"v_sub_f32 v{S+k}, v{S+k}, v{CU+4*k+3}")
        for w in range(3):
            for k in range(4): a(f"v_fmac_f32 v{S+k}, s{13+w}, v{T+4*w+k}")
        for w in range(4):
            for ch in range(2): a(f"v_add_f32 v{S+2+ch}, v{S+2+ch}, v{T+4*w+ch}")
        for k in range(4):
            for e in range(4): a(f"v_add_f32 v{CU+4*k+e}, v{S+k}, v{CU+4*k+e}")

    def conv_pre(self):
        a = self.a
        a(f"""s_lshr_b32 s12, s{S_W3}, 1
s_and_b32 s14, s{S_W3}, 1
s_lshl_b32 s15, s14, 8
s_mul_i32 s13, s12, {4*CP}
s_add_u32 s13, s13, s15
s_add_u32 s13, s13, {L_C + 2*(1804 - 1792)}
v_and_b32 v2, 3, v1
v_sub_u32 v2, 3, v2
v_mul_u32_u24 v2, {CP}, v2
v_lshrrev_b32 v3, 4, v1
v_bfe_u32 v4, v1, 2, 2
v_lshlrev_b32 v5, 1, v3
v_sub_u32 v4, v5, v4
v_lshlrev_b32 v4, 3, v4
v_add3_u32 v10, v2, v4, s13
s_mul_i32 s13, s12, {HP}
s_add_u32 s13, s13, s15
s_add_u32 s13, s13, {L_H}
v_and_b32 v2, 15, v1
v_lshlrev_b32 v4, 5, v2
v_lshl_add_u32 v4, v3, 4, v4
v_add_u32 v11, s13, v4
v_bfe_u32 v4, v1, 1, 2
v_xor_b32 v4, v4, v3
v_lshl_add_u32 v4, v2, 2, v4
v_lshlrev_b32 v4, 4, v4
s_mul_i32 s13, s{S_W3}, {SI}
s_add_u32 s13, s13, {L_Y}
v_add_u32 v12, s13, v4""")
    def conv_main(self):
        a = self.a
        ACC = 16; F = 64
        def fa(s, j): return F + 64 * (s % 2) + 4 * j
        def fb(s, p): return F + 64 * (s % 2) + 32 + 4 * p
        def reads(s):
            out = []
            for k in range(8):
                out.append(f"ds_read_b64 v[{fa(s,k)}:{fa(s,k)+1}], v10 offset:{512*(7-k) + 64*s}")
                out.append(f"ds_read_b64 v[{fa(s,k)+2}:{fa(s,k)+3}], v10 offset:{512*(7-k) + 64*s + 8}")
                out.append(f"ds_read_b128 v[{fb(s,k)}:{fb(s,k)+3}], v11 offset:{512*k + 64*s}")
            return out
        for x in reads(0): a(x)
        for s in range(4):
            if s < 3: trip = sorted([(max(j, Q - j), Q, j) for Q in range(8) for j in range(Q + 1)])
            else: trip = [(0, Q, j) for Q in range(8) for j in range(Q + 1)]
            seen = set(); mf = []
            for _, Q, j in trip:
                d = f"v[{ACC+4*Q}:{ACC+4*Q+3}]"
                c = "0" if (s == 0 and Q not in seen) else d
                seen.add(Q)
                mf.append(f"v_mfma_f32_16x16x32_bf16 {d}, v[{fa(s,j)}:{fa(s,j)+3}], v[{fb(s,Q-j)}:{fb(s,Q-j)+3}], {c}")
            if s < 3:
                seq = merge(mf, reads(s + 1))
            else:
                seq = []; k = 0
                wr = lambda Q: f"ds_write_b128 v12, v[{ACC+4*Q}:{ACC+4*Q+3}] offset:{1024*Q}"
                at = {12: 0, 15: 1, 18: 2, 21: 3, 24: 4, 29: 5}
                for i, x in enumerate(mf):
                    seq.append(x)
                    if i in at: seq.append(wr(at[i]))
                seq += [wr(6), wr(7)]
            for x in seq: a(x)

    def conv_epilogue_pre(self):
        a = self.a; MG = self.V_MG; XV = self.V_XV; CU = 64
        a(f"""v_bfe_u32 v2, v1, 3, 2
v_xor_b32 v2, v2, v186
v_lshlrev_b32 v2, 4, v2
v_add_u32 v2, {L_Y}, v2
v_add_u32 v4, {2*SI}, v2
s_mul_i32 s12, s{S_W3}, {224*1024}
s_lshl_b32 s13, s{S_PAIR}, 10
s_add_u32 s12, s12, s13
s_add_u32 s70, s12, {X2}
s_add_u32 s71, s70, {4*224*1024}
v_lshlrev_b32 v3, 4, v1
v_add_u32 v5, {XSC - X2}, v3
s_lshl_b32 s12, s{S_W3}, 8
s_add_u32 s12, s12, s{S_PAIR}
s_lshl_b32 s12, s12, 7
s_add_u32 s72, s12, {FLG2}""")
        a.flush_inject()
        self.stamp("mid2")
        self.poll(self.mod_loads(), [MG + 2*i + 1 for i in range(-2, 6)], 60, [61, 62, 63, 59], issued=True, sleep=2)
        for ch in range(2):
            a(f"v_mul_f32 v{MG+2*ch}, v{MG+8+2*ch}, v{MG+2*ch}\nv_mul_f32 v{MG+4+2*ch}, v{MG+8+2*ch}, v{MG+4+2*ch}")
        for r in range(2):
            for ch in range(2):
                for e in range(4):
                    a(f"v_fmac_f32 v{XV+2*(4*r+e)+ch}, v{MG+2*ch}, v{CU+8*r+4*ch+e}")
    def conv_epilogue(self):
        a = self.a; AL = self.V_MG + 4; SC = self.V_MG - 4; XV = self.V_XV; Y = 64
        for r in range(2):
            for ch in range(2):
                for kh in range(2):
                    b = Y + 16*r + 8*ch + 4*kh
                    a(f"ds_read_b128 v[{b}:{b+3}], v{2+2*ch} offset:{SI*kh + 4096*r}")
        for r in range(2):
            for ch in range(2):
                for e in range(4):
                    b = Y + 16*r + 8*ch + e; x = XV + 2*(4*r+e) + ch
                    a(f"v_add_f32 v{b}, v{b}, v{b+4}\nv_fmac_f32 v{x}, v{AL+2*ch}, v{b}\nv_mul_f32 v{b}, v{SC+2*ch}, v{x}")
            for e in range(4):
                a(f"v_cvt_pk_bf16_f32 v{104+4*r+e}, v{Y+16*r+e}, v{Y+16*r+8+e}")
            a(f"buffer_store_dwordx4 v[{104+4*r}:{107+4*r}], v5, {WS}, s{70+r} offen sc1")
        for r in range(2):
            for e in range(4):
                i = 4*r + e
                a(f"v_cvt_pk_bf16_f32 v{96+i}, v{XV+2*i}, v{XV+2*i+1}")
            a(f"buffer_store_dwordx4 v[{96+4*r}:{99+4*r}], v3, {WS}, s{70+r} offen sc1")
    def counters_clear(self):
        if self.o["b2"] != "atomic": return
        a = self.a
        sk = self.lab("cc")
        a(f"""s_lshl_b32 s13, s2, 3
s_add_u32 s13, s13, s{S_WAVE}
s_cmp_lg_u32 s13, 4
s_cbranch_scc1 {sk}
v_lshlrev_b32 v9, 8, v1
v_add_u32 v9, {FLG2}, v9
buffer_store_dword v7, v9, {WS}, 0 offen sc1""")
        a.wait(vm=0)
        a.label(sk)
    def arrive2(self):
        a = self.a
        if self.o["b2"] != "atomic":
            self.flag_store(72); return
        a(f"""s_lshl_b32 s72, s{S_W3}, 3
s_add_u32 s72, s72, s{S_XCD}
s_lshl_b32 s72, s72, 8
s_add_u32 s72, s72, {FLG2}
v_mov_b32 v8, 1
v_mov_b32 v7, 0
s_mov_b64 exec, 1
buffer_atomic_add v8, v7, {WS}, s72 offen sc1
s_mov_b64 exec, -1""")
    def flag_store(self, sreg):
        self.a(f"s_atomic_swap s{S_NONCE}, s[{P_WS}:{P_WS+1}], s{sreg}")

    def w13_addr(self):
        a = self.a
        a(f"s_bitcmp1_b32 s{S_W3}, 0")
        self.srd_sel(R_A, P_WU, P_WG, 448 * 3584)
        a(f"""v_lshrrev_b32 v249, 2, v1
v_mul_u32_u24 v249, 3584, v249
s_and_b32 s13, s{S_W3}, 1
s_lshl_b32 s13, s13, 1
v_and_b32 v250, 3, v1
v_xor_b32 v250, s13, v250
v_lshl_add_u32 v249, v250, 4, v249
s_lshl_b32 s13, s{S_FC}, 7
s_and_b32 s14, s{S_W3}, 2
s_lshl_b32 s14, s14, 5
s_add_u32 s13, s13, s14
v_add_u32 v249, s13, v249
s_and_b32 s74, s{S_SLOT}, {28 if self.o["krot"] else 0}
s_mul_i32 s75, s{S_W3}, {SI}""")
    def w13_dma(self, n0, n, rot):
        first = f"s_and_b32 s73, s{S_SLOT}, 3\ns_mul_i32 s73, s73, {rot}\ns_add_u32 s73, s73, {n0}\n"
        L = []
        for j in range(n):
            x = f"""s_add_u32 s68, s73, s74
s_sub_u32 s69, s68, 28
s_min_u32 s68, s68, s69
s_mul_i32 s68, s68, {16*3584}
s_lshl_b32 s69, s73, 10
s_add_u32 m0, s69, s75
s_add_u32 s73, s73, 1
buffer_load_dwordx4 v249, {RA}, s68 offen lds
s_cmp_eq_u32 s73, {n0 + n}
s_cselect_b32 s73, {n0}, s73"""
            L.append((first if j == 0 else "") + x)
        return L

    def vec_loads(self):
        return [f"buffer_load_dwordx4 v[{64+4*v}:{67+4*v}], v62, {WS}, 0 offen offset:{3584*v} sc1" for v in range(2)]
    def vec_issue(self):
        a = self.a
        a(f"""v_min_u32 v63, 223, v0
v_lshlrev_b32 v62, 4, v63
v_add_u32 v62, {MODG + 3*448*8}, v62""")
        for x in self.vec_loads(): a(x)
    def vec_store(self):
        a = self.a
        self.poll(self.vec_loads(), [65, 67, 69, 71], 60, [72, 73], issued=True, sleep=2)
        a(f"""s_lshl_b32 s12, s74, 3
v_subrev_u32 v63, s12, v63
v_add_u32 v61, 224, v63
v_min_u32 v63, v63, v61
v_lshlrev_b32 v63, 2, v63
v_add_u32 v63, {L_V}, v63
s_mov_b32 s13, 0x07060302
v_perm_b32 v64, v66, v64, s13
v_perm_b32 v68, v70, v68, s13
ds_write_b32 v63, v68
ds_write_b32 v63, v64 offset:1088""")
    def fold_consts(self):
        a = self.a
        a(f"""v_lshrrev_b32 v16, 4, v1
v_bfe_u32 v17, v1, 2, 2
v_lshl_add_u32 v17, v16, 3, v17
v_lshlrev_b32 v17, 6, v17
v_and_b32 v18, 3, v1
v_lshl_add_u32 v17, v18, 3, v17
s_and_b32 s12, s{S_W3}, 2
s_mul_i32 s12, s12, {SI}
s_and_b32 s13, s{S_W3}, 1
s_lshl_b32 s13, s13, 5
s_add_u32 s12, s12, s13
v_add_u32 v17, s12, v17
v_xor_b32 v18, 32, v17
v_and_b32 v20, 1, v1
v_mul_u32_u24 v19, 1088, v20
v_lshl_add_u32 v19, v16, 4, v19
v_add_u32 v19, {L_V}, v19""")
        F = 80
        def rd(s):
            b = F + 12 * (s % 3)
            return [f"ds_read_b128 v[{b}:{b+3}], v19 offset:{64*s}"] + \
                   [f"ds_read_b64_tr_b16 v[{b+4+4*M+2*h}:{b+5+4*M+2*h}], v{17+M} offset:{SI*M + 2048*s + 256*h}" for M in range(2) for h in range(2)]
        for x in rd(0) + rd(1): a(x)
        for s in range(14):
            b = F + 12 * (s % 3)
            if s + 2 < 14:
                for x in rd(s + 2): a(x)
            for M in range(2):
                d = f"v[{24+4*M}:{27+4*M}]"
                a(f"v_mfma_f32_16x16x32_bf16 {d}, v[{b+4+4*M}:{b+7+4*M}], v[{b}:{b+3}], {'0' if s == 0 else d}")
        a(f"""v_lshlrev_b32 v21, 5, v16
v_lshl_add_u32 v21, v20, 2, v21
s_lshl_b32 s12, s{S_W3}, 8
s_add_u32 s12, s12, {L_AUG}
v_add_u32 v21, s12, v21""")
        for k in range(8):
            self.bf16r(32 + k, 24 + k)
        for k in range(8):
            a(f"v_sub_f32 v{24+k}, v{24+k}, v{32+k}\nv_cvt_pk_bf16_f32 v{24+k}, v{32+k}, v{24+k}")
        for k in range(0, 8, 2):
            o = 32*(k // 4) + 2*(k % 4)
            a(f"ds_write2_b32 v21, v{24+k}, v{25+k} offset0:{o} offset1:{o + 2}")
        a.wait(lgkm=0)

    def barrier2(self, base=FLG2, pollers=0, sleep=None):
        a = self.a
        sk = self.lab("nopoll")
        a(f"s_cmp_ge_u32 s{S_WAVE}, 4\ns_cbranch_scc{1 - pollers} {sk}")
        st = a.state()
        a(f"""s_and_b32 s12, s{S_RB}, 3
s_lshl_b32 s12, s12, 15
s_add_u32 s12, s12, {base}
v_and_b32 v62, 255, v0
v_min_u32 v62, 223, v62
v_lshl_add_u32 v62, v62, 7, s12
s_mov_b64 vcc, -1""")
        self.poll([f"buffer_load_dword v63, v62, {WS}, 0 offen sc1"], [63], 60, [], masked=True, sleep=self.o["b2sleep"] if sleep is None else sleep)
        a.label(sk); a.set_state(st); a.win = []
        a("s_barrier")

    def ffn_addr(self):
        a = self.a
        a(f"""v_and_b32 v2, 31, v1
v_lshrrev_b32 v3, 5, v1
; x2 fragments
v_lshlrev_b32 v4, 2, v2
v_lshl_add_u32 v4, v3, 12, v4
s_mul_i32 s12, s{S_RB}, {224*1024}
s_lshl_b32 s13, s{S_WAVE}, 7
s_add_u32 s12, s12, s13
s_and_b32 s38, s{S_SLOT}, {28 if self.o["krot"] else 0}
s_lshl_b32 s13, s38, 13
s_add_u32 s12, s12, s13
s_add_u32 s12, s12, {XSC}
v_add_u32 v4, s12, v4
v_bfe_u32 v6, v1, 4, 1
v_bfe_u32 v8, v1, 2, 2
v_lshl_add_u32 v10, v3, 3, v8
v_lshlrev_b32 v10, 6, v10
v_mul_u32_u24 v9, {SI + 32}, v6
v_and_b32 v8, 3, v1
v_lshl_add_u32 v10, v8, 3, v10
v_add_u32 v10, v10, v9
; folding constants, row statistics, activation stores and flags
v_lshlrev_b32 v8, 3, v2
v_add_u32 v8, {L_AUG}, v8
s_lshl_b32 s12, s{S_RB}, 3
s_add_u32 s12, s12, s{S_WAVE}
s_lshl_b32 s13, s12, 8
s_add_u32 s13, s13, {STAT2}
v_lshl_add_u32 v9, v2, 3, s13
s_mul_i32 s13, s12, 28
s_add_u32 s13, s13, s{S_FC}
s_lshl_b32 s72, s13, 12
s_add_u32 s72, s72, {ACT}
s_lshl_b32 s12, s{S_RB}, 2
s_add_u32 s12, s12, s{S_W3}
s_lshl_b32 s12, s12, 2
s_lshr_b32 s13, s{S_XCD}, 1
s_add_u32 s12, s12, s13
s_lshl_b32 s73, s12, 7
s_and_b32 s13, s{S_SLOT}, 28
s_add_u32 s73, s73, s13
s_lshr_b32 s13, s{S_WAVE}, 2
s_mul_i32 s13, s13, {2*F3P}
s_add_u32 s73, s73, s13
s_add_u32 s73, s73, {FLG3}
; second GEMM: row block = xcd id, token groups j and 4+j, column block db
s_and_b32 s64, s{S_SLOT}, 3
s_lshr_b32 s65, s{S_SLOT}, 2
s_lshl_b32 s12, s64, 1
s_add_u32 s12, s12, s65
s_sub_u32 s13, s12, 7
s_cmp_ge_u32 s12, 7
s_cselect_b32 s69, s13, s12
s_mul_i32 s70, s{S_W3}, 7
s_add_u32 s12, s70, s69
s_lshl_b32 s12, s12, 2
s_lshr_b32 s13, s{S_WAVE}, 2
s_lshl_b32 s13, s13, 1
s_xor_b32 s13, s13, 2
s_add_u32 s74, s12, s13
s_mul_i32 s12, s74, 7
s_add_u32 s12, s12, s65
s_lshl_b32 s12, s12, 11
s_add_u32 s34, s12, {WDF}
s_cmp_lt_u32 s{S_WAVE}, 4
s_cselect_b32 s13, {2*7*2048}, 0
s_sub_u32 s37, s34, s13
s_mul_i32 s35, s{S_W3}, {self.N1*2048}
s_add_u32 s35, s35, {L_F}
s_mul_i32 s36, s{S_W3}, {self.N2*2048}
v_lshlrev_b32 v15, 4, v1
v_xor_b32 v11, 32, v10
v_add_u32 v12, {2*SI}, v10
v_xor_b32 v13, 32, v12""")
    def step_inc(self, m, unit, already, vreg, sreg=None):
        if m % 2 == 0:
            inc = unit - already
            return f"v_add_u32 v{vreg}, {inc}, v{vreg}" if sreg is None else f"s_add_u32 s{sreg}, s{sreg}, {inc}"
        L = [f"s_mov_b32 s14, {3*unit - already}",
             f"s_cmp_eq_u32 s69, {6 - m//2}",
             f"s_cselect_b32 s14, {(-25*unit - already) & 0xffffffff}, s14"]
        L.append(f"v_add_u32 v{vreg}, s14, v{vreg}" if sreg is None else f"s_add_u32 s{sreg}, s{sreg}, s14")
        return "\n".join(L)
    V_WD = 80
    WU = 7 * 2048
    def wd_loads(self, m):
        L = [f"buffer_load_dwordx4 v[{self.V_WD+8*m+4*h}:{self.V_WD+8*m+4*h+3}], v15, {WS}, s34 offen offset:{1024*h} sc1" for h in range(2)]
        if m < 13: L[1] += "\n" + self.step_inc(m, self.WU, 0, None, 34)
        return L
    N1 = 5
    N2 = 7
    def wd_slot(self, m):
        return (35, 2048*m) if m < self.N1 else (36, 2048*(m - self.N1))
    def wd_dma(self, m):
        base, off = self.wd_slot(m)
        return [f"s_add_u32 m0, s{base}, {off}\nbuffer_load_dwordx4 v15, {WS}, s37 offen sc1 lds",
                f"buffer_load_dwordx4 v15, {WS}, s37 offen offset:1024 sc1 lds\n" + self.step_inc(m, self.WU, 0, None, 37)]
    def wd_lds_reads(self):
        L = ["v_add_u32 v10, s35, v15\nv_add_u32 v11, s36, v15"]
        for m in range(self.N1 + self.N2):
            base, off = self.wd_slot(m)
            for h in range(2):
                r = self.V_WD + 8*m + 4*h
                L.append(f"ds_read_b128 v[{r}:{r+3}], v{10 + base - 35} offset:{off + 1024*h}")
        return L
    def x2_loads(self, B, s):
        L = [f"buffer_load_dword v{B+4*s+e}, v4, {WS}, 0 offen offset:{1024*e} sc1" for e in range(4)]
        if s % 4 == 3 and s < 27 and self.o["krot"]:
            L[3] += f"\ns_mov_b32 s14, 8192\ns_cmp_eq_u32 s38, {27 - s}\ns_cselect_b32 s14, {(-27*8192) & 0xffffffff}, s14\nv_add_u32 v4, s14, v4"
        else: L[3] += "\nv_add_u32 v4, 8192, v4"
        return L
    def row_scale(self, tmp):
        self.a(f"""s_mov_b32 s12, 0x01000100
s_mov_b32 s13, 0x03020302
v_and_b32 v9, 0xffff0000, v6
v_perm_b32 v4, v6, v6, s12
v_rcp_f32 v{tmp}, v9
v_perm_b32 v5, v6, v6, s13
v_xor_b32 v4, 0x80008000, v4
v_cmp_gt_u32 vcc, 32, v1
v_mov_b32 v6, 0
v_mov_b32 v7, 0
v_mul_f32 v8, {f32(-LOG2E)}, v{tmp}
v_mul_f32 v9, v9, v9
v_cndmask_b32 v4, 0, v4, vcc
v_cndmask_b32 v5, 0, v5, vcc""")
    def swiglu(self, g, T, O, tile):
        L = [f"v_mul_f32 v{T+i}, v8, v{g+i}" for i in range(8)]
        for i in range(8): L += [f"v_exp_f32 v{T+i}, v{T+i}", f"v_mul_f32 v{g+i}, v{g+i}, v{g+8+i}"]
        L += [f"v_fma_f32 v{T+i}, v{T+i}, v9, v9" for i in range(8)]
        L += [f"v_rcp_f32 v{T+i}, v{T+i}" for i in range(8)]
        L += [f"v_mul_f32 v{g+i}, v{g+i}, v{T+i}" for i in range(8)]
        L += [f"v_cvt_pk_bf16_f32 v{O+i}, v{g+2*i}, v{g+2*i+1}" for i in range(4)]
        L += [f"buffer_store_dwordx4 v[{O}:{O+3}], v15, {WS}, s72 offen offset:{1024*tile} sc1"]
        return L
    def cnt_add(self, k, vt, drained=False):
        a = self.a
        a(f"""v_mov_b32 v{vt}, {L_CNT + 4*k}
v_mov_b32 v{vt+1}, 1
s_mov_b64 exec, 1
ds_add_u32 v{vt}, v{vt+1}
s_mov_b64 exec, -1""")
    def cnt_wait(self, k, n, vt, group_step=False, ge=False):
        a = self.a
        lp = self.lab("cw"); ok = self.lab("cok")
        a(f"v_mov_b32 v{vt}, {L_CNT + 4*k}\ns_mov_b32 s9, {SPIN*20}")
        if group_step: a(f"s_and_b32 s12, s{S_WAVE}, 4\nv_add_u32 v{vt}, s12, v{vt}")
        a.wait(lgkm=0)
        a.label(lp)
        a(f"""ds_read_b32 v{vt+1}, v{vt}
v_cmp_gt_u32 vcc, {n}, v{vt+1}
s_cbranch_vccz {ok}
s_sub_u32 s9, s9, 1
s_cmp_lg_u32 s9, 0
s_cbranch_scc1 {lp}""")
        a.label(ok)
    def act_flag(self, p):
        if p: self.a(f"s_add_u32 s39, s73, {F3P}")
        self.flag_store(39 if p else 73)

    G1_B = 80; G1_ACC = 16; G1_AF = 192; G1_AUG = 240
    def g1_side_loads(self):
        AUG = self.G1_AUG
        augl = [f"ds_read_b64 v[{AUG+2*t}:{AUG+2*t+1}], v8 offset:{256*t}" for t in range(4)]
        return augl, [f"buffer_load_dwordx2 v[6:7], v9, {WS}, 0 offen sc1"]
    def g1_fold(self, tiles):
        ACC = self.G1_ACC; AUG = self.G1_AUG
        for t in tiles:
            d = f"v[{ACC+16*t}:{ACC+16*t+15}]"
            self.a(f"v_mfma_f32_32x32x16_bf16 {d}, v[{AUG+2*t}:{AUG+2*t+3}], v[4:7], {d}")
    def g1_check(self, T):
        a = self.a; AUG = self.G1_AUG
        augl, stl = self.g1_side_loads()
        self.poll(stl, [7], T, [], issued=True, sleep=2)
        self.row_scale(T)
        a(f"v_mov_b32 v{AUG+8}, 0\nv_mov_b32 v{AUG+9}, 0")
    def gemm1_a(self):
        a = self.a
        B = self.G1_B; ACC = self.G1_ACC; AF = self.G1_AF; NA = 3
        def ard(s):
            b = AF + 16 * (s % NA)
            return [f"ds_read_b64_tr_b16 v[{b+4*t+2*h}:{b+4*t+2*h+1}], v{10+t} offset:{1024*s + 256*h}" for t in range(4) for h in range(2)]
        augl, stl = self.g1_side_loads()
        xl = [x for s in range(28) for x in self.x2_loads(B, s)]
        a("s_setprio 2")
        n0 = 4 * self.o["npre"]
        for x in xl[:n0]: a(x)
        xl = xl[n0:]
        for x in ard(0) + ard(1)[:4]: a(x)
        for s in range(28):
            if s == 1: self.stamp("g1s1")
            if s == self.o["bdelay"]: a("s_barrier")
            if s == self.o["stat_at"]: xl += stl
            if s == 26: xl += augl
            b = AF + 16 * (s % NA)
            nxt = (ard(s + 1)[4:] if s + 1 < 28 else []) + (ard(s + 2)[:4] if s + 2 < 28 else [])
            for t in range(4):
                d = f"v[{ACC+16*t}:{ACC+16*t+15}]"
                a(f"v_mfma_f32_32x32x16_bf16 {d}, v[{b+4*t}:{b+4*t+3}], v[{B+4*s}:{B+4*s+3}], {'0' if s == 0 else d}")
                k = self.o["xrate"]
                for x in nxt[2*t:2*t+2] + xl[:k]: a(x)
                xl = xl[k:]
        assert not xl
        self.stamp("g1p0")
        self.cnt_add(3, AF + 10)
        self.g1_check(AF)
        self.g1_fold(range(4))
        self.g2_addr()
        ep = [self.swiglu(ACC + 16*t, AF, AF + 8 + 4*t, t) for t in range(4)]
        wl = [x for m in range(14) for x in self.wd_loads(m)]
        n0 = self.o["wd0"]; n1 = self.o["wdA"]
        for x in wl[:n0]: a(x)
        if self.o["abatch"]:
            for x in merge([x for t in (2, 3, 0, 1) for x in ep[t][:-1]], wl[n0:], 0, self.o["aspan"]): a(x)
            for t in (2, 3, 0, 1): a(ep[t][-1])
            tok01 = a.mark()
        else:
            for x in merge(ep[2][:-1] + ep[3][:-1], wl[n0:n1]) + [ep[2][-1], ep[3][-1]]: a(x)
            tok23 = a.mark()
            self.stamp("g1e0")
            second = merge(ep[0][:-1] + ep[1][:-1], wl[n1:])
            cut = len(second) * self.o["f23"] // 100
            for x in second[:cut]: a(x)
            a.wait_mark(tok23)
            self.act_flag(1)
            for x in second[cut:] + [ep[0][-1], ep[1][-1]]: a(x)
            tok01 = a.mark()
        self.stamp("g1e1")
        a(f"s_setprio 0\nv_add_u32 v7, {4*112*1024}, v15")
        for m in range(self.N1): a(self.step_inc(m, self.WU, 0, None, 37))
        self.cnt_wait(3, 8, 13)
        for m in range(self.N1, self.N1 + self.N2):
            for x in self.wd_dma(m): a(x)
            if m == self.N1 + 1:
                a.wait_mark(tok01)
                self.stamp("pubAct")
                if self.o["abatch"]: self.act_flag(1)
                self.act_flag(0)
                for x in self.g2_flag_loads([0]): a(x)
        tok = a.mark()
        a.wait(lgkm=0)
        self.g2_wait([0], True)
        self.stamp("h3a")
        self.g2_issue([0])
        a.wait_mark(tok)
        self.cnt_add(3, 13)
        self.g2_sweep([0])
        self.stamp("g2s0")
        self.cnt_wait(0, 8, 13)
        self.g2_dump(0)
        self.cnt_add(4, 13)
        self.final_loads()
        self.g2_wait([1], False)
        self.stamp("h3")
        a("s_setprio 3")
        self.g2_issue([1])
        self.g2_sweep([1])
        self.stamp("g2")
    def gemm1_b(self):
        a = self.a
        B = self.G1_B; ACC = self.G1_ACC; AF = self.G1_AF; NA = 3; T = AF + 24; O = AF + 32
        def ard(g):
            p, s = divmod(g, 28); b = AF + 8 * (g % NA)
            return [f"ds_read_b64_tr_b16 v[{b+4*t+2*h}:{b+4*t+2*h+1}], v{10+2*p+t} offset:{1024*s + 256*h}" for t in range(2) for h in range(2)]
        augl, stl = self.g1_side_loads()
        self.fold_consts()
        self.g2_addr()
        a("s_barrier")
        for x in [x for s in range(28) for x in self.x2_loads(B, s)] + augl + stl: a(x)
        for m in range(self.N1):
            for x in self.wd_dma(m): a(x)
        a("s_setprio 1")
        self.stamp("g1s1")
        for x in ard(0) + ard(1): a(x)
        ep = [self.swiglu(ACC + 16*t, T, O + 4*t, t) for t in range(4)]
        for p in range(2):
            fill = ep[0][:-1] + ep[1][:-1] if p else []
            nf = len(fill); k = 0
            for s in range(28):
                g = 28*p + s; b = AF + 8 * (g % NA)
                nxt = ard(g + 2) if g + 2 < 56 else []
                for t in range(2):
                    d = f"v[{ACC+32*p+16*t}:{ACC+32*p+16*t+15}]"
                    a(f"v_mfma_f32_32x32x16_bf16 {d}, v[{b+4*t}:{b+4*t+3}], v[{B+4*s}:{B+4*s+3}], {'0' if s == 0 else d}")
                    for x in nxt[2*t:2*t+2]: a(x)
                    i = 2*s + t
                    if i >= 4:
                        tgt = min(nf, (i - 3) * nf // self.o["efill"])
                        for x in fill[k:tgt]: a(x)
                        k = tgt
                if p == 0 and s == 20: self.g1_check(T)
                if p == 1 and s == 0: self.cnt_add(3, T, drained=True)
            self.g1_fold([2*p, 2*p + 1])
        self.stamp("g1p0")
        a(ep[0][-1]); a(ep[1][-1])
        tok01 = a.mark()
        self.cnt_add(0, T)
        for x in self.g2_flag_loads([0]): a(x)
        for x in ep[2][:-1] + ep[3][:-1] + [ep[2][-1], ep[3][-1]]: a(x)
        tok23 = a.mark()
        self.stamp("g1e1")
        a(f"""v_add_u32 v7, {4*112*1024}, v15
s_cmp_eq_u32 s69, 0
s_cselect_b32 s12, 7, 0
s_sub_u32 s12, s12, 1
s_mul_i32 s12, s12, {4*self.WU}
s_add_u32 s34, s34, s12""")
        self.cnt_wait(3, 12, 13)
        a.wait_mark(tok01)
        rd = self.wd_lds_reads()
        for x in rd[:13]: a(x)
        self.act_flag(0)
        for x in rd[13:]: a(x)
        self.cnt_add(0, 13)
        self.g2_wait([0], True)
        a("s_mov_b32 s71, s75")
        P = self.o["g2preB"]
        P0 = self.o["bflag"]
        for m in range(P0): a(self.g2_bl(m, [0]))
        a.wait_mark(tok23)
        self.stamp("pubAct")
        self.act_flag(1)
        for m in range(P0, P): a(self.g2_bl(m, [0]))
        a("s_setprio 0")
        pend = [self.g2_bl(m, [0]) for m in range(P, 12)] + self.wd_loads(12) + [self.g2_bl(12, [0])] + self.wd_loads(13) + [self.g2_bl(13, [0])]
        for x in pend[:4]: a(x)
        pend = pend[4:]
        for x in self.g2_flag_loads([1]): a(x)
        ACC2 = self.G2_ACC; issued1 = 0
        for u in range(28):
            g, m = divmod(u, 14)
            o = self.V_WD + 8*m; b = self.G2_AB + 4*m
            for par in range(2):
                d = f"v[{ACC2+32*g+16*par}:{ACC2+32*g+16*par+15}]"
                a(f"v_mfma_f32_32x32x16_bf16 {d}, v[{o+4*par}:{o+4*par+3}], v[{b}:{b+3}], {'0' if m == 0 else d}")
            if pend:
                for x in pend[:2]: a(x)
                pend = pend[2:]
                if not pend:
                    a.wait(lgkm=0)
                    self.g2_wait([1], True)
                    self.stamp("h3a")
                    a("s_mov_b32 s71, s75")
            else:
                n = 0
                while issued1 < 14 and issued1 <= u and n < 2:
                    a(self.g2_bl(issued1, [1])); issued1 += 1; n += 1
            if u == 16:
                self.cnt_wait(0, 8, 13)
                self.g2_dump(0)
                self.cnt_add(4, 13)
                self.final_loads()
        assert issued1 == 14
        self.stamp("g2")

    G2_ACC = 192; G2_AB = 16; G2_NB = 14
    def g2_addr(self):
        self.a(f"""s_lshl_b32 s12, s{S_XCD}, 2
s_add_u32 s12, s12, s64
s_lshl_b32 s12, s12, 2
s_add_u32 s12, s12, s{S_W3}
s_lshl_b32 s12, s12, 7
s_add_u32 s12, s12, {FLG3}
s_lshr_b32 s13, s{S_WAVE}, 2
s_xor_b32 s13, s13, 1
s_mul_i32 s13, s13, {F3P}
s_add_u32 s32, s12, s13
s_add_u32 s33, s32, {2*F3P}
s_lshl_b32 s12, s{S_XCD}, 3
s_add_u32 s12, s12, s64
s_mul_i32 s12, s12, 112
s_add_u32 s12, s12, s74
s_lshl_b32 s12, s12, 10
s_add_u32 s75, s12, {ACT}""")
    def g2_flag_loads(self, which, at=None):
        return [f"s_load_dwordx8 s[{16+8*k}:{23+8*k}], s[{P_WS}:{P_WS+1}], s{32+k if at is None else at} glc" for k in which]
    def g2_wait(self, which, issued, at=None):
        a = self.a
        lp = self.lab("fw"); ck = self.lab("fc"); ok = self.lab("fok")
        a(f"s_mov_b32 s9, {SPIN}")
        if issued: a(f"s_branch {ck}")
        a.label(lp)
        sm = set(a.sm); a.sm = set()
        for x in self.g2_flag_loads(which, at): a(x)
        a.wait(lgkm=0)
        a.label(ck)
        regs = [16 + 8*k + i for k in which for i in range(7)]
        for r in regs: a(f"s_xor_b32 s{r}, s{r}, s{S_NONCE}")
        for r in regs[1:]: a(f"s_or_b32 s{regs[0]}, s{regs[0]}, s{r}")
        a(f"""s_cbranch_scc0 {ok}
s_sub_u32 s9, s9, 1
s_cmp_lg_u32 s9, 0
s_cbranch_scc1 {lp}""")
        a.label(ok)
    def g2_bl(self, m, gs):
        nb = self.G2_NB // len(gs)
        L = []
        for k, g in enumerate(gs):
            b = self.G2_AB + 4 * (len(gs) * (m % nb) + k)
            L.append(f"buffer_load_dwordx4 v[{b}:{b+3}], v{15 if g == 0 else 7}, {WS}, s71 offen sc1")
        if m < 13: L.append(self.step_inc(m, 1024, 0, None, 71))
        return "\n".join(L)
    def g2_issue(self, gs, pre=None):
        a = self.a
        a("s_mov_b32 s71, s75")
        for m in range(pre or self.o["g2pre"]): a(self.g2_bl(m, gs))
    def g2_sweep(self, gs, pre=None):
        a = self.a; WD = self.V_WD; ACC = self.G2_ACC
        nb = self.G2_NB // len(gs); nxt = pre or self.o["g2pre"]
        for m in range(14):
            o = WD + 8*m
            for k, g in enumerate(gs):
                b = self.G2_AB + 4 * (len(gs) * (m % nb) + k)
                for par in range(2):
                    d = f"v[{ACC+32*g+16*par}:{ACC+32*g+16*par+15}]"
                    a(f"v_mfma_f32_32x32x16_bf16 {d}, v[{o+4*par}:{o+4*par+3}], v[{b}:{b+3}], {'0' if m == 0 else d}")
            if nxt < 14: a(self.g2_bl(nxt, gs)); nxt += 1
    def g2_dump(self, g):
        a = self.a
        a(f"""s_lshl_b32 s12, s{S_WAVE}, 13
s_add_u32 s12, s12, {65536*g}
v_lshlrev_b32 v6, 5, v3
v_xor_b32 v6, v6, v15
v_add_u32 v6, s12, v6""")
        for G in range(4):
            if G: a(f"v_xor_b32 v6, {64*(G ^ (G - 1))}, v6")
            for par in range(2):
                b = self.G2_ACC + 32*g + 16*par + 4*G
                a(f"ds_write_b128 v6, v[{b}:{b+3}] offset:{G*2048 + par*1024}")
    def g2_gather(self, g, srcs, R):
        for k, src in enumerate(srcs):
            for par in range(2):
                b = R + 8*k + 4*par
                self.a(f"ds_read_b128 v[{b}:{b+3}], v{8+g} offset:{src*8192 + par*1024}")
    def g2_sum(self, R, n):
        while n > 1:
            n //= 2
            for src in range(n):
                for k in range(8): self.a(f"v_add_f32 v{R+8*src+k}, v{R+8*src+k}, v{R+8*(src+n)+k}")
    def g2_out(self, g, R, XR, GB, T):
        a = self.a
        for e in range(4):
            a(f"v_fmac_f32 v{XR+2*e}, v{GB+8+2*e}, v{R+e}\nv_fmac_f32 v{XR+2*e+1}, v{GB+9+2*e}, v{R+4+e}")
        for e in range(4): a(f"v_cvt_pk_bf16_f32 v{T+e}, v{XR+2*e}, v{XR+2*e+1}")
        a(f"buffer_store_dwordx4 v[{T}:{T+3}], v4, {RB}, s{72+g} offen {self.o['outsc']}")
    F_XL = 192; F_XR = 88; F_GB = 196
    def final_loads(self):
        a = self.a
        XL = self.F_XL; GB = self.F_GB
        a(f"""s_and_b32 s14, s{S_WAVE}, 4
s_add_u32 s14, s14, s64
s_lshl_b32 s14, s14, 2
s_add_u32 s14, s14, s{S_W3}
s_mul_i32 s12, s{S_XCD}, {224*1024}
s_lshl_b32 s13, s65, 15
s_add_u32 s12, s12, s13
s_lshl_b32 s13, s14, 5
s_add_u32 s12, s12, s13
s_add_u32 s12, s12, {X2}
v_lshrrev_b32 v4, 1, v1
v_lshlrev_b32 v4, 10, v4
v_and_b32 v5, 1, v1
v_lshl_add_u32 v4, v5, 4, v4
v_add_u32 v4, s12, v4
s_lshl_b32 s12, s65, 9
s_add_u32 s12, s12, {MODG + 5*448*8}
v_lshl_add_u32 v5, v1, 3, s12
v_lshrrev_b32 v9, 3, v1
v_and_b32 v8, 7, v1""")
        a(f"buffer_load_dwordx4 v[{XL}:{XL+3}], v4, {WS}, 0 offen sc1")
        self.gbl = [f"buffer_load_dwordx2 v[{GB}:{GB+1}], v5, {WS}, 0 offen sc1"]
        for x in self.gbl: a(x)
        a(f"""s_mul_i32 s12, s{S_WAVE}, 1536
s_add_u32 s12, s12, 131072
v_lshl_add_u32 v{GB+2}, v9, 4, v15
v_add_u32 v{GB+2}, s12, v{GB+2}
v_lshl_add_u32 v{GB+3}, v1, 2, s12
v_mul_u32_u24 v{GB+4}, 144, v8
v_lshl_add_u32 v{GB+4}, v9, 2, v{GB+4}
v_add_u32 v{GB+4}, s12, v{GB+4}
v_lshl_add_u32 v{GB+5}, v8, 5, s12""")
        self.srd(R_B, P_OUT, 2048 * 896)
        a(f"""s_lshl_b32 s12, s{S_XCD}, 5
s_add_u32 s12, s12, s14
s_mul_i32 s12, s12, {8*896}
s_lshl_b32 s13, s65, 7
s_add_u32 s72, s12, s13
v_mul_u32_u24 v4, 896, v9
v_lshl_add_u32 v4, v8, 4, v4
s_lshl_b32 s12, s{S_W3}, 3
v_add_u32 v9, s12, v9
v_lshlrev_b32 v6, 1, v8
v_xor_b32 v9, v9, v6
v_lshlrev_b32 v9, 4, v9
v_and_b32 v6, 1, v8
v_lshl_add_u32 v9, v6, 9, v9
v_lshrrev_b32 v8, 1, v8
v_lshl_add_u32 v8, v8, 11, v9
s_and_b32 s12, s{S_WAVE}, 4
s_lshl_b32 s12, s12, 14
v_add_u32 v8, s12, v8""")
    def gemm2_final(self):
        a = self.a
        XL = self.F_XL; XR = self.F_XR; GB = self.F_GB; R = 16; T = 160
        self.g2_dump(1)
        self.cnt_add(5, 13)
        self.poll(self.gbl, [GB + 1], T, [], issued=True, sleep=2)
        a(f"""ds_write_b128 v{GB+2}, v[{XL}:{XL+3}]
ds_write_b32 v{GB+3}, v{GB} offset:1280
ds_read2_b32 v[{XL}:{XL+1}], v{GB+4} offset0:0 offset1:8
ds_read2_b32 v[{XL+2}:{XL+3}], v{GB+4} offset0:16 offset1:24
ds_read_b128 v[{GB+8}:{GB+11}], v{GB+5} offset:1280
ds_read_b128 v[{GB+12}:{GB+15}], v{GB+5} offset:1296""")
        for i in range(4):
            a(f"v_lshlrev_b32 v{XR+2*i}, 16, v{XL+i}\nv_and_b32 v{XR+2*i+1}, 0xffff0000, v{XL+i}")
        self.cnt_wait(4, 8, 13, group_step=True)
        self.stamp("fin")
        self.g2_gather(0, range(8), R)
        self.g2_sum(R, 8)
        self.g2_out(0, R, XR, GB, T)

    L_VEC = 2 * 448 * 128
    def gemv_dma(self, srd, pitch, sbase, valid):
        a = self.a
        sk = self.lab("nodma")
        a(f"""s_cmp_ge_u32 s68, {valid}
s_cbranch_scc1 {sk}
v_mul_u32_u24 v10, {pitch}, v36
v_lshl_add_u32 v11, v38, 4, v10
v_lshl_add_u32 v10, v37, 4, v10
s_mul_i32 s12, s{S_W3}, {112*pitch}
s_add_u32 s{sbase}, s{sbase}, s12
s_mul_i32 s12, s{S_WAVE}, {112*128}""")
        for i in range(14):
            a(f"s_mov_b32 m0, s12\ns_add_u32 s12, s12, 1024")
            a(f"buffer_load_dwordx4 v{10 + i % 2}, s[{srd}:{srd+3}], s{sbase} offen lds")
            a(f"s_add_u32 s{sbase}, s{sbase}, {8*pitch}")
        a.label(sk)
    def gemv_mma(self):
        a = self.a
        def rd(s):
            b = 64 + 8*s
            return [f"ds_read_b64_tr_b16 v[{b}:{b+1}], v40 offset:{4096*s}",
                    f"ds_read_b64_tr_b16 v[{b+2}:{b+3}], v40 offset:{4096*s + 512}",
                    f"ds_read_b128 v[{b+4}:{b+7}], v41 offset:{64*s}"]
        for s in range(4):
            for x in rd(s): a(x)
        for s in range(14):
            b = 64 + 8*s
            a(f"v_mfma_f32_16x16x32_bf16 v[32:35], v[{b}:{b+3}], v[{b+4}:{b+7}], {'0' if s == 0 else 'v[32:35]'}")
            if s + 4 < 14:
                for x in rd(s + 4): a(x)
    def group_barrier(self, first_group):
        sk = self.lab("gb")
        self.a(f"s_cmp_ge_u32 s{S_WAVE}, 4\n" + ("s_cbranch_scc1" if first_group else "s_cbranch_scc0") + f" {sk}\ns_barrier")
        self.a.label(sk)

    def spare(self):
        a = self.a; LV = self.L_VEC
        self.srd(R_A, P_C, 896)
        a(f"""v_lshlrev_b32 v39, 1, v0
buffer_load_ushort v60, v39, {RA}, 0 offen
s_lshl_b32 s67, s{S_XCD}, 2
s_add_u32 s67, s67, s{S_SLOT}
s_sub_u32 s67, s67, 28
s_lshr_b32 s12, s{S_WAVE}, 2
s_lshl_b32 s12, s12, 5
s_add_u32 s68, s67, s12
""")
        self.mod_block()
        a(f"""s_lshl_b32 s69, s64, 7
; copy addresses: row = lane>>3, source chunk = (lane&7) ^ swizzle(row)
v_lshrrev_b32 v36, 3, v1
v_and_b32 v37, 2, v36
v_and_b32 v38, 7, v1
v_xor_b32 v37, v37, v38
v_xor_b32 v38, 4, v37
v_lshrrev_b32 v42, 4, v1
v_bfe_u32 v43, v1, 2, 2
v_lshl_add_u32 v40, v42, 3, v43
v_lshlrev_b32 v40, 7, v40
v_lshrrev_b32 v43, 1, v43
v_and_b32 v44, 1, v42
v_lshl_add_u32 v43, v44, 1, v43
v_xor_b32 v43, s{S_W3}, v43
v_lshl_add_u32 v40, v43, 5, v40
v_and_b32 v43, 3, v1
v_lshl_add_u32 v40, v43, 3, v40
s_lshr_b32 s12, s{S_WAVE}, 2
s_mul_i32 s12, s12, {448*128}
v_add_u32 v40, s12, v40
v_and_b32 v43, 1, v1
v_mul_u32_u24 v43, 1088, v43
v_lshl_add_u32 v41, v42, 4, v43
v_add_u32 v41, {LV}, v41
v_add_u32 v39, {LV}, v39""")
        self.srd(R_B, P_WM, 448 * 5376)
        def silu():
            a(f"""v_lshlrev_b32 v60, 16, v60
v_mul_f32 v62, {f32(-LOG2E)}, v60
v_exp_f32 v62, v62
v_add_f32 v62, 1.0, v62
v_rcp_f32 v62, v62
v_mul_f32 v60, v60, v62
v_cvt_pk_bf16_f32 v60, v60, v60
ds_write_b16 v39, v60
ds_write_b16 v39, v60 offset:1088""")
            a.wait(lgkm=0)
        sk = self.lab("spB"); sj = self.lab("spJ")
        a(f"s_cmp_ge_u32 s{S_WAVE}, 4\ns_cbranch_scc1 {sk}")
        st = a.state()
        if self.o["warm"]: a("s_barrier")
        self.gemv_dma(R_B, 5376, 69, 42)
        silu()
        a(f"s_branch {sj}")
        a.label(sk); a.set_state(st)
        a("s_setprio 2")
        self.phase_a_stats()
        self.phase_a_publish()
        a("s_setprio 0")
        a(f"v_mov_b32 v2, {LV + 2304}\nds_write_b32 v2, v59")
        self.stamp("pubA")
        if self.o["warm"]: a("s_barrier")
        silu()
        a("s_barrier")
        self.gemv_dma(R_B, 5376, 69, 42)
        a.label(sj); a.win = []
        a.wait(vm=0)
        self.stamp("chain")
        a("s_barrier")
        a(f"v_mov_b32 v4, {LV + 2304}\nds_read_b32 v8, v4\nv_readfirstlane_b32 s{S_NONCE}, v8")
        skm = self.lab("nomod")
        a(f"s_cmp_ge_u32 s68, 42\ns_cbranch_scc1 {skm}")
        self.gemv_mma()
        a(f"""s_cmp_eq_u32 s65, 1
s_cselect_b32 s12, 1.0, 0
s_cmp_eq_u32 s65, 4
s_cselect_b32 s12, 1.0, s12""")
        for e in range(4):
            self.bf16r(32 + e, 32 + e)
            a(f"v_add_f32 v{32+e}, s12, v{32+e}")
            self.bf16r(48 + 2*e, 32 + e)
            a(f"v_mov_b32 v{49+2*e}, s{S_NONCE}")
        a(f"""v_lshlrev_b32 v45, 5, v42
s_lshl_b32 s12, s64, 9
s_lshl_b32 s13, s{S_W3}, 7
s_add_u32 s12, s12, s13
s_add_u32 s12, s12, {MODG}
s_mov_b32 exec_lo, 0x00010001
s_mov_b32 exec_hi, 0x00010001
buffer_store_dwordx4 v[48:51], v45, {WS}, s12 offen sc1
buffer_store_dwordx4 v[52:55], v45, {WS}, s12 offen offset:16 sc1
s_mov_b64 exec, -1""")
        self.stamp("kgen")
        a.label(skm); a.win = []
        self.group_barrier(True)
        if self.o["spw13"]:
            assert self.o["ne"] == 12 and self.o["krot"]
            a(f"""s_sub_u32 s12, s{S_SLOT}, 25
s_add_u32 s12, s12, s{S_WAVE}
s_sub_u32 s13, s12, 7
s_min_u32 s12, s12, s13
s_mul_i32 s12, s12, {64*3584}
s_lshr_b32 s13, s{S_XCD}, 1
s_mul_i32 s13, s13, 7
s_add_u32 s13, s13, s{S_WAVE}
s_lshl_b32 s13, s13, 7
s_add_u32 s12, s12, s13
s_cmp_lt_u32 s{S_WAVE}, 7
s_cselect_b32 s12, s12, {OOB}
v_mul_u32_u24 v4, 3584, v1
v_add_u32 v4, s12, v4""")
            for k, p in enumerate((P_WG, P_WU)):
                self.srd(R_A, p, 448 * 3584)
                a(f"buffer_load_dword v{20+k}, v4, {RA}, 0 offen")
            a.wait(vm=0)
            self.stamp("conv0")
        a(f"""s_and_b32 s{S_RB}, s{S_XCD}, 1
s_lshl_b32 s{S_RB}, s{S_RB}, 2
s_lshr_b32 s12, s{S_XCD}, 1
s_add_u32 s{S_RB}, s{S_RB}, s12
s_mul_i32 s12, s{S_RB}, {224*1024}
s_mul_i32 s13, s{S_WAVE}, {28*1024}
s_add_u32 s12, s12, s13
s_sub_u32 s14, s{S_SLOT}, 28
s_lshl_b32 s13, s14, 8
s_add_u32 s12, s12, s13
s_add_u32 s12, s12, {X2}
v_lshl_add_u32 v4, v1, 2, s12
s_lshl_b32 s13, s{S_RB}, 2
s_add_u32 s13, s13, s14
s_lshl_b32 s13, s13, 9
s_add_u32 s13, s13, {STAT2}
v_lshl_add_u32 v5, v1, 3, s13
v_lshlrev_b32 v6, 3, v0
v_lshlrev_b32 v10, 3, v1
""")
        a.wait(lgkm=0)
        self.barrier2(FLG2B if self.o["split2"] else FLG2, sleep=self.o["spsleep"])
        self.stamp("h2")
        for k in range(28):
            a(f"buffer_load_dword v{64+k}, v4, {WS}, 0 offen offset:{1024*(k%4)} sc1")
            if k % 4 == 3: a("v_add_u32 v4, 4096, v4")
        a("s_mov_b32 s13, 0x3f803f80")
        for k in range(28):
            a(f"v_dot2_f32_bf16 v2, v{64+k}, s13, {'v2' if k else '0'}\nv_dot2_f32_bf16 v3, v{64+k}, v{64+k}, {'v3' if k else '0'}")
        a("ds_write_b64 v6, v[2:3]")
        self.barrier()
        sk0 = self.lab("st0")
        a(f"s_cmp_lg_u32 s{S_WAVE}, 7\ns_cbranch_scc1 {sk0}")
        for w in range(8): a(f"ds_read_b64 v[{16+2*w}:{17+2*w}], v10 offset:{512*w}")
        for n in (4, 2, 1):
            for w in range(n):
                a(f"v_add_f32 v{16+2*w}, v{16+2*w}, v{16+2*(w+n)}\nv_add_f32 v{17+2*w}, v{17+2*w}, v{17+2*(w+n)}")
        self.ln_finish(16, 17, 18)
        a(f"""v_cvt_pk_bf16_f32 v16, v16, v17
v_mov_b32 v17, s{S_NONCE}
buffer_store_dwordx2 v[16:17], v5, {WS}, 0 offen sc1""")
        self.stamp("g1s1")
        a("s_barrier\ns_branch L_fin")
        a.label(sk0); a.win = []; a.vm = []
        a(f"""s_sub_u32 s14, s{S_SLOT}, 28
s_mul_i32 s13, s14, 7
s_add_u32 s13, s13, s{S_WAVE}
s_mul_i32 s13, s13, {4*self.WU}
s_add_u32 s13, s13, {WDF}
v_min_u32 v99, 55, v1
v_lshl_add_u32 v99, v99, 7, s13
s_barrier""")
        order = [int(c) for c in self.o["spo"]]
        for i, k in enumerate(order):
            a(f"v_add_u32 v98, {56*128*k}, v99\nbuffer_load_dword v{100+i}, v98, {WS}, 0 offen sc1")
            a.wait(vm=0)

    def finish(self):
        a = self.a
        a.label("L_fin"); a.win = []
        if self.stamps and self.probe != "none":
            a.wait(vm=0)
            self.stamp("end")
            a(f"""s_lshl_b32 s12, s2, 3
s_add_u32 s12, s12, s{S_WAVE}
s_lshl_b32 s12, s12, 7
s_add_u32 s12, s12, {TS}
v_mov_b32 v2, 0
s_mov_b64 exec, 1""")
            for q in range(5):
                for i in range(4): a(f"v_mov_b32 v{4+4*q+i}, s{S_TS+4*q+i}")
                a(f"buffer_store_dwordx4 v[{4+4*q}:{7+4*q}], v2, {WS}, s12 offen offset:{16*q}")
        if self.probe:
            idx = self.stamp_names.index(self.probe) if self.probe != "none" else None
            if idx is None: a("s_mov_b32 s12, 0")
            else:
                a(f"""s_sub_u32 s12, s{S_TS+idx}, s{S_NONCE}
s_cmp_eq_u32 s{S_TS+idx}, 0
s_cselect_b32 s12, 0, s12
s_max_i32 s12, s12, 0
s_min_u32 s12, s12, 10000
s_mul_i32 s12, s12, 10""")
            a(f"s_add_u32 s12, s12, 8000\ns_mov_b32 s9, 1000000")
            a.label("L_pw")
            a(f"""s_memrealtime s[14:15]
s_sub_u32 s13, s14, s{S_NONCE}
s_sub_u32 s9, s9, 1
s_cmp_eq_u32 s9, 0
s_cbranch_scc1 L_exit
s_cmp_lt_i32 s13, s12
s_cbranch_scc1 L_pw""")
        a.label("L_exit")
        a("s_endpgm")

    def build(self):
        a = self.a
        self.prologue()
        l0 = self.lab("e0"); l1 = self.lab("e1"); l2 = self.lab("e2"); l3 = self.lab("e3")
        a(f"s_cmp_ge_u32 s{S_SLOT}, 28\ns_cbranch_scc1 {l0}")
        self.param_loads(0, 2)
        self.conv_scalars()
        a.label(l0)
        vmA = list(a.vm)
        a(f"s_cmp_lt_u32 s{S_WAVE}, 4\ns_cbranch_scc1 {l1}")
        self.phase_a_loads()
        a.label(l1)
        a(f"s_mov_b32 s{R_WS}, s{P_WS}\ns_mov_b32 s{R_WS+1}, s{P_WS+1}")
        a(f"s_cmp_ge_u32 s{S_SLOT}, 28\ns_cbranch_scc1 L_spare")
        st_spare = a.state()
        a(f"s_cmp_lt_u32 s{S_WAVE}, 4\ns_cbranch_scc1 {l3}")
        self.param_loads(2, 6)
        self.code_touch()
        a.label(l3); a.win = []
        self.handoff1_addr()
        self.gather_addr()
        a(f"s_cmp_lt_u32 s{S_WAVE}, 4\ns_cbranch_scc1 {l2}")
        stA = a.state(); stA = (vmA,) + stA[1:]
        touches = ([self.warm_wmod()] if self.o["wm"] else []) + (self.wdf_loads(R_A) if self.o["wdfs"] == 2 else [])
        if self.o["w13p"] == "pub": touches.append(self.w13_touch(R_A))
        a("s_setprio 2")
        self.phase_a_stats()
        self.phase_a_publish()
        for x in touches: a(x)
        a(f"ds_write_b32 v7, v59 offset:{L_T + 11*256}")
        self.stamp("pubA")
        a("s_branch L_grpB")
        stB = a.state()
        a.label(l2); a.set_state(stA)
        self.lds_zero()
        self.kgen_common()
        self.stamp("x0")
        self.kgen_lo()
        self.stamp("xarr")
        for x in self.gather_loads(): a(x)
        self.kgen_contract_pre()
        w13t = self.w13_touch() if self.o["w13p"] in ("con", "h1") else ""
        self.stamp("chain")
        self.barrier()
        a(f"ds_read_b32 v8, v7 offset:{L_T + 11*256}")
        hl = self.handoff1_loads(); late = self.o["h1late"]
        self.kgen_contract([] if late else hl, self.gather_unpack(), "\n".join((hl if late else []) + ([w13t] if self.o["w13p"] == "con" else [])))
        a(f"v_readfirstlane_b32 s{S_NONCE}, v8")
        self.stamp("kgen")
        self.barrier()
        self.expand(0)
        self.stamp("exp")
        self.make_z([w13t] if self.o["w13p"] == "h1" else [])
        self.conv_pre()
        self.w13_addr()
        a("s_setprio 1")
        self.barrier()
        self.stamp("conv0")
        self.conv_main()
        self.stamp("pre")
        a("s_setprio 0")
        self.barrier()
        self.stamp("conv1")
        self.cnt_wait(2, 4, 60)
        self.vec_issue()
        for x in self.w13_dma(self.o['ne'], 28 - self.o['ne'], (28 - self.o['ne']) // 4): a(x)
        self.vec_store()
        a.wait(lgkm=0)
        a("s_branch L_join")
        a.label("L_grpB"); a.set_state(stB)
        self.kgen_common()
        self.kgen_hi()
        self.kgen_hi_chain()
        for x in self.gather_loads(): a(x)
        a("s_setprio 0")
        self.stamp("chain")
        self.barrier()
        if not self.o["h1late"]:
            for x in self.handoff1_loads(): a(x)
        for x in self.gather_unpack(): a(x)
        self.w13_addr()
        self.mod_addr()
        if self.o["wdfs"] == 2: self.wdf_stores()
        else: wdfl = self.wdf_loads(R_B)
        if self.o["h1late"]:
            for x in self.handoff1_loads(): a(x)
        self.stamp("kgen")
        self.barrier()
        self.expand(1)
        self.stamp("exp")
        self.make_z()
        self.barrier()
        self.stamp("conv0")
        if self.o["wdfs"] != 2:
            for x in wdfl: a(x)
        a.inject(self.w13_dma(0, self.o['ne'], self.o['ne'] // 4), self.o["w13rate"])
        self.x_fetch()
        self.cum_k()
        self.conv_epilogue_pre()
        a.wait_mark(self.tok_mod)
        self.stamp("pre")
        self.barrier()
        self.stamp("conv1")
        a("s_setprio 1")
        self.conv_epilogue()
        a("s_setprio 0")
        self.stamp("cepi")
        self.cnt_add(2, 60)
        a("s_mov_b32 s39, s72")
        assert all(not d for d in a.vm)
        a.label("L_join"); a.win = []
        a("s_nop 1")
        self.ffn_addr()
        sk = self.lab("arr")
        a(f"s_cmp_lt_u32 s{S_WAVE}, 4\ns_cbranch_scc1 {sk}")
        if self.o["split2"]:
            a.wait(vm=2)
            self.stamp("pubX2")
            self.flag_store(39)
            a(f"s_add_u32 s40, s39, {FLG2B - FLG2}")
            a.wait(vm=0)
            self.flag_store(40)
        else:
            a.wait(vm=0)
            self.stamp("pubX2")
            self.flag_store(39)
        if self.o["b2wait"]: a.wait(lgkm=0)
        a.label(sk)
        a.wait(vm=0)
        self.barrier2(pollers=self.o["pollers"])
        self.stamp("h2")
        a(f"s_cmp_ge_u32 s{S_WAVE}, 4\ns_cbranch_scc1 L_ffnB")
        st = a.state()
        self.gemm1_a()
        assert not a.vm
        a("s_branch L_ffnJ")
        a.label("L_ffnB"); a.set_state(st)
        self.gemm1_b()
        a.label("L_ffnJ")
        self.gemm2_final()
        a("s_branch L_fin")
        a.label("L_spare"); a.set_state(st_spare)
        self.spare()
        self.finish()
        body = a.text()
        return f"""{HEADER}; @launch grid=(256,1,1) block=(512,1,1) lds={LDS_BYTES}
.amdgcn_target "amdgcn-amd-amdhsa--gfx950"
.text
.globl {KNAME}
.p2align 12
.p2align 8
.type {KNAME},@function
{KNAME}:
{body}{self.lag_table()}.section .rodata,"a"
.p2align 6
.amdhsa_kernel {KNAME}
  .amdhsa_next_free_vgpr 256
  .amdhsa_next_free_sgpr 102
  .amdhsa_accum_offset 256
  .amdhsa_group_segment_fixed_size 0
  .amdhsa_kernarg_size 144
  .amdhsa_user_sgpr_count 2
  .amdhsa_user_sgpr_kernarg_segment_ptr 1
  .amdhsa_system_sgpr_workgroup_id_x 1
.end_amdhsa_kernel
"""

if __name__ == "__main__":
    out = sys.argv[1]
    probe = sys.argv[sys.argv.index("--probe") + 1] if "--probe" in sys.argv else None
    opts = {}
    for x in sys.argv[2:]:
        if "=" in x:
            k, v = x.split("="); opts[k] = int(v) if v.lstrip("-").isdigit() and k != "spo" else v
    g = Gen(stamps="--stamps" in sys.argv or probe is not None, probe=probe, opts=opts)
    open(out, "w").write(g.build())
    if g.stamps: open(out + ".names", "w").write(repr(g.stamp_names))
    print("instructions", g.a.nins, "nop states", g.a.nops, "stamps", g.stamp_names)
```
